```python
import torch

def _softmax(x, axis=-1):
    return torch.softmax(x, dim=axis)
def _gelu(x):
    return torch.nn.functional.gelu(x, approximate="tanh")
def _silu(x):
    return torch.nn.functional.silu(x)
def _sigmoid(x):
    return torch.sigmoid(x)
def _layernorm(x, axis=-1, eps=1e-5):
    m = x.mean(dim=axis, keepdim=True)
    v = x.var(dim=axis, keepdim=True, unbiased=False)
    return (x - m) / torch.sqrt(v + eps)
def _scatter_add(tgt, idx, src, axis=0):
    return tgt.clone().index_add_(axis, idx, src)
def _segment_sum(src, seg, n):
    out = torch.zeros((n,) + src.shape[1:], dtype=src.dtype)
    return out.index_add_(0, seg, src)
def _pad(x, pw):
    flat = tuple(v for pair in reversed(pw) for v in pair)
    return torch.nn.functional.pad(x, flat)

kernel_name = 'sequential_preLN__grouped_kv_mqa__mixer_channel_mlp__prompt'

def setup_inputs():

    _w = (lambda a: (lambda t: t.to(torch.bfloat16) if t.is_floating_point() else t)(torch.as_tensor(a)))
    def _A_setup():
        B, S, D, H = 1, 2048, 576, 32
        Dh = D // H
        return {
            "x": _w((lambda *s: torch.randn(*s, dtype=torch.bfloat16) * 0.05)(B, S, D)),
            "wq": _w((lambda *s: torch.randn(*s, dtype=torch.bfloat16) * 0.05)(D, H * Dh)),
            "wk": _w((lambda *s: torch.randn(*s, dtype=torch.bfloat16) * 0.05)(D, Dh)),
            "wv": _w((lambda *s: torch.randn(*s, dtype=torch.bfloat16) * 0.05)(D, Dh)),
            "wo": _w((lambda *s: torch.randn(*s, dtype=torch.bfloat16) * 0.05)(H * Dh, D)),
        }
    _A_in = _A_setup()

    def _B_setup():
        B, S, D, F = 1, 2048, 576, 4608
        return {
            "x": _w((lambda *s: torch.randn(*s, dtype=torch.bfloat16) * 0.05)(B, S, D)),
            "w1": _w((lambda *s: torch.randn(*s, dtype=torch.bfloat16) * 3.2)(D, F) * (D ** -0.5)),
            "b1": _w((lambda *s: torch.randn(*s, dtype=torch.bfloat16) * 1.6)(F)),
            "w2": _w((lambda *s: torch.randn(*s, dtype=torch.bfloat16) * 0.1)(F, D) * (F ** -0.5)),
            "b2": _w((lambda *s: torch.randn(*s, dtype=torch.bfloat16) * 0.2)(D)),
        }
    _B_in = _B_setup()

    return {
        "A_x": _A_in["x"],
        "A_wq": _A_in["wq"],
        "A_wk": _A_in["wk"],
        "A_wv": _A_in["wv"],
        "A_wo": _A_in["wo"],
        "B_x": _B_in["x"],
        "B_w1": _B_in["w1"],
        "B_b1": _B_in["b1"],
        "B_w2": _B_in["w2"],
        "B_b2": _B_in["b2"],
    }

def reference(A_x, A_wq, A_wk, A_wv, A_wo, B_x, B_w1, B_b1, B_w2, B_b2):
    def _A_ref(x, wq, wk, wv, wo):
        B, S, D = x.shape
        H = 32
        Dh = D // H
        q = (lambda x, *d: x.permute(*d))((x @ wq).reshape(B, S, H, Dh), 0, 2, 1, 3)
        k = x @ wk
        v = x @ wv
        scores = torch.einsum("bhqd,bkd->bhqk", q, k) * (Dh ** -0.5)
        p = _softmax(scores, axis=-1)
        o = torch.einsum("bhqk,bkd->bhqd", p, v)
        return (lambda x, *d: x.permute(*d))(o, 0, 2, 1, 3).reshape(B, S, H * Dh) @ wo

    def _B_ref(x, w1, b1, w2, b2):
        y = _layernorm(x, axis=-1)
        h = _gelu(torch.einsum("bsd,df->bsf", y, w1) + b1)
        return torch.einsum("bsf,fd->bsd", h, w2) + b2

    x = A_x
    h = x + _A_ref(_layernorm(x, axis=-1), A_wq, A_wk, A_wv, A_wo)
    h2 = h + _B_ref(_layernorm(h, axis=-1), B_w1, B_b1, B_w2, B_b2)
    return h2
```

```python
from gen_valu import make
def mf(d, a, b, c):
    cs = "0" if c is None else f"v[{c}:{c+15}]"
    return f"    v_mfma_f32_32x32x16_bf16 v[{d}:{d+15}], v[{a}:{a+3}], v[{b}:{b+3}], {cs}\n"
def tile_simple(S, P, O, Snext):
    s = ""
    s += mf(Snext, 88, 104, None)
    for i in range(0, 4):
        s += f"    v_exp_f32 v{S+i}, v{S+i}\n"
    s += mf(Snext, 92, 108, Snext)
    for i in range(4, 8):
        s += f"    v_exp_f32 v{S+i}, v{S+i}\n"
    for i in range(0, 4):
        s += f"    v_cvt_pk_bf16_f32 v{P+i}, v{S+2*i}, v{S+2*i+1}\n"
    for i in range(8, 10):
        s += f"    v_exp_f32 v{S+i}, v{S+i}\n"
    s += mf(O, 96, P, O)
    for i in range(10, 16):
        s += f"    v_exp_f32 v{S+i}, v{S+i}\n"
    for i in range(4, 8):
        s += f"    v_cvt_pk_bf16_f32 v{P+i}, v{S+2*i}, v{S+2*i+1}\n"
    s += "    s_nop 1\n"
    s += mf(O, 100, P+4, O)
    return s
def tile_v2(S, P, O, Snext, Pprev):
    s = ""
    s += mf(Snext, 88, 104, None)
    for i in range(0, 4):
        s += f"    v_exp_f32 v{S+i}, v{S+i}\n"
    s += mf(O, 100, Pprev+4, O)
    for i in range(0, 2):
        s += f"    v_cvt_pk_bf16_f32 v{P+i}, v{S+2*i}, v{S+2*i+1}\n"
    for i in range(4, 8):
        s += f"    v_exp_f32 v{S+i}, v{S+i}\n"
    s += mf(Snext, 92, 108, Snext)
    for i in range(2, 4):
        s += f"    v_cvt_pk_bf16_f32 v{P+i}, v{S+2*i}, v{S+2*i+1}\n"
    for i in range(8, 12):
        s += f"    v_exp_f32 v{S+i}, v{S+i}\n"
    s += mf(O, 96, P, O)
    for i in range(4, 6):
        s += f"    v_cvt_pk_bf16_f32 v{P+i}, v{S+2*i}, v{S+2*i+1}\n"
    for i in range(12, 16):
        s += f"    v_exp_f32 v{S+i}, v{S+i}\n"
    s += "    s_nop 0\n"
    for i in range(6, 8):
        s += f"    v_cvt_pk_bf16_f32 v{P+i}, v{S+2*i}, v{S+2*i+1}\n"
    return s
init = "".join(f"    v_mov_b32 v{r}, 0\n" for r in range(88, 112))
for block in (256, 512, 1024):
    b = (tile_simple(8, 40, 56, 24) + tile_simple(24, 48, 56, 8)) * 8
    make(f"attn1_{block}.s", b, 8, block, init=init)
    b = (tile_v2(8, 40, 56, 24, 48) + tile_v2(24, 48, 56, 8, 40)) * 8
    make(f"attn2_{block}.s", b, 8, block, init=init)
    b = (mf(8, 88, 104, None) + mf(24, 88, 104, None) + mf(56, 96, 40, 56) + mf(72, 96, 40, 72)) * 16
    make(f"mfma_{block}.s", b, 8, block, init=init)
    b = "".join(mf(56 + 16*(j&1), 96, 40, 56 + 16*(j&1)) + "".join(f"    v_exp_f32 v{8+i+3*(j&3)}, v{24+i}\n" for i in range(3)) for j in range(64))
    make(f"mfma3e_{block}.s", b, 8, block, init=init)
    b = "".join(mf(56 + 16*(j&1), 96, 40, 56 + 16*(j&1)) + "".join(f"    v_exp_f32 v{8+i+4*(j&3)}, v{24+i}\n" for i in range(4)) for j in range(64))
    make(f"mfma4e_{block}.s", b, 8, block, init=init)
    b = "".join(mf(56 + 16*(j&1), 96, 40, 56 + 16*(j&1)) + "".join(f"    v_exp_f32 v{8+i+4*(j&3)}, v{24+i}\n" for i in range(4)) + "".join(f"    v_cvt_pk_bf16_f32 v{112+i+2*(j&3)}, v{24+i}, v{25+i}\n" for i in range(2)) for j in range(64))
    make(f"mfma4e2c_{block}.s", b, 8, block, init=init)
```

```python
from gen_valu import make
from gen_attn import mf, init
def tile(S, Snext, t, reads=True, extra=""):
    P = 40; O = 56
    KA = [88, 112][(t+1)&1]; KB = [92, 116][(t+1)&1]
    KA2 = [88, 112][t&1]; KB2 = [92, 116][t&1]
    V = [96, 120][t&1]; Vp = [96, 120][(t+1)&1]
    off = (t % 16) * 2368
    s = ""
    s += "    s_waitcnt lgkmcnt(2)\n" if reads else ""
    s += mf(Snext, KA, 104, None)
    if reads: s += f"    ds_read_b128 v[{KA2}:{KA2+3}], v1 offset:{off}\n"
    for i in range(0, 4):
        s += f"    v_exp_f32 v{S+i}, v{S+i}\n"
    s += mf(O, Vp+4, P+4, O)
    if reads: s += f"    ds_read_b32 v{KB2}, v2 offset:{off}\n"
    for i in range(0, 2):
        s += f"    v_cvt_pk_bf16_f32 v{P+i}, v{S+2*i}, v{S+2*i+1}\n"
    for i in range(4, 8):
        s += f"    v_exp_f32 v{S+i}, v{S+i}\n"
    s += mf(Snext, KB, 108, Snext)
    if reads: s += f"    ds_read_b128 v[{Vp}:{Vp+3}], v3 offset:{off}\n"
    for i in range(2, 4):
        s += f"    v_cvt_pk_bf16_f32 v{P+i}, v{S+2*i}, v{S+2*i+1}\n"
    for i in range(8, 12):
        s += f"    v_exp_f32 v{S+i}, v{S+i}\n"
    s += "    s_waitcnt lgkmcnt(3)\n" if reads else ""
    s += mf(O, V, P, O)
    if reads: s += f"    ds_read_b128 v[{Vp+4}:{Vp+7}], v3 offset:{off+608}\n"
    for i in range(4, 6):
        s += f"    v_cvt_pk_bf16_f32 v{P+i}, v{S+2*i}, v{S+2*i+1}\n"
    s += extra
    for i in range(12, 16):
        s += f"    v_exp_f32 v{S+i}, v{S+i}\n"
    for i in range(6, 8):
        s += f"    v_cvt_pk_bf16_f32 v{P+i}, v{S+2*i}, v{S+2*i+1}\n"
    return s
init2 = init + """
    v_and_b32 v4, 63, v0
    v_lshlrev_b32 v1, 4, v4
    v_and_b32 v2, 31, v0
    v_lshlrev_b32 v2, 2, v2
    v_add_u32 v2, 1024, v2
    v_and_b32 v3, 31, v0
    v_min_u32 v3, 18, v3
    v_lshlrev_b32 v3, 4, v3
    v_lshrrev_b32 v4, 5, v4
    v_mul_u32_u24 v4, 304, v4
    v_add_u32 v3, v3, v4
    v_add_u32 v3, 1152, v3
    v_lshlrev_b32 v5, 4, v0
    v_mov_b32 v8, 0
    v_mov_b32 v9, 0
    v_mov_b32 v10, 0
    v_mov_b32 v11, 0
""" + "".join(f"    ds_write_b128 v5, v[8:11] offset:{i*4096}\n" for i in range(12)) + "    s_waitcnt lgkmcnt(0)\n" + "".join(f"    v_mov_b32 v{r}, 0\n" for r in range(112, 128))
def body(n, **kw):
    return "".join(tile(8 if (t&1)==0 else 24, 24 if (t&1)==0 else 8, t, **kw) for t in range(n))
make("a2_noreads_64x2.s", body(64, reads=False), 2, 256, init=init2, lds=65536, nv=160)
make("a2_reads_64x2.s", body(64), 2, 256, init=init2, lds=65536, nv=160)
make("a2_reads_128x1.s", body(128), 1, 256, init=init2, lds=65536, nv=160)
make("a2_reads_16x8.s", body(16), 8, 256, init=init2, lds=65536, nv=160)
ex = "    buffer_load_dwordx4 v[128:131], v5, s[12:15], 0 offen\n    v_mfma_f32_16x16x32_bf16 v[132:135], v[136:139], v[140:143], v[132:135]\n"
make("a2_reads_ex_64x2.s", body(64, extra=ex), 2, 256, init=init2, lds=65536, nv=160)
ex = "    buffer_load_dwordx4 v[128:131], v5, s[12:15], 0 offen\n    buffer_load_dwordx4 v[144:147], v5, s[12:15], 0 offen offset:1024\n"
make("a2_reads_ex2_64x2.s", body(64, extra=ex), 2, 256, init=init2, lds=65536, nv=160)
```

```python
import sys
HDR = """; @launch grid=({grid},1,1) block=({block},1,1) lds={lds}
.amdgcn_target "amdgcn-amd-amdhsa--gfx950"
.text
.globl bench_kernel
.p2align 8
.type bench_kernel,@function
bench_kernel:
    s_load_dwordx2 s[4:5], s[0:1], 0
    s_load_dwordx2 s[6:7], s[0:1], 8
    s_waitcnt lgkmcnt(0)
    s_mov_b32 s8, s6
    s_mov_b32 s9, s7
    s_mov_b32 s10, 0x400000
    s_mov_b32 s11, 0x00020000
    s_mov_b32 s12, s4
    s_mov_b32 s13, s5
    s_mov_b32 s14, 0x4000000
    s_mov_b32 s15, 0x00020000
"""
TAIL = """
    s_memtime s[22:23]
    s_waitcnt lgkmcnt(0)
    s_sub_u32 s22, s22, s20
    v_lshrrev_b32 v1, 6, v0
    s_mul_i32 s3, s2, {wpb}
    v_add_u32 v1, s3, v1
    v_lshlrev_b32 v1, 2, v1
    v_mov_b32 v2, s22
    buffer_store_dword v2, v1, s[8:11], 0 offen
    s_waitcnt vmcnt(0)
    s_endpgm
.section .rodata,"a"
.p2align 6
.amdhsa_kernel bench_kernel
  .amdhsa_next_free_vgpr {nv}
  .amdhsa_next_free_sgpr 64
  .amdhsa_accum_offset {acc}
  .amdhsa_group_segment_fixed_size 0
  .amdhsa_kernarg_size 16
  .amdhsa_user_sgpr_count 2
  .amdhsa_user_sgpr_kernarg_segment_ptr 1
  .amdhsa_system_sgpr_workgroup_id_x 1
.end_amdhsa_kernel
"""
def make(name, body, iters, block, grid=256, lds=0, nv=128, init=""):
    s = HDR.format(grid=grid, block=block, lds=lds)
    for r in range(4, min(nv,256)):
        s += f"    v_mov_b32 v{r}, 0.5\n"
    s += init
    s += "    s_barrier\n    s_memtime s[20:21]\n    s_waitcnt lgkmcnt(0)\n"
    s += f"    s_mov_b32 s16, {iters}\n.p2align 6\nL_loop:\n"
    s += body
    s += "    s_sub_u32 s16, s16, 1\n    s_cmp_lg_u32 s16, 0\n    s_cbranch_scc1 L_loop\n"
    s += TAIL.format(wpb=block // 64, nv=nv, acc=min(nv,256))
    open(name, "w").write(s)

if __name__ == "__main__":
    for block in (256, 512, 1024):
        b = "".join(f"    v_exp_f32 v{8+i}, v{40+i}\n" for i in range(32))
        make(f"exp_{block}.s", b, 100, block)
        b = "".join(f"    v_fma_f32 v{8+i}, v{40+i}, v{40+i}, v{72+i}\n" for i in range(32))
        make(f"fma_{block}.s", b, 100, block)
        b = "".join(f"    v_cvt_pk_bf16_f32 v{8+i}, v{40+i}, v{72+i}\n" for i in range(32))
        make(f"cvt_{block}.s", b, 100, block)
        b = "".join(f"    v_pk_fma_f32 v[{8+2*i}:{9+2*i}], v[{40+2*i}:{41+2*i}], v[{40+2*i}:{41+2*i}], v[{72+2*i}:{73+2*i}]\n" for i in range(16)) * 2
        make(f"pkfma_{block}.s", b, 100, block)
        b = "".join(f"    v_mul_f32 v{8+i}, v{40+i}, v{72+i}\n" for i in range(32))
        make(f"mul_{block}.s", b, 100, block)
        b = "".join(f"    v_exp_f16 v{8+i}, v{40+i}\n" for i in range(32))
        make(f"exph_{block}.s", b, 100, block)
        b = "".join(f"    v_exp_f32 v{8+i}, v{40+i}\n    v_mul_f32 v{24+i}, v{56+i}, v{72+i}\n" for i in range(16))
        make(f"expmul_{block}.s", b, 100, block)
```

```python
from gen_valu import make
from gen_attn2 import *
make("a3_reads_16x4_512.s", body(16), 4, 512, init=init2, lds=65536, nv=160)
make("a3_reads_8x8_512.s", body(8), 8, 512, init=init2, lds=65536, nv=160)
make("a3_reads_4x16_512.s", body(4), 16, 512, init=init2, lds=65536, nv=160)
make("a3_noreads_16x4_512.s", body(16, reads=False), 4, 512, init=init2, lds=65536, nv=160)
ex = "    buffer_load_dwordx4 v[128:131], v5, s[12:15], 0 offen\n    v_mfma_f32_16x16x32_bf16 v[132:135], v[136:139], v[140:143], v[132:135]\n"
make("a3_reads_ex_16x4_512.s", body(16, extra=ex), 4, 512, init=init2, lds=65536, nv=160)
ex = "    buffer_load_dwordx4 v[128:131], v5, s[12:15], 0 offen\n    buffer_load_dwordx4 v[144:147], v5, s[12:15], 0 offen offset:1024\n"
make("a3_reads_ex2_16x4_512.s", body(16, extra=ex), 4, 512, init=init2, lds=65536, nv=160)
make("a3_reads_8x4_1024.s", body(8), 4, 1024, init=init2, lds=65536, nv=128)
import re
def move_after_exp(s):
    lines = s.split("\n")
    out = []
    pend = []
    for ln in lines:
        if ln.strip().startswith("ds_read"):
            pend.append(ln); continue
        out.append(ln)
        if pend and ln.strip().startswith("v_exp"):
            out += pend; pend = []
    return "\n".join(out)
make("a3_reads_afterexp_64x2.s", move_after_exp(body(64)), 2, 256, init=init2, lds=65536, nv=160)
```

```python
from gen_valu import HDR
TAIL = """
    s_memtime s[22:23]
    s_memrealtime s[26:27]
    s_waitcnt lgkmcnt(0)
    s_sub_u32 s22, s22, s20
    s_sub_u32 s26, s26, s24
    v_lshrrev_b32 v1, 6, v0
    s_mul_i32 s3, s2, {wpb}
    v_add_u32 v1, s3, v1
    v_lshlrev_b32 v1, 2, v1
    v_mov_b32 v2, s22
    v_mov_b32 v3, s26
    buffer_store_dword v2, v1, s[8:11], 0 offen
    s_mov_b32 s3, 0x10000
    buffer_store_dword v3, v1, s[8:11], s3 offen
    s_waitcnt vmcnt(0)
    s_endpgm
.section .rodata,"a"
.p2align 6
.amdhsa_kernel bench_kernel
  .amdhsa_next_free_vgpr 256
  .amdhsa_next_free_sgpr 64
  .amdhsa_accum_offset 256
  .amdhsa_group_segment_fixed_size 0
  .amdhsa_kernarg_size 16
  .amdhsa_user_sgpr_count 2
  .amdhsa_user_sgpr_kernarg_segment_ptr 1
  .amdhsa_system_sgpr_workgroup_id_x 1
.end_amdhsa_kernel
"""
def m32(d, a, b): return f"    v_mfma_f32_32x32x16_bf16 v[{d}:{d+15}], v[{a}:{a+3}], v[{b}:{b+3}], v[{d}:{d+15}]\n"
def m16(d, a, b): return f"    v_mfma_f32_16x16x32_bf16 v[{d}:{d+3}], v[{a}:{a+3}], v[{b}:{b+3}], v[{d}:{d+3}]\n"
def make(name, body, iters, block=256, pre=""):
    s = HDR.format(grid=256, block=block, lds=81920)
    s += "    v_lshlrev_b32 v4, 4, v0\n    v_and_b32 v5, 63, v0\n    v_lshlrev_b32 v5, 4, v5\n"
    s += "    s_mov_b32 s17, 0\n"
    for r in range(72, 256, 4):
        s += f"    buffer_load_dwordx4 v[{r}:{r+3}], v4, s[12:15], s17 offen\n    s_add_u32 s17, s17, {block*16}\n"
    s += "    s_waitcnt vmcnt(0)\n"
    for i in range(73728 // (block*16)):
        r = 72 + 4*i
        s += f"    ds_write_b128 v4, v[{r}:{r+3}]\n    v_add_u32 v4, {block*16}, v4\n"
    for r in range(8, 72): s += f"    v_mov_b32 v{r}, 0\n"
    s += """
    s_and_b32 s17, s2, 7
    s_mul_i32 s17, s17, 1327104
    v_lshrrev_b32 v1, 6, v0
    s_nop 1
    v_readfirstlane_b32 s18, v1
    s_nop 3
    s_mul_i32 s18, s18, %d
    s_add_u32 s17, s17, s18
    v_add_u32 v6, 36864, v5
""" % (1327104 // (block // 64))
    s += pre
    s += "    s_waitcnt lgkmcnt(0)\n    s_barrier\n    s_memtime s[20:21]\n    s_memrealtime s[24:25]\n    s_waitcnt lgkmcnt(0)\n"
    s += f"    s_mov_b32 s16, {iters}\n.p2align 6\nL_loop:\n" + body
    s += "    s_sub_u32 s16, s16, 1\n    s_cmp_lg_u32 s16, 0\n    s_cbranch_scc1 L_loop\n    s_waitcnt vmcnt(0) lgkmcnt(0)\n"
    s += TAIL.format(wpb=block // 64)
    open(name, "w").write(s)
b = "".join(m32(8 + 16*(k&1), 72 + 4*((k>>1) % 9), 112 + 4*(k % 36)) for k in range(72))
make("pw_r32.s", b, 9)
b = ""
for k in range(18):
    for i in range(2):
        for j in range(4):
            b += m16(8 + 4*(i*4+j), 72 + 4*((2*k+i) % 9), 112 + 4*((4*k+j) % 36))
make("pw_r16.s", b, 9)
def full(lds=True, stream=True, shape=32):
    b = ""
    for ks in range(36):
        w = []
        if stream: w.append("vmcnt(8)")
        if lds: w.append("lgkmcnt(4)")
        if w: b += "    s_waitcnt " + " ".join(w) + "\n"
        A = 72 + 4*(ks % 9); B = (112 + 8*(ks % 3)) if lds else (112 + 8*(ks % 18))
        b += m32(8, A, B) + m32(24, A, B + 4)
        if stream:
            b += f"    buffer_load_dwordx4 v[{A}:{A+3}], v5, s[12:15], s17 offen offset:{(ks%3)*1024}\n"
            if ks % 3 == 2: b += "    s_add_u32 s17, s17, 3072\n"
        if lds:
            b += f"    ds_read_b128 v[{B}:{B+3}], v5 offset:{((ks+3)%36)*1024}\n    ds_read_b128 v[{B+4}:{B+7}], v6 offset:{((ks+3)%36)*1024}\n"
    return b
make("pw_full_4w.s", full(), 9)
make("pw_nolds_4w.s", full(lds=False), 9)
make("pw_nostream_4w.s", full(stream=False), 9)
make("pw_full_8w.s", full(), 4, block=512)
def full16(lds=True, stream=True):
    b = ""
    for ks in range(18):
        w = []
        if stream: w.append("vmcnt(10)")
        if lds: w.append("lgkmcnt(8)")
        if w: b += "    s_waitcnt " + " ".join(w) + "\n"
        A = 72 + 8*(ks % 6); B = (120 + 16*(ks % 3)) if lds else (120 + 16*(ks % 8))
        for i in range(2):
            for j in range(4):
                b += m16(8 + 4*(i*4+j), A + 4*i, B + 4*j)
        if stream:
            b += f"    buffer_load_dwordx4 v[{A}:{A+3}], v5, s[12:15], s17 offen\n"
            b += f"    buffer_load_dwordx4 v[{A+4}:{A+7}], v5, s[12:15], s17 offen offset:1024\n"
            b += "    s_add_u32 s17, s17, 2048\n"
        if lds:
            for j in range(4):
                b += f"    ds_read_b128 v[{B+4*j}:{B+4*j+3}], v{5 + (j>>1)} offset:{((ks+3)%18)*2048 + (j&1)*1024}\n"
    return b
make("pw_full16_4w.s", full16(), 9)
make("pw_nolds16_4w.s", full16(lds=False), 9)
make("pw_full16_8w.s", full16(), 4, block=512)
def full22():
    b = ""
    for ks in range(18):
        b += "    s_waitcnt vmcnt(10) lgkmcnt(4)\n"
        A = 72 + 8*(ks % 6); B = 120 + 8*(ks % 3)
        b += m32(8, A, B) + m32(24, A, B + 4) + m32(40, A + 4, B) + m32(56, A + 4, B + 4)
        b += f"    buffer_load_dwordx4 v[{A}:{A+3}], v5, s[12:15], s17 offen\n"
        b += f"    buffer_load_dwordx4 v[{A+4}:{A+7}], v5, s[12:15], s17 offen offset:1024\n"
        b += "    s_add_u32 s17, s17, 2048\n"
        b += f"    ds_read_b128 v[{B}:{B+3}], v5 offset:{((ks+3)%36)*1024}\n    ds_read_b128 v[{B+4}:{B+7}], v6 offset:{((ks+3)%36)*1024}\n"
    return b
make("pw_full22_4w.s", full22(), 9)
```

```python
import re

TRANS = ("v_exp_f32", "v_log_f32", "v_rcp_f32", "v_rsq_f32", "v_sqrt_f32", "v_sin_f32", "v_cos_f32")

def _regs(tok):
    tok = tok.strip()
    tok = re.sub(r"^-", "", tok)
    m = re.match(r"^abs\((.*)\)$", tok)
    if m: tok = m.group(1)
    tok = tok.strip("|")
    m = re.match(r"^([vsa])(\d+)$", tok)
    if m: return [(m.group(1), int(m.group(2)))]
    m = re.match(r"^([vsa])\[(\d+):(\d+)\]$", tok)
    if m: return [(m.group(1), i) for i in range(int(m.group(2)), int(m.group(3)) + 1)]
    if tok in ("vcc", "exec", "m0", "scc"): return [(tok, 0)]
    if tok in ("vcc_lo", "vcc_hi"): return [("vcc", 0)]
    if tok in ("exec_lo", "exec_hi"): return [("exec", 0)]
    return []

class Ins:
    def __init__(self, text):
        self.text = text
        t = text.split(";")[0].strip()
        self.is_label = t.endswith(":")
        self.is_dir = t.startswith(".")
        self.op = ""
        self.w = []; self.r = []
        self.srcC = []; self.srcAB = []
        self.kind = "other"
        self.passes = 0
        self.states = 1
        if not t or self.is_label or self.is_dir:
            self.states = 0
            self.kind = "label" if self.is_label else "none"
            return
        parts = t.split(None, 1)
        op = parts[0]; self.op = op
        rest = parts[1] if len(parts) > 1 else ""
        ops = [o.strip() for o in rest.split(",")] if rest else []
        mods = ""
        if ops:
            lp = ops[-1].split(None, 1)
            ops[-1] = lp[0]
            mods = lp[1] if len(lp) > 1 else ""
        self.mods = mods
        R = [_regs(o) for o in ops]
        flat = lambda L: [x for l in L for x in l]
        if op == "s_nop":
            self.kind = "nop"; self.states = int(ops[0], 0) + 1
        elif op.startswith("v_mfma"):
            self.kind = "mfma"
            self.passes = 8 if "32x32x16" in op else (4 if "16x16x32" in op else 16)
            self.w = R[0]; self.srcAB = R[1] + R[2]; self.srcC = R[3]; self.r = self.srcAB + self.srcC
        elif op.startswith("v_cmp"):
            self.kind = "valu"; self.w = R[0]; self.r = flat(R[1:])
        elif op.startswith("v_readfirstlane") or op.startswith("v_readlane"):
            self.kind = "valu"; self.w = R[0]; self.r = flat(R[1:])
        elif op.startswith("v_permlane") and "swap" in op:
            self.kind = "valu"; self.w = R[0] + R[1]; self.r = R[0] + R[1]
        elif op.startswith("v_"):
            self.kind = "valu"
            self.w = R[0]; self.r = flat(R[1:])
            if op.startswith("v_add_co") or op.startswith("v_sub_co") or op.startswith("v_addc_co"):
                self.w = R[0] + R[1]; self.r = flat(R[2:])
            if op.startswith("v_fmac") or op.startswith("v_dot2c") or "dpp" in op or "row_" in mods or "quad_perm" in mods:
                self.r = self.r + R[0]
        elif op.startswith("buffer_load") or op.startswith("global_load"):
            self.kind = "vmem"
            if re.search(r"\blds\b", mods):
                self.r = flat(R) + [("m0", 0)]; self.kind = "vmem_lds"
            else:
                self.w = R[0]; self.r = flat(R[1:])
                if "d16" in op: self.r = self.r + R[0]
        elif op.startswith("buffer_store") or op.startswith("global_store") or op.startswith("buffer_atomic") or op.startswith("global_atomic"):
            self.kind = "vmem_st"; self.r = flat(R)
            self.wide = ("x3" in op or "x4" in op)
            self.data = R[0] if op.startswith("buffer") else R[1]
            if "atomic" in op and "sc0" in mods: self.w = R[0]
        elif op.startswith("ds_"):
            self.kind = "ds"
            if op.startswith("ds_read") or op.startswith("ds_bpermute") or op.startswith("ds_swizzle") or "rtn" in op:
                self.w = R[0]; self.r = flat(R[1:])
            else:
                self.r = flat(R)
        elif op.startswith("s_"):
            self.kind = "salu"
            if op.startswith("s_cmp") or op.startswith("s_bitcmp") or op.startswith("s_cbranch") or op in ("s_branch", "s_waitcnt", "s_barrier", "s_endpgm", "s_setprio", "s_sleep", "s_setpc_b64"):
                self.r = flat(R)
            else:
                self.w = R[0] if R else []; self.r = flat(R[1:])
                if "saveexec" in op: self.w = self.w + [("exec", 0)]
        self.is_trans = op in TRANS or op.replace("_e32", "").replace("_e64", "") in TRANS
        self.is_dpp = self.kind == "valu" and ("dpp" in op or "row_" in mods or "quad_perm" in mods)
        self.is_dot = op.startswith("v_dot")

def need(p, c):
    n = 0
    pw = set(p.w); cr = set(c.r); cw = set(c.w)
    pv = {x for x in pw if x[0] in "va" and len(x[0]) == 1}
    ps = {x for x in pw if x[0] == "s" or x[0] == "vcc"}
    if p.kind == "valu":
        if c.kind == "mfma" and pv & cr: n = max(n, 2)
        if p.is_trans and c.kind != "nop" and pv & cr and not (c.kind == "valu" and c.is_trans): n = max(n, 1)
        if c.kind == "valu":
            if c.op.startswith("v_permlane") and pv & cr: n = max(n, 2)
            if c.is_dpp and pv & cr: n = max(n, 2)
            if (c.op.startswith("v_readfirstlane") or c.op.startswith("v_readlane")) and pv & cr: n = max(n, 1)
            implicit = {("vcc", 0)} if (c.op.startswith("v_cndmask") or c.op.startswith("v_addc")) else set()
            if ps & (cr | implicit): n = max(n, 4 if c.op.startswith("v_readlane") or c.op.startswith("v_writelane") else 2)
            if p.is_dot and (pv & (cr | cw)) and not (c.op == p.op and not (pv & set(c.r[:-1]))): n = max(n, 3)
        elif p.is_dot and pv & cr: n = max(n, 3)
        if c.kind in ("vmem", "vmem_lds", "vmem_st") and ps & cr: n = max(n, 5)
        if c.kind == "salu" and ps & cr: n = max(n, 1)
        if ("exec", 0) in pw: n = max(n, 5) if c.kind in ("valu", "mfma") else n
    if p.kind == "mfma":
        big = {4: 8, 8: 12, 16: 20}[p.passes]
        if c.kind == "mfma":
            if pw & set(c.srcAB): n = max(n, big)
            if pw & set(c.srcC):
                if not (p.w == c.srcC and p.passes == c.passes): n = max(n, big - 2)
            elif pw & cw:
                n = max(n, big)
        elif c.kind in ("valu", "vmem", "vmem_lds", "vmem_st", "ds"):
            if pw & (cr | cw): n = max(n, big)
            if c.kind == "valu" and set(p.srcC) & cw: n = max(n, {4: 3, 8: 7, 16: 15}[p.passes])
            if c.kind in ("vmem", "ds") and set(p.srcC) & cw: n = max(n, {4: 3, 8: 7, 16: 15}[p.passes])
    if p.kind == "salu":
        if ("m0", 0) in pw and c.kind == "vmem_lds": n = max(n, 1)
    if p.kind == "vmem_st" and getattr(p, "wide", False):
        if set(p.data) & cw: n = max(n, 2 if c.kind in ("valu", "mfma") else 1)
    return n

class Asm:
    def __init__(self):
        self.lines = []
    def __call__(self, text, *a):
        for ln in text.split("\n"):
            if ln.strip():
                self.lines.append(ln.strip())
    def label(self, name):
        self.lines.append(name + ":")
    def raw(self, text):
        self.lines.append(text)
    def finish(self, verbose=False):
        ins = [Ins(l) for l in self.lines]
        out = []
        added = 0
        WIN = 22
        for c in ins:
            if c.states > 0 and c.kind != "nop":
                dist = 0; req = 0
                for p in reversed(out):
                    if p.states == 0: continue
                    if p.op in ("s_endpgm", "s_branch", "s_setpc_b64"): break
                    nn = need(p, c) - dist
                    if nn > req: req = nn; why = p
                    dist += p.states
                    if dist > WIN: break
                if req > 0:
                    if verbose: print("pad %d before [%s] due to [%s]" % (req, c.text, why.text))
                    while req > 0:
                        k = min(req, 16)
                        out.append(Ins("s_nop %d" % (k - 1))); req -= k; added += 1
            out.append(c)
        labels = {i.text.split(";")[0].strip()[:-1]: k for k, i in enumerate(out) if i.is_label}
        for k, b in enumerate(out):
            if b.op.startswith("s_cbranch") or b.op == "s_branch" or b.op == "s_call_b64":
                tgt = b.text.split(";")[0].split()[-1]
                if tgt not in labels: continue
                pre = [p for p in out[max(0, k - 40):k + 1] if p.states > 0]
                post = [q for q in out[labels[tgt]:labels[tgt] + 40] if q.states > 0]
                d2 = 0
                for q in post:
                    if q.kind != "nop":
                        dist = d2
                        for p in reversed(pre):
                            if need(p, q) > dist:
                                raise RuntimeError("hazard across branch %s: [%s] -> [%s] dist %d" % (b.text, p.text, q.text, dist))
                            dist += p.states
                            if dist > WIN: break
                    d2 += q.states
                    if d2 > WIN: break
        txt = []
        for i in out:
            t = i.text
            txt.append(t if (i.is_label or i.is_dir) else "    " + t)
        return "\n".join(txt) + "\n"

def v(a, n=1):
    return f"v{a}" if n == 1 else f"v[{a}:{a+n-1}]"
def s(a, n=1):
    return f"s{a}" if n == 1 else f"s[{a}:{a+n-1}]"
```

```python
import os
from asmlib import *
from layout import *

def srd(a, d, base, nbytes):
    a(f"s_mov_b32 s{d}, s{base}")
    a(f"s_and_b32 s{d+1}, s{base+1}, 0xffff")
    a(f"s_mov_b32 s{d+2}, {nbytes}")
    a(f"s_mov_b32 s{d+3}, 0x00020000")

def sigma_v(a, dst, src, t1, t2):
    a(f"v_and_b32 v{t1}, 4, v{src}")
    a(f"v_and_b32 v{t2}, 8, v{src}")
    a(f"v_and_b32 v{dst}, 0x13, v{src}")
    a(f"v_lshl_or_b32 v{dst}, v{t1}, 1, v{dst}")
    a(f"v_lshrrev_b32 v{t2}, 1, v{t2}")
    a(f"v_or_b32 v{dst}, v{dst}, v{t2}")

def sdiv(a, q, r, x, c, t):
    magic = -(-(1 << 32) // c)
    a(f"s_mov_b32 s{t}, {magic}")
    a(f"s_mul_hi_u32 s{q}, s{x}, s{t}")
    a(f"s_mul_i32 s{t}, s{q}, {c}")
    a(f"s_sub_u32 s{r}, s{x}, s{t}")

def kernel_head(a, name):
    a.raw(".p2align 8")
    a.raw(f".globl {name}")
    a.raw(f".type {name},@function")
    a.label(name)

def descriptor(name, nv, ns=102):
    acc = (min(nv, 256) + 3) // 4 * 4
    return f""".p2align 6
.amdhsa_kernel {name}
  .amdhsa_next_free_vgpr {nv}
  .amdhsa_next_free_sgpr {102 if os.environ.get("PROF", "0") == "1" else ns}
  .amdhsa_accum_offset {acc}
  .amdhsa_group_segment_fixed_size 0
  .amdhsa_kernarg_size 104
  .amdhsa_user_sgpr_count 2
  .amdhsa_user_sgpr_kernarg_segment_ptr 1
  .amdhsa_system_sgpr_workgroup_id_x 1
.end_amdhsa_kernel
"""

def mfma32(a, d, A, B, C):
    c = "0" if C is None else v(C, 16)
    a(f"v_mfma_f32_32x32x16_bf16 {v(d,16)}, {v(A,4)}, {v(B,4)}, {c}")
def mfma16(a, d, A, B, C):
    c = "0" if C is None else v(C, 4)
    a(f"v_mfma_f32_16x16x32_bf16 {v(d,4)}, {v(A,4)}, {v(B,4)}, {c}")

def fbits(x):
    import struct
    return "0x%08x" % struct.unpack("<I", struct.pack("<f", x))[0]

def csel(a, d, x, y):
    a(f"s_mov_b32 s{d}, {y}")
    a(f"s_cmov_b32 s{d}, {x}")

def interleave(main, fill):
    out = []
    n, m = len(main), len(fill)
    j = 0
    for i, x in enumerate(main):
        out.append(x)
        want = (i + 1) * m // n
        while j < want:
            out.append(fill[j]); j += 1
    out += fill[j:]
    return out

class Lst(list):
    def __call__(self, text):
        for ln in text.split("\n"):
            if ln.strip(): self.append(ln.strip())

import os
PROF = os.environ.get("PROF", "0") == "1"
WS_PROF = 64 << 20
SV = 0
def stamp(a, i):
    if not PROF: return
    a("s_memtime s[98:99]")
    a("s_waitcnt lgkmcnt(0)")
    a(f"v_writelane_b32 v{STAMPV[0]}, s98, {i}")
def stamp_rt(a, i):
    if not PROF: return
    a("s_memrealtime s[98:99]")
    a("s_waitcnt lgkmcnt(0)")
    a(f"v_writelane_b32 v{STAMPV[0]}, s98, {i}")
STAMPV = [0]
def stamp_first(a):
    if not PROF: return
    a("s_memrealtime s[94:95]")
    a("s_memtime s[96:97]")
def stamp_init(a, vreg):
    STAMPV[0] = vreg
    if not PROF: return
    a("s_waitcnt lgkmcnt(0)")
    a(f"v_mov_b32 v{vreg}, 0")
    a(f"v_writelane_b32 v{vreg}, s96, 0")
    a(f"v_writelane_b32 v{vreg}, s94, 62")
def stamp_dump(a, kidx, vlane=1, wsp=12):
    if not PROF: return
    a("s_mov_b64 exec, -1")
    a("s_waitcnt vmcnt(0)")
    stamp(a, 61); stamp_rt(a, 63)
    a(f"s_mov_b32 s88, s{wsp}")
    a(f"s_and_b32 s89, s{wsp+1}, 0xffff")
    a(f"s_mov_b32 s90, {WS_PROF + (8 << 20)}")
    a("s_mov_b32 s91, 0x00020000")
    a(f"s_add_u32 s92, s2, {kidx*256}")
    a("s_lshl_b32 s92, s92, 4")
    a("s_add_u32 s92, s92, s3")
    a("s_lshl_b32 s92, s92, 8")
    a(f"s_add_u32 s92, s92, {WS_PROF}")
    a(f"v_lshlrev_b32 v{vlane}, 2, v{vlane}")
    a(f"buffer_store_dword v{STAMPV[0]}, v{vlane}, s[88:91], s92 offen")
    a("s_waitcnt vmcnt(0)")
```

```python
from common import *
from k_pack import *
import math

MAPPING = os.environ.get("MAPPING", "A")
VZERO = os.environ.get("VZERO", "1") == "1"
WMOD = os.environ.get("WMOD", "sc1")
PKGELU = os.environ.get("PKGELU", "0") == "1"
PACE = int(os.environ.get("PACE", "1"))
DBG = int(os.environ.get("DBG", "0"))
YMOD = os.environ.get("YMOD", "")
NOGELU = os.environ.get("NOGELU", "0") == "1"
LDS_MAIN = 163840
L_OS = KV_BYTES
L_CP = L_OS + 8 * 608
L_ST = L_CP + 6144
L_CNT = L_ST + 512
L_Y = 0; L_H = 73728; L_B1 = 147456; L_B1D = L_B1 + 2304; L_HH = L_B1 + 4608
assert L_HH + 9216 <= L_ST and L_CNT + 16 <= LDS_MAIN
WS_, XS_ = 32, 36
KA_, KR_, VA_ = 2, 3, 4
Q2POS = {2: 10, 0: 12, 3: 14, 1: 16}; QX = (12, 17)
Q1 = 20; SB = (24, 40); P = 56; O = 64; KB = (80, 84); KRB = (88, 92); VB = (96, 104)
TPI = 16
CI = 16; AR = 28; ACC = 136; BR = 184; GT = 232
RDS = 9
WSR = 64
C0 = -2.0 * 0.7978845608028654 * math.log2(math.e)
C1 = C0 * 0.044715
POLL_MAX = 1 << 20

def koff(t): return (t >> 2) * KV_BLK + (t & 3) * 1024
def kroff(blk): return blk * KV_BLK
def voff(t, mf): return (t >> 2) * KV_BLK + (t & 3) * 1216 + mf * 608

def tile(a, t, bg=None, nbg=0):
    Sc = SB[t & 1]; Sn = SB[(t + 1) & 1]
    def B(k):
        while bg and k > 0:
            x = bg.pop(0); a(x)
            if not x.startswith("s_"): k -= 1
    ex = lambda i: a(f"v_exp_f32 v{Sc+i}, v{Sc+i}")
    cv = lambda i: a(f"v_cvt_pk_bf16_f32 v{P+i}, v{Sc+2*i}, v{Sc+2*i+1}")
    a(f"s_waitcnt lgkmcnt({2 if (t & 3) == 2 else 1})")
    mfma32(a, Sn, KB[(t + 1) & 1], Q1, None)
    a(f"ds_read_b128 {v(VB[(t+1) & 1],4)}, v{VA_} offset:{voff(t+1,0)}")
    for i in range(0, 4): ex(i)
    mfma32(a, O, VB[(t + 1) & 1] + 4, P + 4, O)
    a(f"ds_read_b128 {v(VB[(t+1) & 1]+4,4)}, v{VA_} offset:{voff(t+1,1)}")
    cv(0); cv(1)
    for i in range(4, 8): ex(i)
    mfma32(a, Sn, KRB[((t + 1) >> 2) & 1], Q2POS[(t + 1) & 3], Sn)
    a(f"ds_read_b128 {v(KB[(t+1) & 1],4)}, v{KA_} offset:{koff(t+3)}")
    cv(2); cv(3)
    for i in range(8, 12): ex(i)
    mfma32(a, O, VB[t & 1], P, O)
    if (t & 3) == 1:
        a(f"ds_read_b128 {v(KRB[((t>>2)+1) & 1],4)}, v{KR_} offset:{kroff((t>>2)+1)}")
    cv(4); cv(5)
    for i in range(12, 16): ex(i)
    cv(6); cv(7)

def pipe_start(a):
    a(f"ds_read_b128 {v(KB[0],4)}, v{KA_} offset:{koff(0)}")
    a(f"ds_read_b128 {v(KRB[0],4)}, v{KR_} offset:{kroff(0)}")
    a(f"ds_read_b128 {v(KB[1],4)}, v{KA_} offset:{koff(1)}")
    a(f"ds_read_b128 {v(VB[0],4)}, v{VA_} offset:{voff(0,0)}")
    a(f"ds_read_b128 {v(VB[0]+4,4)}, v{VA_} offset:{voff(0,1)}")
    a("s_waitcnt lgkmcnt(3)")
    mfma32(a, SB[0], KB[0], Q1, None)
    mfma32(a, SB[0], KRB[0], Q2POS[0], SB[0])
    a(f"ds_read_b128 {v(KB[0],4)}, v{KA_} offset:{koff(2)}")
    a("s_nop 10")

def wo0_loads(a, sx, vl):
    b = 112 + (sx % 4) * 36
    for t in range(9):
        if t == 4 or t == 8: a("s_add_u32 s61, s61, 4096")
        a(f"buffer_load_dwordx4 {v(b+4*t,4)}, v{vl}, {s(WS_,4)}, s61 offen offset:{(t%4)*1024}")
    a(f"s_add_u32 s61, s61, {36*1024 - 8192}")

def lds_poll(a, tag, vaddr, vtmp, thr):
    a(f"s_mov_b32 s49, {POLL_MAX}")
    a.label(f"L_{tag}")
    a(f"ds_read_b32 v{vtmp}, v{vaddr}")
    a("s_waitcnt lgkmcnt(0)")
    a(f"v_readfirstlane_b32 s47, v{vtmp}")
    a("s_sub_u32 s49, s49, 1")
    a(f"s_cbranch_scc1 L_{tag}_ok")
    a(f"s_cmp_ge_u32 s47, {thr}")
    a(f"s_cbranch_scc1 L_{tag}_ok")
    a("s_sleep 2")
    a(f"s_branch L_{tag}")
    a.label(f"L_{tag}_ok")

def flag_poll(a, tag, vaddr, vtmp, s_off, width, sleep=1):
    a(f"s_mov_b32 s49, {POLL_MAX}")
    a.label(f"L_{tag}")
    if width == 1:
        a(f"buffer_load_dword v{vtmp}, v{vaddr}, {s(WS_,4)}, s{s_off} offen sc1")
    else:
        a(f"buffer_load_dwordx2 {v(vtmp,2)}, v{vaddr}, {s(WS_,4)}, s{s_off} offen sc1")
    a("s_waitcnt vmcnt(0)")
    if width == 2: a(f"v_min_u32 v{vtmp}, v{vtmp}, v{vtmp+1}")
    a(f"v_cmp_eq_u32 vcc, 0, v{vtmp}")
    a("s_sub_u32 s49, s49, 1")
    a(f"s_cbranch_scc1 L_{tag}_ok")
    a("s_nop 1")
    a("s_cmp_eq_u64 vcc, 0")
    a(f"s_cbranch_scc1 L_{tag}_ok")
    a(f"s_sleep {sleep}")
    a(f"s_branch L_{tag}")
    a.label(f"L_{tag}_ok")

def flag_store(a, base, vt):
    a("s_lshl_b32 s46, s57, 3")
    a("s_add_u32 s46, s46, s3")
    a("s_lshl_b32 s46, s46, 2")
    a(f"s_add_u32 s46, s46, {base}")
    a(f"v_mov_b32 v{vt}, 0")
    a(f"v_mov_b32 v{vt+1}, 1")
    a("s_mov_b64 exec, 1")
    a(f"buffer_store_dword v{vt+1}, v{vt}, {s(WS_,4)}, s46 offen sc1")
    a("s_mov_b64 exec, -1")

def a_loads(a, step_slot):
    for t in range(3):
        a(f"buffer_load_dwordx4 {v(AR + step_slot*12 + 4*t, 4)}, v2, {s(WSR,4)}, s70 offen offset:{t*1024} {WMOD}")
    a("s_add_u32 s70, s70, 3072")

def prologue(a):
    a(f"s_load_dwordx2 s[4:5], s[0:1], {KA['x']}")
    a(f"s_load_dwordx8 s[16:23], s[0:1], {KA['w1']}")
    a(f"s_load_dwordx2 s[6:7], s[0:1], {KA['out']}")
    a(f"s_load_dwordx2 s[12:13], s[0:1], {KA['ws']}")
    a("v_lshrrev_b32 v7, 6, v0")
    a("v_and_b32 v1, 63, v0")
    a("v_readfirstlane_b32 s3, v7")
    if MAPPING == "A":
        a("s_and_b32 s43, s2, 7")
        a("s_lshr_b32 s56, s2, 3")
    else:
        a("s_and_b32 s43, s2, 3")
        a("s_lshl_b32 s43, s43, 1")
        a("s_bfe_u32 s45, s2, 0x10003")
        a("s_add_u32 s43, s43, s45")
        a("s_lshr_b32 s56, s2, 4")
        a("s_lshl_b32 s56, s56, 1")
        a("s_bfe_u32 s45, s2, 0x10002")
        a("s_add_u32 s56, s56, s45")
    a("s_lshl_b32 s57, s56, 3")
    a("s_add_u32 s57, s57, s43")
    a("s_lshl_b32 s42, s57, 3")
    a("s_and_b32 s40, s3, 3")
    a("s_lshr_b32 s41, s3, 2")
    a("s_movk_i32 s44, 1152")
    a("v_and_b32 v5, 15, v1")
    a("v_mul_u32_u24 v5, 36, v5")
    a("v_bfe_u32 v6, v1, 4, 1")
    a("v_mad_u32_u24 v5, v6, s44, v5")
    a("v_lshrrev_b32 v7, 5, v1")
    a("v_lshl_add_u32 v6, v7, 4, v5")
    a("s_lshl_b32 s45, s40, 1")
    a("s_add_u32 s45, s45, s42")
    a("s_mul_i32 s45, s45, 1152")
    a("s_mul_i32 s46, s41, 576")
    a("s_add_u32 s45, s45, s46")
    a(f"s_add_u32 s45, s45, {WS_Q}")
    a("v_lshlrev_b32 v8, 3, v1")
    a("v_lshlrev_b32 v9, 4, v1")
    a("s_lshl_b32 s47, s3, 10")
    a("s_waitcnt lgkmcnt(0)")
    srd(a, WS_, 12, WS_END)

def attention(a):
    ws = WS_
    a(f"buffer_load_dwordx4 {v(Q1,4)}, v6, {s(ws,4)}, s45 offen")
    a(f"buffer_load_dword v{QX[0]}, v5, {s(ws,4)}, s45 offen offset:32")
    a(f"s_mov_b32 s46, {WS_KMAX}")
    a(f"buffer_load_dwordx4 v[24:27], v9, {s(ws,4)}, s46 offen")
    for i in range(4):
        a(f"s_add_u32 m0, s47, {i*8192}")
        a(f"s_add_u32 s46, s47, {WS_KV + i*8192}")
        a(f"buffer_load_dwordx4 v9, {s(ws,4)}, s46 offen lds")
    srd(a, XS_, 4, S * D * 2)
    a("s_cmp_lg_u32 s41, 0")
    a("s_cbranch_scc0 L_a_nodma")
    a("s_lshl_b32 s47, s40, 10")
    for i in range(29):
        if i == 6:
            a("s_waitcnt vmcnt(3)")
            a("s_barrier")
        a(f"s_add_u32 m0, s47, {32768 + i*4096}")
        a(f"s_add_u32 s46, s47, {WS_KV + 32768 + i*4096}")
        a(f"buffer_load_dwordx4 v9, {s(ws,4)}, s46 offen lds")
    a("s_setprio 3")
    a("s_branch L_a_dmadone")
    a.label("L_a_nodma")
    a("s_setprio 2")
    a.label("L_a_dmadone")
    a(f"v_mov_b32 v{KA_}, v9")
    a(f"v_add_u32 v{KR_}, 4096, v9")
    a(f"v_mov_b32 v8, {4608 + 288}")
    a("v_cmp_gt_u32 s[50:51], 32, v1")
    a(f"v_cndmask_b32 v{KR_}, v8, v{KR_}, s[50:51]")
    a("v_and_b32 v5, 31, v1")
    sigma_v(a, 6, 5, 8, 9)
    if VZERO:
        a("v_mov_b32 v8, 0x8000")
    else:
        a("v_add_u32 v8, -20, v5")
        a("v_cmp_gt_u32 vcc, 8, v8")
        a("v_cndmask_b32 v8, 4, 0, vcc")
    a("v_cmp_lt_u32 vcc, 18, v5")
    a("v_cndmask_b32 v6, v6, v8, vcc")
    a("v_lshlrev_b32 v6, 4, v6")
    a("s_movk_i32 s46, 304")
    a(f"v_mad_u32_u24 v{VA_}, v7, s46, v6")
    a(f"v_add_u32 v{VA_}, 4608, v{VA_}")
    for r in (10, 11, 13, 14, 15, 16, 18, 19): a(f"v_mov_b32 v{r}, 0")
    for r in range(O, O + 16): a(f"v_mov_b32 v{r}, 0")
    for r in range(P + 4, P + 8): a(f"v_mov_b32 v{r}, 0")
    for r in range(VB[1] + 4, VB[1] + 8): a(f"v_mov_b32 v{r}, 0")
    stamp(a, 1)
    a("s_cmp_lg_u32 s41, 0")
    a("s_cbranch_scc1 L_a_qready")
    a(f"v_mov_b32 v8, {L_CNT}")
    a("ds_write_b32 v8, v10")
    a("s_waitcnt vmcnt(4)")
    a.label("L_a_qready")
    a(f"v_dot2_f32_bf16 v5, v{Q1}, v{Q1}, 0")
    for i in range(1, 4):
        a(f"v_dot2_f32_bf16 v5, v{Q1+i}, v{Q1+i}, v5")
    a("v_max_f32 v24, v24, v25")
    a("v_max3_f32 v24, v24, v26, v27")
    for rr in (8, 4, 2, 1):
        a(f"v_max_f32_dpp v24, v24, v24 row_ror:{rr} row_mask:0xf bank_mask:0xf")
    a("v_mov_b32 v25, v24")
    a("v_mov_b32 v6, v5")
    a("v_permlane16_swap_b32 v24, v25")
    a("v_permlane32_swap_b32 v5, v6")
    a("v_max_f32 v24, v24, v25")
    a("v_add_f32 v5, v5, v6")
    a("v_mov_b32 v25, v24")
    a(f"v_dot2_f32_bf16 v5, v{QX[0]}, v{QX[0]}, v5")
    a("v_permlane32_swap_b32 v24, v25")
    a("v_add_f32 v24, v24, v25")
    a("v_mul_f32 v5, v5, v24")
    a("v_sqrt_f32 v5, v5")
    a(f"v_mul_f32 v5, {fbits(-1.02)}, v5")
    a("v_cvt_pk_bf16_f32 v5, v5, 0")
    a(f"v_cndmask_b32 v{QX[0]}, v5, v{QX[0]}, s[50:51]")
    a(f"v_mov_b32 v{QX[1]}, v{QX[0]}")
    a("s_mov_b32 s60, 0")
    a("s_mov_b32 s48, 0")
    a("v_lshlrev_b32 v9, 4, v1")
    a("s_cmp_lg_u32 s41, 0")
    a("s_cbranch_scc1 L_a_young_pre")
    a(f"s_mov_b32 s59, {16 // TPI}")
    a("s_waitcnt vmcnt(0) lgkmcnt(0)")
    a("s_barrier")
    a.label("L_a_start")
    stamp(a, 3)
    pipe_start(a)
    a.raw(".p2align 6")
    a.label("L_a_loop")
    for t in range(TPI): tile(a, t)
    a.label("L_a_loop_end")
    step = (TPI // 4) * KV_BLK
    a(f"v_add_u32 v{KA_}, {step}, v{KA_}")
    a(f"v_add_u32 v{KR_}, {step}, v{KR_}")
    a(f"v_add_u32 v{VA_}, {step}, v{VA_}")
    a("s_add_u32 s48, s48, 1")
    a("s_cmp_eq_u32 s48, s59")
    a("s_cbranch_scc1 L_a_inter")
    a(f"s_cmp_lt_u32 s48, {64 // TPI}")
    a("s_cbranch_scc1 L_a_loop")
    mfma32(a, O, VB[1] + 4, P + 4, O)
    a.label("L_a_norm")
    stamp(a, 4)
    a("s_waitcnt lgkmcnt(0)")
    a("s_nop 12")
    a(f"v_mov_b32 v5, v{O+10}")
    a(f"v_mov_b32 v6, v{O+10}")
    a("v_permlane32_swap_b32 v5, v6")
    a(f"v_mov_b32 v7, {fbits(2.0**-40)}")
    a("v_cmp_nge_f32 vcc, v5, v7")
    a("s_nop 3")
    a("s_cmp_lg_u64 vcc, 0")
    a("s_cselect_b32 s49, 1, 0")
    a("s_andn2_b32 s49, s49, s60")
    a("s_cbranch_scc1 L_a_fallback")
    a("v_rcp_f32 v5, v5")
    a("v_bfe_u32 v6, v1, 4, 1")
    a("s_lshl_b32 s46, s40, 1")
    a("v_add_u32 v6, s46, v6")
    a("v_mul_u32_u24 v6, 608, v6")
    a("v_and_b32 v7, 15, v1")
    a("v_lshl_add_u32 v8, v7, 2, v6")
    a("v_lshl_add_u32 v6, v7, 5, v6")
    a("v_lshrrev_b32 v7, 5, v1")
    a("v_lshl_add_u32 v6, v7, 4, v6")
    a(f"v_add_u32 v6, {L_OS}, v6")
    a(f"v_add_u32 v8, {L_OS + 512}, v8")
    for i in range(10):
        a(f"v_mul_f32 v{O+i}, v{O+i}, v5")
    for i in range(5):
        a(f"v_cvt_pk_bf16_f32 v{P+i}, v{O+2*i}, v{O+2*i+1}")
    a("s_cmp_eq_u32 s41, 0")
    a("s_cbranch_scc1 L_a_poll2_ok")
    a(f"v_mov_b32 v9, {L_CNT}")
    lds_poll(a, "a_poll2", 9, 7, 8)
    a(f"ds_write_b128 v6, {v(P,4)}")
    a("s_mov_b64 exec, 0xffffffff")
    a(f"ds_write_b32 v8, v{P+4}")
    a("s_mov_b64 exec, -1")
    a("v_and_b32 v5, 7, v1")
    a("v_mul_u32_u24 v4, 608, v5")
    a("v_lshrrev_b32 v6, 4, v1")
    a("v_lshl_add_u32 v4, v6, 4, v4")
    a(f"v_add_u32 v4, {L_OS}, v4")
    a("v_lshl_add_u32 v3, v6, 3, v5")
    a("v_lshlrev_b32 v3, 4, v3")
    a("s_mul_i32 s46, s40, 1536")
    a(f"s_add_u32 s46, s46, {L_CP}")
    a("v_add_u32 v3, s46, v3")
    a("v_lshlrev_b32 v2, 4, v1")
    a("s_mul_i32 s70, s3, 165888")
    a(f"s_mul_i32 s47, s43, {SLICE}")
    a("s_add_u32 s70, s70, s47")
    a(f"s_add_u32 s70, s70, {WS_W}")
    a(f"s_mov_b32 s{WSR}, s12")
    a(f"s_and_b32 s{WSR+1}, s13, 0xffff")
    a(f"s_add_u32 s{WSR+2}, s70, 165888")
    a(f"s_mov_b32 s{WSR+3}, 0x00020000")
    a("s_mov_b32 s54, 0x00ff00ff")
    a("s_mov_b32 s55, 0x00ff00ff")
    a("s_cmp_lg_u32 s41, 0")
    a("s_cbranch_scc1 L_a_young_tail")

    WA = 16
    WB = 112
    a(f"v_mov_b32 v8, {L_CNT}")
    a("v_mov_b32 v9, 1")
    a("s_waitcnt lgkmcnt(0)")
    a("s_mov_b64 exec, 1")
    a("ds_add_u32 v8, v9")
    a("s_mov_b64 exec, -1")
    a("s_mul_i32 s61, s40, 9216")
    a(f"s_add_u32 s61, s61, {WS_WO}")
    for sx in range(4): wo0_loads(a, sx, 2)
    a("v_mul_u32_u24 v10, 1152, v5")
    a("v_lshl_add_u32 v11, v6, 3, v10")
    a("v_lshl_add_u32 v10, v6, 4, v10")
    a("s_mul_i32 s46, s42, 1152")
    a("s_mul_i32 s47, s40, 288")
    a("s_add_u32 s52, s46, s47")
    for i in range(4):
        a(f"buffer_load_dwordx4 {v(92+4*i,4)}, v10, {s(XS_,4)}, s52 offen offset:{i*64}")
    a(f"buffer_load_dwordx2 v[108:109], v11, {s(XS_,4)}, s52 offen offset:256")
    lds_poll(a, "a_poll", 8, 9, 4)
    stamp(a, 5)
    for sx in range(9):
        a(f"ds_read_b128 {v(56+4*sx,4)}, v4 offset:{sx*64}")
    a("v_mov_b32 v9, 1")
    a("s_waitcnt lgkmcnt(0)")
    a("s_mov_b64 exec, 1")
    a("ds_add_u32 v8, v9")
    a("s_mov_b64 exec, -1")
    a("s_setprio 0")
    for sx in range(9):
        a(f"s_waitcnt vmcnt({min(3, 8 - sx)*9 + (5 if sx < 4 else 0)})")
        b = WB + (sx % 4) * 36
        for t in range(9):
            mfma16(a, WA + 4*t, b + 4*t, 56 + 4*sx, None if sx == 0 else WA + 4*t)
        if sx + 4 < 9: wo0_loads(a, sx + 4, 2)
    a("s_setprio 2")
    a("s_mov_b32 s46, 0x00003f80")
    a("s_mov_b32 s47, 0x3f800000")
    for k in list(range(12, 18)) + list(range(12)):
        a(f"v_dot2_f32_bf16 v{WA+2*k}, v{92+k}, s46, v{WA+2*k}")
        a(f"v_dot2_f32_bf16 v{WA+2*k+1}, v{92+k}, s47, v{WA+2*k+1}")
    stamp(a, 23)
    a("s_mov_b64 exec, s[54:55]")
    for t in range(3):
        a(f"ds_write_b128 v3, {v(WA+24+4*t,4)} offset:{t*512}")
    a("s_mov_b64 exec, -1")
    a("v_lshlrev_b32 v8, 3, v1")
    a("s_lshl_b32 s46, s43, 9")
    a(f"s_add_u32 s46, s46, {WS_FPACK}")
    flag_poll(a, "a_pkpoll", 8, 10, 46, 2, sleep=8)
    npf = 11 if MAPPING == "A" else 21
    if MAPPING == "A":
        a("s_mul_i32 s46, s56, 41472")
    else:
        a("s_lshr_b32 s46, s56, 1")
        a("s_mul_i32 s46, s46, 82944")
    a(f"s_mul_i32 s47, s40, {npf*1024}")
    a("s_add_u32 s46, s46, s47")
    a(f"s_mul_i32 s47, s43, {SLICE}")
    a("s_add_u32 s46, s46, s47")
    a(f"s_add_u32 s46, s46, {WS_W}")
    a("s_waitcnt lgkmcnt(0)")
    for i in range(npf):
        a(f"buffer_load_dwordx4 v[40:43], v2, {s(ws,4)}, s46 offen offset:{(i%4)*1024} {WMOD}")
        if i % 4 == 3: a("s_add_u32 s46, s46, 4096")
    a("s_waitcnt vmcnt(8)")
    a("s_mul_i32 s46, s40, 9216")
    a(f"s_add_u32 s46, s46, {WS_WO + 9*36*1024}")
    for sx in range(9):
        for t in range(6):
            if t == 4: a("s_add_u32 s46, s46, 4096")
            a(f"buffer_load_dwordx4 {v(40+(sx*6+t)*4,4)}, v2, {s(ws,4)}, s46 offen offset:{(t%4)*1024}")
        a(f"s_add_u32 s46, s46, {36*1024 - 4096}")
    a("s_waitcnt vmcnt(0)")
    stamp(a, 6)
    a("s_barrier")
    stamp(a, 7)
    a(f"ds_read_b128 v[8:11], v4 offset:0")
    for sx in range(9):
        if sx + 1 < 9:
            a(f"ds_read_b128 {v(8+((sx+1)&1)*4,4)}, v4 offset:{(sx+1)*64}")
        a(f"s_waitcnt lgkmcnt({1 if sx+1 < 9 else 0})")
        for t in range(6):
            mfma16(a, WA + 4*t, 40 + (sx*6+t)*4, 8 + (sx&1)*4, WA + 4*t)
    ln_tail(a, WA, 6, 0)
    a("s_branch L_m_roleB")

    a.label("L_a_young_tail")
    a("s_waitcnt vmcnt(0) lgkmcnt(0)")
    stamp(a, 6)
    a("s_barrier")
    stamp(a, 7)
    for t in range(3):
        a(f"ds_read_b128 {v(WA+4*t,4)}, v3 offset:{t*512}")
    for sx in range(9):
        a(f"ds_read_b128 {v(112+4*sx,4)}, v4 offset:{sx*64}")
    for sx in range(9):
        a(f"s_waitcnt lgkmcnt({8-sx})")
        for t in range(3):
            mfma16(a, WA + 4*t, 148 + (sx*3+t)*4, 112 + 4*sx, WA + 4*t)
        if sx < 7: a_loads(a, sx)
    ln_tail(a, WA, 3, 6)
    a_loads(a, 7)
    a("s_waitcnt vmcnt(3)")
    flag_store(a, WS_FY, 8)
    a("s_branch L_m_roleA")

    a.label("L_a_inter")
    a("s_barrier")
    a("s_branch L_a_loop")

    a.label("L_a_young_pre")
    a("s_lshl_b32 s58, s56, 2")
    a("s_add_u32 s58, s58, s40")
    a("s_min_u32 s59, s58, 119")
    sja, selA, selB = w_pack_setup(a, 59, 43, 16, 20, 24, 72, 61, 62, 63, 1, 5, 6, 7)
    a("s_mov_b32 s59, 99")
    if DBG & 1:
        a("s_waitcnt vmcnt(0)")
        a("s_barrier")
        a("s_branch L_a_dbg_skip")
    a("s_waitcnt vmcnt(8)")
    w_pack_loads(a, 2, 24, 61, 62, sja, 5, 6, 112)
    a("s_waitcnt vmcnt(32)")
    stamp(a, 2)
    a("s_barrier")
    a("s_waitcnt vmcnt(30)")
    w_pack_loads(a, 2, 24, 61, 62, sja, 5, 6, 144)
    stamp(a, 20)
    for st in range(4):
        a(f"s_waitcnt vmcnt({(3-st)*16 + min(st,1)*2})")
        w_pack_stores(a, 112 + st*16, 176 + (st & 1)*12, selA, selB, ws, 9, 63)
    stamp(a, 21)
    a("s_mul_i32 s46, s40, 9216")
    a(f"s_add_u32 s46, s46, {WS_WO + (9*36 + 6)*1024}")
    for sx in range(9):
        for tt in range(3):
            a(f"buffer_load_dwordx4 {v(148 + (sx*3+tt)*4, 4)}, v9, {s(ws,4)}, s46 offen offset:{tt*1024}")
        a(f"s_add_u32 s46, s46, {36*1024}")
    a.label("L_a_dbg_skip")
    if DBG & 2:
        a(f"v_mov_b32 v5, {L_CNT}")
        lds_poll(a, "a_dbgpoll", 5, 6, 4)
    a("s_waitcnt vmcnt(27)")
    a("v_mov_b32 v5, 0")
    a("v_mov_b32 v6, 1")
    a("s_lshl_b32 s46, s43, 7")
    a("s_add_u32 s46, s46, s58")
    a("s_lshl_b32 s46, s46, 2")
    a(f"s_add_u32 s46, s46, {WS_FPACK}")
    a("s_mov_b64 exec, 1")
    a(f"buffer_store_dword v6, v5, {s(ws,4)}, s46 offen sc1")
    a("s_mov_b64 exec, -1")
    a("s_setprio 1")
    a("s_branch L_a_start")
    fallback(a)

def ln_tail(a, WA, nt, t0):
    ws = WS_
    n = nt * 4
    T = 44 if nt == 6 else 148
    stamp(a, 8)
    a(f"v_add_f32 v8, v{WA}, v{WA+1}")
    a(f"v_mul_f32 v9, v{WA}, v{WA}")
    a(f"v_fmac_f32 v9, v{WA+1}, v{WA+1}")
    for i in range(2, n):
        a(f"v_add_f32 v8, v8, v{WA+i}")
        a(f"v_fmac_f32 v9, v{WA+i}, v{WA+i}")
    for sw in ("v_permlane32_swap_b32", "v_permlane16_swap_b32"):
        a("v_mov_b32 v10, v8")
        a("v_mov_b32 v11, v9")
        a(f"{sw} v8, v10")
        a(f"{sw} v9, v11")
        a("v_add_f32 v8, v8, v10")
        a("v_add_f32 v9, v9, v11")
    a("v_lshlrev_b32 v10, 6, v5")
    a(f"v_add_u32 v10, {L_ST}, v10")
    a("s_lshl_b32 s46, s3, 3")
    a("v_add_u32 v11, s46, v10")
    a("s_mov_b64 exec, 0xff")
    a("ds_write_b64 v11, v[8:9]")
    a("s_mov_b64 exec, -1")
    for k in range(n // 2):
        a(f"v_cvt_pk_bf16_f32 v{T+k}, v{WA+2*k}, v{WA+2*k+1}")
    a("s_mul_i32 s46, s40, 18")
    a(f"s_add_u32 s46, s46, {2*t0}")
    a("v_add_u32 v12, s46, v6")
    a("v_lshlrev_b32 v13, 4, v5")
    a("v_lshl_add_u32 v14, v12, 7, v13")
    a(f"v_add_u32 v14, {L_HH}, v14")
    a("s_waitcnt lgkmcnt(0)")
    a("s_barrier")
    stamp(a, 9)
    U = T + 12
    for i in range(4):
        a(f"ds_read_b128 {v(U+4*i,4)}, v10 offset:{i*16}")
    a("v_lshrrev_b32 v15, 2, v12")
    a("v_lshl_add_u32 v15, v15, 12, v13")
    a("v_and_b32 v12, 3, v12")
    a("v_lshl_add_u32 v12, v12, 8, v15")
    if nt == 3:
        a("v_lshrrev_b32 v15, 1, v6")
        a("s_add_u32 s46, s46, 4")
        a("v_add_u32 v15, s46, v15")
        a("v_and_b32 v7, 1, v6")
        a("v_lshl_add_u32 v13, v7, 3, v13")
        a("v_lshl_add_u32 v7, v15, 7, v13")
        a(f"v_add_u32 v7, {L_HH}, v7")
        a("v_lshrrev_b32 v8, 2, v15")
        a("v_lshl_add_u32 v13, v8, 12, v13")
        a("v_and_b32 v15, 3, v15")
        a("v_lshl_add_u32 v13, v15, 8, v13")
    a("s_mov_b64 exec, s[54:55]")
    for i in range(nt // 2):
        a(f"ds_write_b128 v14, {v(T+4*i,4)} offset:{i*512}")
    if nt == 3: a(f"ds_write_b64 v7, {v(T+4,2)}")
    a("s_mov_b64 exec, -1")
    a("s_mul_i32 s46, s56, 73728")
    a("s_lshr_b32 s47, s43, 1")
    a("s_lshl_b32 s47, s47, 10")
    a("s_add_u32 s46, s46, s47")
    a("s_and_b32 s47, s43, 1")
    a("s_lshl_b32 s47, s47, 7")
    a("s_add_u32 s46, s46, s47")
    a(f"s_add_u32 s46, s46, {WS_Y}")
    a(f"s_waitcnt lgkmcnt({nt//2 + (nt & 1)})")
    for i in range(1, 8):
        a(f"v_add_f32 v{U}, v{U}, v{U+2*i}")
        a(f"v_add_f32 v{U+1}, v{U+1}, v{U+2*i+1}")
    a(f"v_mul_f32 v8, {fbits(1.0/D)}, v{U}")
    a(f"v_mul_f32 v9, {fbits(1.0/D)}, v{U+1}")
    a("v_fma_f32 v9, -v8, v8, v9")
    a("v_max_f32 v9, 0, v9")
    a(f"v_add_f32 v10, {fbits(1e-5)}, v9")
    a("v_rcp_f32 v11, v10")
    a("v_rsq_f32 v10, v10")
    a(f"v_fmaak_f32 v11, v9, v11, {fbits(1e-5)}")
    a("v_rsq_f32 v11, v11")
    a("v_mul_f32 v10, v10, v11")
    a("v_mul_f32 v8, v8, v10")
    a("s_mov_b64 exec, s[54:55]")
    for i in range(nt // 2):
        for k in range(8):
            a(f"v_fma_f32 v{WA+8*i+k}, v{WA+8*i+k}, v10, -v8")
        for k in range(4):
            a(f"v_cvt_pk_bf16_f32 v{U+4*i+k}, v{WA+8*i+2*k}, v{WA+8*i+2*k+1}")
        a(f"buffer_store_dwordx4 {v(U+4*i,4)}, v12, {s(ws,4)}, s46 offen sc1")
        if i + 1 < nt // 2: a("v_add_u32 v12, 4096, v12")
    if nt == 3:
        for k in range(4):
            a(f"v_fma_f32 v{WA+8+k}, v{WA+8+k}, v10, -v8")
        for k in range(2):
            a(f"v_cvt_pk_bf16_f32 v{U+4+k}, v{WA+8+2*k}, v{WA+8+2*k+1}")
        a(f"buffer_store_dwordx2 {v(U+4,2)}, v13, {s(ws,4)}, s46 offen sc1")
    a("s_mov_b64 exec, -1")

def fallback(a):
    a.label("L_a_fallback")
    a("s_mov_b32 s60, 1")
    tot = 16 * KV_BLK
    a(f"v_cndmask_b32 v{QX[0]}, 0, v{QX[0]}, s[50:51]")
    a(f"v_mov_b32 v{QX[1]}, v{QX[0]}")
    a("v_mov_b32 v5, 0xff800000")
    for ps in range(2):
        for r in (KA_, KR_, VA_):
            a(f"v_subrev_u32 v{r}, {tot}, v{r}")
        a("s_mov_b32 s48, 0")
        a.label(f"L_a_fb{ps}")
        a(f"ds_read_b128 {v(KRB[0],4)}, v{KR_}")
        for t in range(4):
            a(f"ds_read_b128 {v(KB[0],4)}, v{KA_} offset:{koff(t)}")
            if ps == 1:
                a(f"ds_read_b128 {v(VB[0],4)}, v{VA_} offset:{voff(t,0)}")
                a(f"ds_read_b128 {v(VB[0]+4,4)}, v{VA_} offset:{voff(t,1)}")
            a("s_waitcnt lgkmcnt(0)")
            mfma32(a, SB[0], KB[0], Q1, None)
            mfma32(a, SB[0], KRB[0], Q2POS[t], SB[0])
            S0 = SB[0]
            if ps == 0:
                for i in range(8):
                    a(f"v_max3_f32 v5, v{S0+2*i}, v{S0+2*i+1}, v5")
            else:
                for i in range(16): a(f"v_sub_f32 v{S0+i}, v{S0+i}, v5")
                for i in range(16): a(f"v_exp_f32 v{S0+i}, v{S0+i}")
                for i in range(8): a(f"v_cvt_pk_bf16_f32 v{P+i}, v{S0+2*i}, v{S0+2*i+1}")
                mfma32(a, O, VB[0], P, O)
                mfma32(a, O, VB[0] + 4, P + 4, O)
                a("s_nop 7")
        for r in (KA_, KR_, VA_):
            a(f"v_add_u32 v{r}, {KV_BLK}, v{r}")
        a("s_add_u32 s48, s48, 1")
        a("s_cmp_lt_u32 s48, 16")
        a(f"s_cbranch_scc1 L_a_fb{ps}")
        if ps == 0:
            a("v_mov_b32 v6, v5")
            a("v_permlane32_swap_b32 v5, v6")
            a("v_max_f32 v5, v5, v6")
            for r in range(O, O + 16): a(f"v_mov_b32 v{r}, 0")
    a("s_branch L_a_norm")

def gelu(a, regs, tmp, vc1):
    if NOGELU: return
    for k in range(0, len(regs), 8):
        g = regs[k:k+8:2]
        T = [tmp + 2*i for i in range(len(g))]
        if PKGELU:
            for x, t in zip(g, T): a(f"v_pk_mul_f32 {v(t,2)}, {v(x,2)}, {v(x,2)}")
            for x, t in zip(g, T): a(f"v_pk_fma_f32 {v(t,2)}, {v(t,2)}, {v(vc1,2)}, s[78:79]")
            for x, t in zip(g, T): a(f"v_pk_mul_f32 {v(t,2)}, {v(x,2)}, {v(t,2)}")
            for x, t in zip(g, T): a(f"v_exp_f32 v{t}, v{t}"); a(f"v_exp_f32 v{t+1}, v{t+1}")
            for x, t in zip(g, T): a(f"v_pk_add_f32 {v(t,2)}, {v(t,2)}, 1.0 op_sel_hi:[1,0]")
            for x, t in zip(g, T): a(f"v_rcp_f32 v{t}, v{t}"); a(f"v_rcp_f32 v{t+1}, v{t+1}")
            for x, t in zip(g, T): a(f"v_pk_mul_f32 {v(x,2)}, {v(x,2)}, {v(t,2)}")
        else:
            g = regs[k:k+8]; T = [tmp + i for i in range(len(g))]
            for x, t in zip(g, T): a(f"v_mul_f32 v{t}, v{x}, v{x}")
            for x, t in zip(g, T): a(f"v_fmaak_f32 v{t}, v{vc1}, v{t}, {fbits(C0)}")
            for x, t in zip(g, T): a(f"v_mul_f32 v{t}, v{x}, v{t}")
            for x, t in zip(g, T): a(f"v_exp_f32 v{t}, v{t}")
            for x, t in zip(g, T): a(f"v_add_f32 v{t}, 1.0, v{t}")
            for x, t in zip(g, T): a(f"v_rcp_f32 v{t}, v{t}")
            for x, t in zip(g, T): a(f"v_mul_f32 v{x}, v{x}, v{t}")

def acc(t, q): return ACC + (t * 4 + q) * 4

def mlp_setup(a):
    a(f"v_add_u32 v3, {L_Y}, v2")
    a(f"v_add_u32 v4, {L_Y + 36864}, v2")
    a("v_and_b32 v9, 15, v1")
    a("v_lshlrev_b32 v9, 4, v9")
    a(f"v_mov_b32 v{GT+22}, {fbits(C1)}")
    a(f"v_mov_b32 v{GT+23}, {fbits(C1)}")
    a(f"s_mov_b32 s78, {fbits(C0)}")
    a(f"s_mov_b32 s79, {fbits(C0)}")
    a("v_bfe_u32 v14, v1, 3, 1")
    a("s_mov_b32 s46, 73728")
    a("v_mul_lo_u32 v14, v14, s46")
    a("v_lshl_add_u32 v14, v5, 4, v14")
    a("v_and_b32 v15, 1, v6")
    a("s_mov_b32 s46, 147456")
    a("v_mul_lo_u32 v15, v15, s46")
    a("v_add_u32 v15, v15, v14")
    a("v_lshrrev_b32 v7, 1, v6")
    a("v_lshl_add_u32 v15, v7, 7, v15")
    a("v_lshl_add_u32 v14, v6, 7, v14")
    a("s_lshl_b32 s71, s56, 6")
    a("s_add_u32 s71, s71, s43")
    a("s_mul_i32 s71, s71, 9216")
    a(f"s_add_u32 s71, s71, {WS_P}")

def bias_init(a):
    a("s_mul_i32 s46, s68, 192")
    a(f"s_add_u32 s46, s46, {L_B1}")
    a("v_lshl_add_u32 v11, v6, 5, s46")
    a("v_lshl_add_u32 v12, v6, 4, s46")
    a(f"ds_read_b128 {v(CI,4)}, v11 offset:{L_B1D - L_B1}")
    a(f"ds_read_b128 {v(CI+4,4)}, v11 offset:{L_B1D - L_B1 + 16}")
    a(f"ds_read_b128 {v(CI+8,4)}, v12 offset:128")

def to_gemm2(a):
    for r in (3, 4):
        a(f"v_add_u32 v{r}, {L_H - L_Y}, v{r}")
    for i in range(12): a(f"v_mov_b32 v{CI+i}, 0")

def call(a, name):
    a(f"s_call_b64 s[74:75], {name}")

def mlp(a):
    ws = WS_
    a.label("L_m_roleA")
    mlp_setup(a)
    a("s_setprio 3")
    a("s_barrier")
    stamp(a, 10)
    a("s_mov_b32 s68, s40")
    bias_init(a)
    a("s_mov_b32 s69, 3")
    call(a, "L_m_pass")
    stamp(a, 12)
    a("s_setprio 1")
    call(a, "L_m_gelu")
    stamp(a, 13)
    a("s_setprio 1")
    a("s_add_u32 s68, s40, 8")
    bias_init(a)
    a("s_mov_b32 s69, 0")
    call(a, "L_m_pass")
    a("s_setprio 0")
    stamp(a, 14)
    a("s_barrier")
    stamp(a, 11)
    call(a, "L_m_gelu")
    stamp(a, 15)
    a("s_waitcnt lgkmcnt(0)")
    a("s_barrier")
    a("s_setprio 2")
    to_gemm2(a)
    a("s_mov_b32 s69, 2")
    call(a, "L_m_pass")
    a("s_setprio 0")
    a("s_add_u32 s68, s40, 4")
    stamp(a, 16)
    reduce_setup(a)
    a("s_barrier")
    stamp(a, 24)
    call(a, "L_m_store")
    a("s_waitcnt vmcnt(0)")
    flag_store(a, WS_FP1, 11)
    stamp(a, 25)
    a("s_cmp_lt_u32 s40, 2")
    a("s_cbranch_scc1 L_r_a01")
    flag_poll(a, "r_poll0", 8, GT, 53, 1)
    a("s_and_b32 s48, s40, 1")
    a("s_lshl_b32 s48, s48, 1")
    call(a, "L_r_item")
    a("s_add_u32 s48, s48, 1")
    a("s_cmp_eq_u32 s48, 1")
    a("s_cbranch_scc1 L_r_last")
    a("s_branch L_r_st1")
    a.label("L_r_a01")
    a("s_add_u32 s48, s40, 4")
    a.label("L_r_st1")
    a("s_add_u32 s53, s53, 16")
    flag_poll(a, "r_poll1", 8, GT, 53, 1)
    a.label("L_r_last")
    stamp(a, 17)
    call(a, "L_r_item")
    a("s_branch L_m_done")
    a.label("L_m_roleB")
    a("s_waitcnt vmcnt(0)")
    flag_store(a, WS_FY, 8)
    a("s_lshl_b32 s46, s56, 8")
    a(f"s_add_u32 s53, s46, {WS_FY}")
    srd(a, XS_, 18, F * 2)
    a("s_lshl_b32 s46, s40, 6")
    a("v_add_u32 v8, s46, v1")
    a("v_lshlrev_b32 v11, 2, v8")
    a("s_mul_i32 s46, s43, 1152")
    a(f"buffer_load_dword v{GT}, v11, {s(XS_,4)}, s46 offen")
    a(f"buffer_load_dword v{GT+1}, v11, {s(XS_,4)}, s46 offen offset:1024")
    mlp_setup(a)
    a("v_lshlrev_b32 v11, 3, v8")
    a(f"v_add_u32 v11, {L_B1}, v11")
    a("s_waitcnt vmcnt(0)")
    a(f"v_lshlrev_b32 v{GT+2}, 16, v{GT}")
    a(f"v_and_b32 v{GT+3}, 0xffff0000, v{GT}")
    a(f"v_lshlrev_b32 v{GT+4}, 16, v{GT+1}")
    a(f"v_and_b32 v{GT+5}, 0xffff0000, v{GT+1}")
    a(f"ds_write_b64 v11, {v(GT+2,2)}")
    a("v_lshrrev_b32 v12, 2, v8")
    a("v_lshlrev_b32 v12, 5, v12")
    a("v_and_b32 v13, 3, v8")
    a("v_lshl_add_u32 v12, v13, 2, v12")
    a(f"v_add_u32 v12, {L_B1D}, v12")
    a(f"ds_write2_b32 v12, v{GT+2}, v{GT+3} offset0:0 offset1:4")
    a("v_add_u32 v12, 2048, v12")
    a("s_cmp_lg_u32 s40, 0")
    a("s_cbranch_scc1 L_m_nob2")
    a("s_mov_b64 exec, 0xffffffff")
    a(f"ds_write_b64 v11, {v(GT+4,2)} offset:2048")
    a(f"ds_write2_b32 v12, v{GT+4}, v{GT+5} offset0:0 offset1:4")
    a("s_mov_b64 exec, -1")
    a.label("L_m_nob2")
    for k in range(RDS - 1): a_loads(a, k)
    a("v_lshlrev_b32 v8, 2, v1")
    flag_poll(a, "m_ypoll", 8, GT, 53, 1)
    stamp(a, 10)
    a("s_mul_i32 s46, s56, 73728")
    a("s_lshl_b32 s47, s40, 10")
    a("s_add_u32 s46, s46, s47")
    a(f"s_add_u32 s46, s46, {WS_Y}")
    for st in range(18):
        a(f"s_add_u32 m0, s47, {L_Y + st*4096}")
        if st: a("s_add_u32 s46, s46, 4096")
        a(f"buffer_load_dwordx4 v2, {s(ws,4)}, s46 offen sc1 {YMOD} lds")
    a("s_waitcnt vmcnt(12) lgkmcnt(0)")
    a("s_barrier")
    a("s_setprio 2")
    a("s_add_u32 s68, s40, 4")
    bias_init(a)
    a("s_mov_b32 s69, 3")
    call(a, "L_m_pass")
    stamp(a, 12)
    a("s_setprio 0")
    call(a, "L_m_gelu")
    stamp(a, 13)
    to_gemm2(a)
    a("s_setprio 3")
    a("s_waitcnt lgkmcnt(0)")
    a("s_barrier")
    stamp(a, 11)
    a("s_mov_b32 s69, 2")
    call(a, "L_m_pass")
    a("s_setprio 0")
    a("s_mov_b32 s68, s40")
    stamp(a, 15)
    a("s_barrier")
    stamp(a, 24)
    call(a, "L_m_store")
    a("s_setprio 1")
    a("s_mov_b32 s69, 6")
    call(a, "L_m_pass")
    a("s_setprio 3")
    a("s_add_u32 s68, s40, 8")
    stamp(a, 16)
    call(a, "L_m_store")
    reduce_setup(a)
    a("s_waitcnt vmcnt(0)")
    flag_store(a, WS_FP2, 11)
    stamp(a, 25)
    a("s_cmp_eq_u32 s40, 3")
    a("s_cbranch_scc1 L_m_done")
    a(f"s_add_u32 s53, s53, {WS_FP2 - WS_FP1}")
    flag_poll(a, "r_poll2", 8, GT, 53, 1)
    stamp(a, 17)
    a("s_add_u32 s48, s40, 6")
    call(a, "L_r_item")
    a.label("L_m_done")

def subroutines(a):
    ws = WS_
    a.raw(".p2align 6")
    a.label("L_m_pass")
    def b_read(ks, a=a):
        b = BR + (ks % 3) * 16
        for q in range(4):
            a(f"ds_read_b128 {v(b+4*q,4)}, v{3 + ks // 9} offset:{(ks % 9)*4096 + q*1024}")
    for ks in range(2): b_read(ks)
    for ks in range(18):
        if ks in (4, 10):
            a(f"s_bitcmp1_b32 s69, {0 if ks == 4 else 1}")
            a(f"s_cbranch_scc0 L_m_nb{ks}")
            if ks == 4: a("s_waitcnt vmcnt(18)")
            a("s_barrier")
            a.label(f"L_m_nb{ks}")
        if ks == 8:
            a("s_bitcmp1_b32 s69, 2")
            a("s_cbranch_scc0 L_m_nf")
            flag_store(a, WS_FP1, 11)
            a.label("L_m_nf")
        a(f"s_waitcnt vmcnt({3*(RDS-2)}) lgkmcnt({4 if ks < 17 else 0})")
        b = BR + (ks % 3) * 16
        A = AR + 12 * (ks % RDS)
        R = Lst(); L = Lst()
        if ks + 2 < 18: b_read(ks + 2, R)
        a_loads(L, (ks - 1) % RDS)
        fill = {}
        for i, x in enumerate(R): fill[(0, 2, 4, 6)[i]] = x
        for i, x in enumerate(L): fill[(1, 5, 8, 10)[i]] = x
        n = 0
        for t in range(3):
            for q in range(4):
                mfma16(a, acc(t, q), A + 4*t, b + 4*q, CI + 4*t if ks == 0 else acc(t, q))
                if n in fill: a(fill[n])
                n += 1
    a("s_nop 3")
    a("s_nop 3")
    a("s_setpc_b64 s[74:75]")
    a.label("L_m_gelu")
    a("s_mul_i32 s46, s68, 6")
    a("v_add_u32 v11, s46, v6")
    a("v_lshrrev_b32 v12, 2, v11")
    a("v_lshl_add_u32 v12, v12, 12, v9")
    a("v_and_b32 v11, 3, v11")
    a("v_lshl_add_u32 v11, v11, 8, v12")
    a(f"v_add_u32 v11, {L_H}, v11")
    a("s_add_u32 s46, s46, 4")
    a("v_add_u32 v12, s46, v7")
    a("v_lshrrev_b32 v13, 2, v12")
    a("v_lshl_add_u32 v13, v13, 12, v9")
    a("v_and_b32 v12, 3, v12")
    a("v_lshl_add_u32 v12, v12, 8, v13")
    a("v_and_b32 v13, 1, v6")
    a("v_lshl_add_u32 v12, v13, 3, v12")
    a(f"v_add_u32 v12, {L_H}, v12")
    for qq in range(2):
        for t in range(3):
            gelu(a, list(range(acc(t, 2*qq), acc(t, 2*qq) + 8)), GT, GT + 22)
        for q in (2*qq, 2*qq + 1):
            o = GT + 8 + (q & 1) * 6
            for r in range(4):
                a(f"v_cvt_pk_bf16_f32 v{o+r}, v{acc(0,q)+r}, v{acc(1,q)+r}")
            a(f"v_cvt_pk_bf16_f32 v{o+4}, v{acc(2,q)}, v{acc(2,q)+1}")
            a(f"v_cvt_pk_bf16_f32 v{o+5}, v{acc(2,q)+2}, v{acc(2,q)+3}")
            a(f"ds_write_b128 v11, {v(o,4)} offset:{q*1024}")
            a(f"ds_write_b64 v12, {v(o+4,2)} offset:{q*1024}")
    a("s_setpc_b64 s[74:75]")
    store_sub(a, "L_m_store", False)

def store_sub(a, name, paced):
    ws = WS_
    a.label(name)
    a("s_mul_i32 s46, s68, 768")
    a("s_add_u32 s46, s46, s71")
    for q in range(4):
        o = GT + (q & 1) * 4
        for r in range(4):
            a(f"v_cvt_pk_bf16_f32 v{o+r}, v{acc(0,q)+r}, v{acc(1,q)+r}")
        o2 = GT + 8 + (q >> 1) * 4 + (q & 1) * 2
        a(f"v_cvt_pk_bf16_f32 v{o2}, v{acc(2,q)}, v{acc(2,q)+1}")
        a(f"v_cvt_pk_bf16_f32 v{o2+1}, v{acc(2,q)+2}, v{acc(2,q)+3}")
        a(f"s_add_u32 s47, s46, {q*147456}")
        a(f"buffer_store_dwordx4 {v(o,4)}, v14, {s(ws,4)}, s47 offen sc1" if not DBG & 4 else "s_nop 0")
        if paced: a(f"s_waitcnt vmcnt({PACE})")
        if q & 1:
            b = GT + 8 + (q >> 1) * 4
            a(f"v_permlane16_swap_b32 v{b}, v{b+2}")
            a(f"v_permlane16_swap_b32 v{b+1}, v{b+3}")
            a(f"s_add_u32 s47, s46, {(q-1)*147456}")
            a(f"buffer_store_dwordx4 {v(b,4)}, v15, {s(ws,4)}, s47 offen offset:512 sc1" if not DBG & 4 else "s_nop 0")
            if paced: a(f"s_waitcnt vmcnt({PACE})")
    a("s_nop 1")
    a("s_setpc_b64 s[74:75]")

def reduce_setup(a):
    srd(a, XS_, 22, D * 2)
    srd(a, 24, 6, S * D * 2)
    a("s_mov_b32 s76, 0x00003f80")
    a("s_mov_b32 s77, 0x3f800000")
    a("s_lshl_b32 s46, s56, 8")
    a(f"s_add_u32 s53, s46, {WS_FP1}")
    a("v_lshlrev_b32 v8, 2, v1")
    a("v_and_b32 v8, 0xec, v8")

def reduce_item(a):
    ws = WS_
    a.label("L_r_item")
    a("s_mul_i32 s46, s57, 73728")
    a("s_lshl_b32 s47, s48, 10")
    a("s_add_u32 s46, s46, s47")
    a(f"s_add_u32 s46, s46, {WS_P}")
    R = 32
    for i in range(8):
        a(f"buffer_load_dwordx4 {v(R+4*i,4)}, v2, {s(ws,4)}, s46 offen sc1")
        a("s_add_u32 s46, s46, 9216")
    a("v_lshrrev_b32 v11, 3, v1")
    a("v_lshlrev_b32 v11, 4, v11")
    a("s_lshl_b32 s45, s48, 7")
    a(f"buffer_load_dwordx4 {v(R+32,4)}, v11, {s(XS_,4)}, s45 offen")
    a(f"s_add_u32 s47, s47, {L_HH}")
    a("v_add_u32 v12, s47, v2")
    a(f"ds_read_b128 {v(R+36,4)}, v12")
    a("v_mad_u32_u24 v11, v5, s44, v11")
    a("s_mul_i32 s46, s57, 9216")
    a("s_add_u32 s46, s46, s45")
    a("s_waitcnt lgkmcnt(0)")
    for r in range(4):
        a(f"v_lshlrev_b32 v{16+2*r}, 16, v{R+36+r}")
        a(f"v_and_b32 v{17+2*r}, 0xffff0000, v{R+36+r}")
    for i in range(9):
        a(f"s_waitcnt vmcnt({8-i})")
        for r in range(4):
            a(f"v_dot2_f32_bf16 v{16+2*r}, v{R+4*i+r}, s76, v{16+2*r}")
            a(f"v_dot2_f32_bf16 v{17+2*r}, v{R+4*i+r}, s77, v{17+2*r}")
    for r in range(4):
        a(f"v_cvt_pk_bf16_f32 v{24+r}, v{16+2*r}, v{17+2*r}")
    a("buffer_store_dwordx4 v[24:27], v11, s[24:27], s46 offen")
    a("s_nop 1")
    a("s_setpc_b64 s[74:75]")

def k_main(name):
    a = Asm()
    kernel_head(a, name)
    a("s_cmp_ge_u32 s2, 256")
    a("s_cbranch_scc1 L_end")
    stamp_first(a)
    prologue(a)
    stamp_init(a, 0)
    attention(a)
    mlp(a)
    stamp_dump(a, 2)
    a.label("L_end")
    a("s_endpgm")
    subroutines(a)
    reduce_item(a)
    return a.finish(), descriptor(name, 256, 80)
```

```python
from common import *

def merge_store(a, rb, tmp, ws, v_dst, s_do, off=0, mod=""):
    for i in range(4):
        a(f"v_lshl_or_b32 v{tmp+i}, v{rb+2*i+1}, 16, v{rb+2*i}")
    a(f"buffer_store_dwordx4 {v(tmp,4)}, v{v_dst}, {s(ws,4)}, s{s_do} offen offset:{off} {mod}")

def wo_job_loads(a, s_job, wo_srd, st, s_do, v_lane, v_src, vt, rbase):
    rs_, nt, r, sidx, t, P, so, w, tt = range(st, st + 9)
    sdiv(a, rs_, nt, s_job, 36, t)
    sdiv(a, r, sidx, rs_, 9, t)
    sdiv(a, w, tt, nt, 9, t)
    a(f"s_lshl_b32 s{s_do}, s{s_job}, 10")
    a(f"s_add_u32 s{s_do}, s{s_do}, {WS_WO}")
    a(f"v_and_b32 v{vt}, 15, v{v_lane}")
    a(f"v_and_b32 v{vt+1}, 12, v{v_lane}")
    a(f"v_add_u32 v{vt+1}, v{vt}, v{vt+1}")
    a(f"s_cmp_lt_u32 s{tt}, 8")
    a(f"s_cselect_b64 vcc, -1, 0")
    a(f"v_cndmask_b32 v{v_src}, v{vt}, v{vt+1}, vcc")
    a(f"v_lshlrev_b32 v{v_src}, 1, v{v_src}")
    a(f"s_lshr_b32 s{t}, s{tt}, 1")
    a(f"s_lshl_b32 s{t}, s{t}, 5")
    a(f"s_and_b32 s{tt}, s{tt}, 1")
    a(f"s_lshl_b32 s{tt}, s{tt}, 2")
    a(f"s_add_u32 s{tt}, s{tt}, s{t}")
    a(f"s_mul_i32 s{w}, s{w}, 144")
    a(f"s_add_u32 s{tt}, s{tt}, s{w}")
    a(f"s_lshl_b32 s{tt}, s{tt}, 1")
    a(f"v_lshrrev_b32 v{vt}, 4, v{v_lane}")
    a(f"v_lshrrev_b32 v{vt+1}, 1, v{vt}")
    a(f"v_mul_u32_u24 v{vt+1}, 18, v{vt+1}")
    a(f"v_and_b32 v{vt+2}, 1, v{vt}")
    a(f"v_lshl_add_u32 v{vt+1}, v{vt+2}, 3, v{vt+1}")
    a(f"v_mul_u32_u24 v{vt+2}, 72, v{vt}")
    a(f"s_cmp_lt_u32 s{sidx}, 8")
    a(f"s_cselect_b64 vcc, -1, 0")
    csel(a, P, 2304, 18 * 1152)
    a(f"s_mul_i32 s{t}, s{sidx}, 36")
    a(f"s_cselect_b32 s{so}, s{t}, 16")
    a(f"v_cndmask_b32 v{vt+1}, v{vt+2}, v{vt+1}, vcc")
    a(f"s_mul_i32 s{t}, s{r}, 288")
    a(f"s_add_u32 s{so}, s{so}, s{t}")
    a(f"s_mul_i32 s{so}, s{so}, 1152")
    a(f"s_add_u32 s{so}, s{so}, s{tt}")
    a(f"s_movk_i32 s{t}, 1152")
    a(f"v_mad_u32_u24 v{v_src}, v{vt+1}, s{t}, v{v_src}")
    for i in range(4):
        a(f"buffer_load_ushort v{rbase+2*i}, v{v_src}, {s(wo_srd,4)}, s{so} offen")
        a(f"buffer_load_ushort v{rbase+2*i+1}, v{v_src}, {s(wo_srd,4)}, s{so} offen offset:1152")
        a(f"s_add_u32 s{so}, s{so}, s{P}")

def w_pack_setup(a, s_run, s_j, pw1, pw2, src, st, s_so, s_rs, s_do, v_lane, v_s01, v_s2, vt):
    sp, part, wv, pc, t, mat, pidx, t2 = range(st, st + 8)
    sdiv(a, sp, part, s_run, 5, t)
    sdiv(a, wv, pc, sp, 3, t)
    a(f"s_lshl_b32 s{part}, s{part}, 2")
    a(f"s_min_u32 s{part}, s{part}, 14")
    a(f"s_lshr_b32 s{t}, s{wv}, 2")
    a(f"s_mul_i32 s{t}, s{t}, 3")
    a(f"s_add_u32 s{t}, s{t}, s{pc}")
    a(f"s_lshl_b32 s{t}, s{t}, 2")
    tab = [(0, 1), (1, 0), (1, 2), (0, 0), (0, 2), (1, 1)]
    word = sum(((m << 2) | b) << (4 * i) for i, (m, b) in enumerate(tab))
    a(f"s_lshr_b32 s{t}, {word}, s{t}")
    a(f"s_bfe_u32 s{mat}, s{t}, 0x10002")
    a(f"s_and_b32 s{pidx}, s{t}, 3")
    a(f"s_lshl_b32 s{pidx}, s{pidx}, 2")
    a(f"s_and_b32 s{t}, s{wv}, 3")
    a(f"s_add_u32 s{pidx}, s{pidx}, s{t}")
    a(f"s_mul_i32 s{s_do}, s{sp}, 54")
    a(f"s_mul_i32 s{t}, s{part}, 3")
    a(f"s_add_u32 s{s_do}, s{s_do}, s{t}")
    a(f"s_lshl_b32 s{s_do}, s{s_do}, 10")
    a(f"s_mul_i32 s{t}, s{s_j}, {SLICE}")
    a(f"s_add_u32 s{s_do}, s{s_do}, s{t}")
    a(f"s_add_u32 s{s_do}, s{s_do}, {WS_W}")
    a(f"s_cmp_eq_u32 s{mat}, 0")
    a(f"s_cselect_b32 s{src}, s{pw1}, s{pw2}")
    a(f"s_cselect_b32 s{src+1}, s{pw1+1}, s{pw2+1}")
    csel(a, s_rs, 9216, 1152)
    csel(a, t, 1152, 576 * 1152)
    a(f"s_and_b32 s{src+1}, s{src+1}, 0xffff")
    a(f"s_mov_b32 s{src+2}, {D*F*2}")
    a(f"s_mov_b32 s{src+3}, 0x00020000")
    a(f"s_mul_i32 s{s_so}, s{t}, s{s_j}")
    a(f"s_mul_i32 s{t}, s{pidx}, 96")
    a(f"s_add_u32 s{s_so}, s{s_so}, s{t}")
    a(f"s_lshl_b32 s{t}, s{part}, 5")
    a(f"s_mul_i32 s{t}, s{t}, s{s_rs}")
    a(f"s_add_u32 s{s_so}, s{s_so}, s{t}")
    a(f"v_and_b32 v{vt}, 15, v{v_lane}")
    a(f"v_lshlrev_b32 v{v_s01}, 2, v{vt}")
    a(f"v_lshlrev_b32 v{v_s2}, 1, v{vt}")
    a(f"v_lshrrev_b32 v{vt}, 4, v{v_lane}")
    a(f"s_lshl_b32 s{t}, s{s_rs}, 3")
    a(f"v_mad_u32_u24 v{v_s01}, v{vt}, s{t}, v{v_s01}")
    a(f"v_mad_u32_u24 v{v_s2}, v{vt}, s{t}, v{v_s2}")
    a(f"s_mul_i32 s{t2}, s{s_rs}, 24")
    a(f"s_mov_b32 s{sp}, 0x05040100")
    a(f"s_mov_b32 s{part}, 0x07060302")
    return t2, sp, part

def w_pack_loads(a, nsteps, src, s_so, s_rs, s_ja, v_s01, v_s2, rbase):
    for st in range(nsteps):
        for j in range(8):
            b = rbase + st * 16 + j
            a(f"buffer_load_dword v{b}, v{v_s01}, {s(src,4)}, s{s_so} offen")
            a(f"buffer_load_ushort v{b+8}, v{v_s2}, {s(src,4)}, s{s_so} offen offset:64")
            a(f"s_add_u32 s{s_so}, s{s_so}, s{s_rs}")
        a(f"s_add_u32 s{s_so}, s{s_so}, s{s_ja}")

def w_pack_stores(a, rb, tmp, selA, selB, ws, v_dst, s_do, mod="sc1"):
    for t, sel in ((0, selA), (1, selB)):
        for i in range(4):
            a(f"v_perm_b32 v{tmp+4*t+i}, v{rb+2*i+1}, v{rb+2*i}, s{sel}")
        a(f"buffer_store_dwordx4 {v(tmp+4*t,4)}, v{v_dst}, {s(ws,4)}, s{s_do} offen offset:{t*1024} {mod}")
    merge_store(a, rb + 8, tmp + 8, ws, v_dst, s_do, 2048, mod)
    a(f"s_add_u32 s{s_do}, s{s_do}, 3072")
```

```python
from common import *
from k_pack import *
import math

QSCALE = math.log2(math.e) / math.sqrt(DH)
LDS_QKV = 163840
LX = 0; LW = 73728; LE = LW + 17 * 5120
assert LE + 1280 + 512 <= LDS_QKV
MAIN_CODE_KB = [0]
QDBG = int(os.environ.get("QDBG", "0"))

def k_qkv(name):
    a = Asm()
    kernel_head(a, name)
    XF = 16
    AF = 28
    ACC = 64
    GRAM = 76; CS = 80; ONES = 100; G17 = 104; WOR = 104; T = 120
    a("s_cmp_ge_u32 s2, 256")
    a("s_cbranch_scc1 L_q_end")
    stamp_first(a)
    a(f"s_load_dwordx8 s[4:11], s[0:1], {KA['x']}")
    a(f"s_load_dwordx2 s[12:13], s[0:1], {KA['ws']}")
    a(f"s_load_dwordx2 s[14:15], s[0:1], {KA['wo']}")
    a("v_and_b32 v1, 63, v0")
    a("v_lshrrev_b32 v7, 6, v0")
    a("v_readfirstlane_b32 s3, v7")
    stamp_init(a, 127)
    a("s_and_b32 s40, s2, 31")
    a("s_lshr_b32 s41, s2, 5")
    a("s_movk_i32 s44, 1152")
    a("s_lshl_b32 s42, s40, 6")
    a("s_and_b32 s43, s3, 3")
    a("v_lshlrev_b32 v6, 4, v1")
    a("v_lshrrev_b32 v10, 4, v1")
    a("v_and_b32 v11, 15, v1")
    a("s_cmp_ge_u32 s3, 12")
    a("s_cbranch_scc1 L_q_aux")
    a("s_cmp_ge_u32 s3, 4")
    a("s_cbranch_scc1 L_q_compute")
    a("v_lshrrev_b32 v8, 3, v1")
    a("v_and_b32 v9, 7, v1")
    a("v_xor_b32 v12, v9, v8")
    a("v_lshlrev_b32 v12, 4, v12")
    a("v_mad_u32_u24 v12, v8, s44, v12")
    a("v_and_b32 v13, 2, v8")
    a("v_xor_b32 v13, v9, v13")
    a("v_lshlrev_b32 v13, 4, v13")
    a("v_mad_u32_u24 v13, v8, s44, v13")
    a("v_xor_b32 v14, 64, v13")
    a(f"v_add_u32 v14, {8*1152}, v14")
    a("s_lshr_b32 s45, s40, 3")
    a("s_add_u32 s60, s45, s41")
    a("s_lshl_b32 s45, s43, 4")
    a("s_add_u32 s46, s42, s45")
    a("s_mul_i32 s46, s46, 1152")
    a(f"s_mul_i32 s47, s43, {32*1152}")
    a("s_lshl_b32 s48, s41, 7")
    a("s_add_u32 s47, s47, s48")
    a("s_lshl_b32 s50, s43, 11")
    a("s_mul_i32 s51, s43, 5120")
    a(f"s_add_u32 s51, s51, {LW}")
    a("s_waitcnt lgkmcnt(0)")
    srd(a, 16, 4, S * D * 2)
    srd(a, 20, 6, D * D * 2)
    first = [True]
    def round_issue(rho):
        if rho < 4:
            a(f"s_add_u32 s61, s60, {rho}")
            a("s_and_b32 s61, s61, 3")
        else:
            a("s_mov_b32 s61, 4")
        a("s_lshl_b32 s62, s61, 8")
        a("s_add_u32 s62, s62, s46")
        a(f"s_mul_i32 s63, s61, {128*1152}")
        a("s_add_u32 s63, s63, s47")
        a(f"s_add_u32 s64, s62, {8*1152}")
        def dx(h):
            kp = 2*rho + h
            a(f"s_add_u32 m0, s50, {LX + kp*8192 - h*128}")
            a(f"buffer_load_dwordx4 v12, s[16:19], s62 offen offset:{h*128} lds")
            a(f"s_add_u32 m0, s50, {LX + kp*8192 + 1024 - h*128}")
            a(f"buffer_load_dwordx4 v12, s[16:19], s64 offen offset:{h*128} lds")
        dx(0)
        if rho == 4:
            a("s_cmp_lg_u32 s43, 0")
            a("s_cbranch_scc1 L_q_g17")
        for p in range(4):
            a(f"s_add_u32 m0, s51, {rho*20480 + p*1024}")
            if p == 2: a(f"s_add_u32 s63, s63, {16*1152}")
            a(f"buffer_load_dwordx4 v{13 + (p & 1)}, s[20:23], s63 offen lds")
        if first[0]:
            first[0] = False
            a("s_cmp_lt_u32 s41, 6")
            a("s_cselect_b32 s24, s8, s10")
            a("s_cselect_b32 s25, s9, s11")
            a("s_cmp_lt_u32 s41, 4")
            a("s_cselect_b32 s24, s6, s24")
            a("s_cselect_b32 s25, s7, s25")
            csel(a, 26, D * D * 2, D * DH * 2)
            csel(a, 54, 1152, 36)
            a("s_lshl_b32 s55, s41, 5")
            a("s_add_u32 s56, s55, 1024")
            a("s_and_b32 s55, s55, 32")
            a("s_cmp_lt_u32 s41, 4")
            a("s_cselect_b32 s55, s56, s55")
            a("s_and_b32 s25, s25, 0xffff")
            a("s_mov_b32 s27, 0x00020000")
            a("s_lshl_b32 s56, s43, 5")
            a("s_mul_i32 s56, s56, s54")
            a("s_add_u32 s55, s55, s56")
            a("s_lshl_b32 s56, s54, 7")
            a("v_lshrrev_b32 v8, 1, v1")
            a("v_lshrrev_b32 v9, 2, v1")
            a("v_and_b32 v9, 4, v9")
            a("v_xor_b32 v8, v8, v9")
            a("v_and_b32 v9, 1, v1")
            a("v_lshlrev_b32 v9, 4, v9")
            a("v_mad_u32_u24 v15, v8, s54, v9")
        a("s_mul_i32 s65, s61, s56")
        a("s_add_u32 s65, s65, s55")
        a(f"s_add_u32 m0, s51, {rho*20480 + 4096}")
        a("buffer_load_dwordx4 v15, s[24:27], s65 offen lds")
        if rho < 4: dx(1)
        else:
            a("s_branch L_q_issued")
            a.label("L_q_g17")
            for p in range(4):
                if p == 2: a(f"s_add_u32 s63, s63, {16*1152}")
                a(f"buffer_load_dwordx4 {v(G17+4*p,4)}, v{13 + (p & 1)}, s[20:23], s63 offen")
            a("s_mul_i32 s65, s61, s56")
            a("s_add_u32 s65, s65, s55")
            a(f"buffer_load_dwordx4 {v(G17+16,4)}, v15, s[24:27], s65 offen")
            a.label("L_q_issued")
    round_issue(0); round_issue(1)
    stamp(a, 1)
    for rho in range(4):
        a(f"s_waitcnt vmcnt({9 if rho < 3 else 7})")
        a("s_barrier")
        if rho == 0: stamp(a, 4)
        if rho < 3: round_issue(rho + 2)
    a("s_waitcnt vmcnt(0)")
    a("s_cmp_lg_u32 s43, 1")
    a("s_cbranch_scc1 L_q_nog17")
    a(f"v_add_u32 v9, {LW}, v6")
    for p in range(5):
        a(f"ds_write_b128 v9, {v(G17+4*p,4)} offset:{p*1024}")
    a("s_waitcnt lgkmcnt(0)")
    a.label("L_q_nog17")
    a("s_barrier")
    stamp(a, 8)
    a("s_branch L_q_fin")
    a.label("L_q_aux")
    tr_addrs(a, "0")
    a("v_xor_b32 v7, 64, v2")
    a("v_xor_b32 v8, 64, v3")
    a("s_mul_i32 s45, s43, 5120")
    for r in (2, 3, 4, 5, 7, 8): a(f"v_add_u32 v{r}, s45, v{r}")
    for i in range(4): a(f"v_mov_b32 v{ONES+i}, 0x3f803f80")
    a("s_waitcnt lgkmcnt(0)")
    srd(a, 32, 12, WS_END)
    srd(a, 36, 14, D * D * 2)
    a("s_lshl_b32 s57, s43, 8")
    a("s_add_u32 s57, s57, s2")
    a("s_min_u32 s70, s57, 647")
    W = Lst()
    wo_job_loads(W, 70, 36, 71, 58, 1, 9, 12, 48)
    k0 = [i for i, x in enumerate(W) if x.startswith("buffer_load")][0]
    for x in W[:k0]: a(x)
    a("s_getpc_b64 s[66:67]")
    a.label("L_q_pc")
    a("s_lshr_b32 s68, s2, 3")
    a("s_lshl_b32 s68, s68, 2")
    a("s_add_u32 s68, s68, s43")
    a(f"s_min_u32 s68, s68, {MAIN_CODE_KB[0] - 1}")
    a("s_lshl_b32 s68, s68, 10")
    a("s_add_u32 s68, s68, main_kernel - L_q_pc")
    a("s_add_u32 s66, s66, s68")
    a("s_addc_u32 s67, s67, 0")
    a("s_mul_i32 s45, s43, 320")
    a(f"s_add_u32 s45, s45, {LE}")
    a("v_lshl_add_u32 v12, v10, 4, s45")
    a("s_mov_b32 s60, 0x00010001")
    a("s_mov_b32 s61, 0x00010001")
    def cs_round(rho):
        off = rho * 20480 if rho < 3 else 0
        if rho == 3:
            for r in (2, 3, 4, 5, 7, 8): a(f"v_add_u32 v{r}, 61440, v{r}")
        if rho == 4:
            a("s_cmp_ge_u32 s43, 2")
            a("s_cbranch_scc1 L_q_cs_skip")
            a("s_cmp_eq_u32 s43, 0")
            csel(a, 45, 20480, (-(61440 + 5120)) & 0xffffffff)
            for r in (2, 3, 4, 5, 7, 8): a(f"v_add_u32 v{r}, s45, v{r}")
        for t, r in enumerate((2, 3, 7, 8)):
            a(f"ds_read_b64_tr_b16 {v(AF+4*t,2)}, v{r} offset:{off}")
            a(f"ds_read_b64_tr_b16 {v(AF+4*t+2,2)}, v{r} offset:{off + 512}")
        a(f"ds_read_b64_tr_b16 {v(AF+16,2)}, v4 offset:{off}")
        a(f"ds_read_b64_tr_b16 {v(AF+18,2)}, v5 offset:{off}")
        a("s_waitcnt lgkmcnt(0)")
        for t in range(5):
            mfma16(a, CS + 4*t, AF + 4*t, ONES, None if rho == 0 else CS + 4*t)
        if rho == 4: a.label("L_q_cs_skip")
    for rho in range(5):
        a("s_barrier")
        if rho == 3:
            for x in W[k0:]: a(x)
            a(f"global_load_dword v124, v6, s[66:67]")
        cs_round(rho)
    a("s_nop 7")
    a("s_mov_b64 exec, s[60:61]")
    for t in range(5):
        a(f"ds_write_b128 v12, {v(CS+4*t,4)} offset:{t*64}")
    a("s_mov_b64 exec, -1")
    a("s_waitcnt lgkmcnt(0)")
    a("s_barrier")
    stamp(a, 9)
    a("s_cmp_ge_u32 s57, 648")
    a("s_cbranch_scc1 L_q_fin")
    a("s_waitcnt vmcnt(1)")
    merge_store(a, 48, 56, 32, 6, 58)
    a("s_cmp_ge_u32 s57, 28")
    a("s_cbranch_scc1 L_q_fin")
    for i in range(4): a(f"v_mov_b32 v{116+i}, 0")
    a("s_lshl_b32 s45, s57, 10")
    a(f"s_add_u32 s45, s45, {WS_FLAGS}")
    a(f"buffer_store_dwordx4 v[116:119], v6, s[32:35], s45 offen")
    a("s_branch L_q_fin")
    a.label("L_q_compute")
    a("s_getpc_b64 s[66:67]")
    a.label("L_q_pc2")
    a(f"s_sub_u32 s66, s66, L_q_pc2 - {name}")
    a("s_subb_u32 s67, s67, 0")
    a("s_sub_u32 s59, s3, 4")
    a("s_lshl_b32 s45, s59, 10")
    a("v_add_u32 v2, s45, v6")
    a(f"global_load_dwordx4 {v(T,4)}, v2, s[66:67]")
    a("v_and_b32 v12, 7, v1")
    a("v_xor_b32 v12, v10, v12")
    a("v_lshlrev_b32 v12, 4, v12")
    a("v_lshl_add_u32 v7, v11, 7, v12")
    a("s_lshl_b32 s45, s43, 11")
    a("v_add_u32 v7, s45, v7")
    a("v_xor_b32 v8, 64, v7")
    a("s_lshr_b32 s45, s59, 2")
    a("s_lshl_b32 s45, s45, 1")
    tr_addrs(a, "s45")
    for i in range(4): a(f"v_mov_b32 v{ONES+i}, 0x3f803f80")
    a("s_lshl_b32 s45, s43, 4")
    a("s_add_u32 s42, s42, s45")
    a("v_add_u32 v9, s42, v11")
    a("s_lshl_b32 s46, s43, 7")
    a(f"s_add_u32 s46, s46, {LE + 1280}")
    a("v_lshl_add_u32 v13, v11, 3, s46")
    a(f"v_lshlrev_b32 v12, 4, v10")
    a(f"v_add_u32 v12, {LE}, v12")
    a("v_and_b32 v14, 3, v1")
    a("v_cmp_eq_u32 s[60:61], 1, v14")
    a("v_cmp_eq_u32 s[62:63], 2, v14")
    a("v_cmp_eq_u32 s[64:65], 3, v14")
    a("v_bfe_u32 v15, v1, 2, 2")
    a("v_cmp_eq_u32 s[68:69], v15, v10")
    a("v_and_b32 v14, 1, v10")
    a("v_lshlrev_b32 v14, 5, v14")
    a("v_lshrrev_b32 v15, 1, v10")
    a("v_lshl_add_u32 v14, v15, 4, v14")
    a(f"v_mad_u32_u24 v{T+4}, v9, s44, v14")
    a("s_waitcnt lgkmcnt(0)")
    srd(a, 32, 12, WS_END)
    a("s_cmp_ge_u32 s59, 4")
    a("s_cbranch_scc1 L_q_nh1")
    for nh in range(2):
        if nh: a.label("L_q_nh1")
        nt = 3 - nh
        nr = 7 if nh == 0 else 5
        wregs = (2, 3, 4, 5) if nh == 0 else (2, 3)
        def reads(sx):
            if QDBG & 1:
                if sx == 0:
                    for _ in range(5): a("s_barrier")
                    stamp(a, 4)
            elif sx % 4 == 0:
                a("s_barrier")
                if sx == 0: stamp(a, 4)
            if sx in (8, 16):
                a("v_add_u32 v7, 32768, v7"); a("v_add_u32 v8, 32768, v8")
                for r in wregs: a(f"v_add_u32 v{r}, 40960, v{r}")
            if sx == 17:
                for r in wregs: a(f"v_subrev_u32 v{r}, 81920, v{r}")
            xb = XF + (sx % 3) * 4; ab = AF + (sx % 3) * 12
            kp = (sx >> 1) % 4; G = (sx % 8) if sx < 17 else 0
            a(f"ds_read_b128 {v(xb,4)}, v{7 + (sx & 1)} offset:{kp*8192}")
            for t in range(2):
                a(f"ds_read_b64_tr_b16 {v(ab+4*t,2)}, v{2+t} offset:{G*5120}")
                a(f"ds_read_b64_tr_b16 {v(ab+4*t+2,2)}, v{2+t} offset:{G*5120 + 512}")
            if nh == 0:
                a(f"ds_read_b64_tr_b16 {v(ab+8,2)}, v4 offset:{G*5120}")
                a(f"ds_read_b64_tr_b16 {v(ab+10,2)}, v5 offset:{G*5120}")
        reads(0); reads(1)
        for sx in range(18):
            a(f"s_waitcnt lgkmcnt({nr if sx < 17 else 0})")
            xb = XF + (sx % 3) * 4; ab = AF + (sx % 3) * 12
            for t in range(nt):
                if not QDBG & 2: mfma16(a, ACC + 4*t, ab + 4*t, xb, None if sx == 0 else ACC + 4*t)
            if nh == 1 and not QDBG & 2:
                mfma16(a, ACC + 8, ONES, xb, None if sx == 0 else ACC + 8)
                mfma16(a, GRAM, xb, xb, None if sx == 0 else GRAM)
            if sx + 2 < 18: reads(sx + 2)
        stamp(a, 7)
        if nh == 1:
            a(f"v_cndmask_b32 v15, v{GRAM}, v{GRAM+1}, s[60:61]")
            a(f"v_cndmask_b32 v15, v15, v{GRAM+2}, s[62:63]")
            a(f"v_cndmask_b32 v15, v15, v{GRAM+3}, s[64:65]")
            a(f"v_mul_f32 v14, {fbits(1.0/D)}, v{ACC+8}")
            a(f"v_mul_f32 v15, {fbits(1.0/D)}, v15")
            a("v_fma_f32 v15, -v14, v14, v15")
            a("v_max_f32 v15, 0, v15")
            a(f"v_add_f32 v15, {fbits(1e-5)}, v15")
            a("v_rsq_f32 v15, v15")
            a("s_mov_b64 exec, s[68:69]")
            a("ds_write_b64 v13, v[14:15]")
            a("s_mov_b64 exec, -1")
            a("s_waitcnt lgkmcnt(0)")
        a("s_barrier")
        stamp(a, 9)
        tiles = (0, 1, 4) if nh == 0 else (2, 3)
        a("ds_read_b64 v[14:15], v13")
        for t, tl in enumerate(tiles):
            for w in range(4):
                a(f"ds_read_b128 {v(16 + t*16 + w*4, 4)}, v12 offset:{w*320 + tl*64}")
        a("s_lshl_b32 s46, s41, 7")
        a(f"s_add_u32 s46, s46, {WS_Q + nh*64}")
        a(f"s_waitcnt lgkmcnt({4*nt})")
        a("v_mov_b32 v13, v15")
        a(f"v_mul_f32 v15, {fbits(QSCALE)}, v15")
        for t in range(nt):
            a(f"s_waitcnt lgkmcnt({4*(nt-1-t)})")
            b = 16 + t*16
            for i in range(4):
                a(f"v_add_f32 v{b+i}, v{b+i}, v{b+4+i}")
                a(f"v_add_f32 v{b+8+i}, v{b+8+i}, v{b+12+i}")
            for i in range(4):
                a(f"v_add_f32 v{b+i}, v{b+i}, v{b+8+i}")
            for i in range(4):
                a(f"v_fma_f32 v{ACC+4*t+i}, -v14, v{b+i}, v{ACC+4*t+i}")
            if t < 2:
                for i in range(4):
                    a(f"v_mul_f32 v{ACC+4*t+i}, v{ACC+4*t+i}, v15")
                a(f"v_cvt_pk_bf16_f32 v{CS+2*t}, v{ACC+4*t}, v{ACC+4*t+1}")
                a(f"v_cvt_pk_bf16_f32 v{CS+2*t+1}, v{ACC+4*t+2}, v{ACC+4*t+3}")
            if t == 1:
                a(f"v_permlane16_swap_b32 v{CS}, v{CS+2}")
                a(f"v_permlane16_swap_b32 v{CS+1}, v{CS+3}")
                a(f"buffer_store_dwordx4 {v(CS,4)}, v{T+4}, s[32:35], s46 offen")
        if nh == 0:
            special(a, ACC + 8, CS + 4)
    a.label("L_q_fin")
    for _ in range(int(os.environ.get("QPAD", "0"))): a("s_sleep 32")
    stamp_dump(a, 1)
    a.label("L_q_end")
    a("s_endpgm")
    return a.finish(), descriptor(name, 128, 80)

def tr_addrs(a, t0):
    a("v_bfe_u32 v16, v1, 2, 2")
    a("v_lshl_add_u32 v17, v10, 3, v16")
    a("v_lshrrev_b32 v18, 1, v16")
    a("v_and_b32 v19, 1, v10")
    a("v_lshl_add_u32 v18, v19, 1, v18")
    a(f"v_xor_b32 v18, {t0}, v18")
    a("v_lshlrev_b32 v18, 5, v18")
    a("v_lshl_add_u32 v2, v17, 7, v18")
    a("v_and_b32 v18, 3, v1")
    a("v_lshl_add_u32 v2, v18, 3, v2")
    a(f"v_add_u32 v2, {LW}, v2")
    a("v_xor_b32 v3, 32, v2")
    a("v_lshlrev_b32 v19, 2, v19")
    a("v_xor_b32 v17, v17, v19")
    a("v_lshlrev_b32 v4, 5, v17")
    a("v_lshl_add_u32 v4, v18, 3, v4")
    a(f"v_add_u32 v4, {LW + 4096}, v4")
    a("v_xor_b32 v5, 128, v4")

def special(a, A, Pk):
    a("s_cmp_lt_u32 s41, 4")
    a("s_cselect_b64 vcc, -1, 0")
    a("v_cndmask_b32 v13, v13, v15, vcc")
    for i in range(4): a(f"v_mul_f32 v{A+i}, v{A+i}, v13")
    a(f"v_cvt_pk_bf16_f32 v{Pk}, v{A}, v{A+1}")
    a(f"v_cvt_pk_bf16_f32 v{Pk+1}, v{A+2}, v{A+3}")
    a("s_cbranch_scc0 L_q_kv")
    a("v_lshlrev_b32 v2, 3, v10")
    a("v_mad_u32_u24 v2, v9, s44, v2")
    a("s_lshl_b32 s46, s41, 5")
    a(f"s_add_u32 s46, s46, {WS_Q + 1024}")
    a(f"buffer_store_dwordx2 {v(Pk,2)}, v2, s[32:35], s46 offen")
    a("s_branch L_q_fin")
    a.label("L_q_kv")
    a("s_lshr_b32 s45, s42, 7")
    a(f"s_mul_i32 s45, s45, {KV_BLK}")
    a(f"s_add_u32 s45, s45, {WS_KV}")
    a("s_bfe_u32 s46, s42, 0x20005")
    a("v_and_b32 v2, 31, v9")
    a("s_cmp_ge_u32 s41, 6")
    a("s_cbranch_scc1 L_q_v")
    sigma_v(a, 3, 2, 4, 5)
    a(f"v_mul_f32 v14, v{A}, v{A}")
    a(f"v_fmac_f32 v14, v{A+1}, v{A+1}")
    a("s_lshr_b32 s49, s42, 2")
    a(f"s_add_u32 s49, s49, {WS_KMAX}")
    a("s_cmp_eq_u32 s41, 5")
    a("s_cbranch_scc1 L_q_k1")
    a("v_lshrrev_b32 v4, 1, v10")
    a("v_lshl_add_u32 v4, v4, 5, v3")
    a("v_lshlrev_b32 v4, 4, v4")
    a("v_and_b32 v5, 1, v10")
    a("v_lshl_add_u32 v4, v5, 3, v4")
    a("s_lshl_b32 s47, s46, 10")
    a("s_add_u32 s47, s47, s45")
    a(f"buffer_store_dwordx2 {v(Pk,2)}, v4, s[32:35], s47 offen")
    a(f"v_fmac_f32 v14, v{A+2}, v{A+2}")
    a(f"v_fmac_f32 v14, v{A+3}, v{A+3}")
    a("v_mov_b32 v15, v14")
    a("v_permlane32_swap_b32 v14, v15")
    a("v_add_f32 v14, v14, v15")
    a("v_mov_b32 v15, v14")
    a("v_permlane16_swap_b32 v14, v15")
    a("v_add_f32 v14, v14, v15")
    a("s_branch L_q_kmax")
    a.label("L_q_k1")
    a("v_lshlrev_b32 v3, 4, v3")
    a("s_lshl_b32 s48, s46, 2")
    a("s_add_u32 s48, s48, s45")
    a("s_add_u32 s48, s48, 4096")
    a("s_add_u32 s49, s49, 512")
    a("s_mov_b64 exec, 0xffff")
    a(f"buffer_store_dword v{Pk}, v3, s[32:35], s48 offen")
    a("s_mov_b64 exec, -1")
    a.label("L_q_kmax")
    a("s_nop 1")
    for rr in (8, 4, 2, 1):
        a(f"v_max_f32_dpp v14, v14, v14 row_ror:{rr} row_mask:0xf bank_mask:0xf")
    a("v_mov_b32 v2, 0")
    a("s_mov_b64 exec, 1")
    a("buffer_store_dword v14, v2, s[32:35], s49 offen")
    a("s_branch L_q_fin")
    a.label("L_q_v")
    a("v_lshrrev_b32 v5, 3, v2")
    a("v_mul_u32_u24 v5, 304, v5")
    a("v_and_b32 v4, 7, v2")
    a("v_lshl_add_u32 v5, v4, 1, v5")
    a("s_mul_i32 s47, s46, 1216")
    a("s_add_u32 s47, s47, s45")
    a("s_add_u32 s47, s47, 4608")
    a("s_cmp_eq_u32 s41, 7")
    a("s_cbranch_scc1 L_q_v1")
    a("v_lshl_add_u32 v4, v10, 6, v5")
    a(f"buffer_store_short v{Pk}, v4, s[32:35], s47 offen")
    a(f"buffer_store_short_d16_hi v{Pk}, v4, s[32:35], s47 offen offset:16")
    a(f"buffer_store_short v{Pk+1}, v4, s[32:35], s47 offen offset:32")
    a(f"buffer_store_short_d16_hi v{Pk+1}, v4, s[32:35], s47 offen offset:48")
    a("s_branch L_q_fin")
    a.label("L_q_v1")
    a("v_mov_b32 v4, 0x3f80")
    a("s_mov_b64 exec, 0xffff")
    a(f"buffer_store_short v{Pk}, v5, s[32:35], s47 offen offset:256")
    a(f"buffer_store_short_d16_hi v{Pk}, v5, s[32:35], s47 offen offset:272")
    a(f"buffer_store_short v4, v5, s[32:35], s47 offen offset:288")
    a("s_branch L_q_fin")
```

```python
S, D, H, DH, F = 2048, 576, 32, 18, 4608
KV_BLK = 9472
KV_BYTES = 16 * KV_BLK
WS_KV = 0
WS_KMAX = 151552
WS_FLAGS = 152 * 1024
WS_FPACK = WS_FLAGS
WS_FY = WS_FLAGS + 4096
WS_FP1 = WS_FLAGS + 12288
WS_FP2 = WS_FLAGS + 20480
FLAGS_BYTES = 28672
WS_WO = 180 * 1024
WS_Q = 1 << 20
WS_Y = WS_Q + S * D * 2
WS_W = 6 << 20
SLICE = 1296 * 1024
WS_P = WS_W + 8 * SLICE
WS_END = WS_P + 8 * S * D * 2
assert WS_WO + 663552 <= WS_Q and WS_Y + S * D * 2 <= WS_W
NAME = "sequential_preLN__grouped_kv_mqa__mixer_channel_mlp__prompt"
KA = dict(x=0, wq=8, wk=16, wv=24, wo=32, bx=40, w1=48, b1=56, w2=64, b2=72, out=80, dbg=88, ws=96)
def sigma(m):
    return (m & 0x13) | ((m & 4) << 1) | ((m & 8) >> 1)
```

```python
from common import *
from k_pack import *
import math

MAPPING = os.environ.get("MAPPING", "A")
VZERO = os.environ.get("VZERO", "1") == "1"
WMOD = os.environ.get("WMOD", "sc1")
PKGELU = os.environ.get("PKGELU", "0") == "1"
PACE = int(os.environ.get("PACE", "1"))
DBG = int(os.environ.get("DBG", "0"))
YMOD = os.environ.get("YMOD", "")
GATEA = os.environ.get("GATEA", "1") == "1"
PK_T = tuple(int(x) for x in os.environ.get("PK_T", "6,12").split(","))
RSLEEP = int(os.environ.get("RSLEEP", "4"))
NOGELU = os.environ.get("NOGELU", "0") == "1"
LDS_MAIN = 163840
L_OS = KV_BYTES
L_CP = L_OS + 8 * 608
L_ST = L_CP + 6144
L_CNT = L_ST + 512
L_Y = 0; L_H = 73728; L_B1 = 147456; L_B1D = L_B1 + 2304; L_HH = L_B1 + 4608
assert L_HH + 9216 <= L_ST and L_CNT + 16 <= LDS_MAIN
WS_, XS_ = 32, 36
KA_, KR_, VA_ = 2, 3, 4
Q2POS = {2: 10, 0: 12, 3: 14, 1: 16}; QX = (12, 17)
Q1 = 20; SB = (24, 40); P = 56; O = 64; KB = (80, 84); KRB = (88, 92); VB = (96, 104)
TPI = 16
CI = 16; AR = 28; ACC = 136; BR = 184; GT = 232
RDS = 9
WSR = 64
C0 = -2.0 * 0.7978845608028654 * math.log2(math.e)
C1 = C0 * 0.044715
POLL_MAX = 1 << 20

def koff(t): return (t >> 2) * KV_BLK + (t & 3) * 1024
def kroff(blk): return blk * KV_BLK
def voff(t, mf): return (t >> 2) * KV_BLK + (t & 3) * 1216 + mf * 608

def tile(a, t, bg=None, nbg=0):
    Sc = SB[t & 1]; Sn = SB[(t + 1) & 1]
    def B(k):
        while bg and k > 0:
            x = bg.pop(0); a(x)
            if not x.startswith("s_"): k -= 1
    ex = lambda i: a(f"v_exp_f32 v{Sc+i}, v{Sc+i}")
    cv = lambda i: a(f"v_cvt_pk_bf16_f32 v{P+i}, v{Sc+2*i}, v{Sc+2*i+1}")
    a(f"s_waitcnt lgkmcnt({2 if (t & 3) == 2 else 1})")
    mfma32(a, Sn, KB[(t + 1) & 1], Q1, None)
    a(f"ds_read_b128 {v(VB[(t+1) & 1],4)}, v{VA_} offset:{voff(t+1,0)}")
    for i in range(0, 4): ex(i)
    mfma32(a, O, VB[(t + 1) & 1] + 4, P + 4, O)
    a(f"ds_read_b128 {v(VB[(t+1) & 1]+4,4)}, v{VA_} offset:{voff(t+1,1)}")
    cv(0); cv(1)
    for i in range(4, 8): ex(i)
    mfma32(a, Sn, KRB[((t + 1) >> 2) & 1], Q2POS[(t + 1) & 3], Sn)
    a(f"ds_read_b128 {v(KB[(t+1) & 1],4)}, v{KA_} offset:{koff(t+3)}")
    cv(2); cv(3)
    for i in range(8, 12): ex(i)
    mfma32(a, O, VB[t & 1], P, O)
    if (t & 3) == 1:
        a(f"ds_read_b128 {v(KRB[((t>>2)+1) & 1],4)}, v{KR_} offset:{kroff((t>>2)+1)}")
    cv(4); cv(5)
    for i in range(12, 16): ex(i)
    cv(6); cv(7)

def pipe_start(a):
    a(f"ds_read_b128 {v(KB[0],4)}, v{KA_} offset:{koff(0)}")
    a(f"ds_read_b128 {v(KRB[0],4)}, v{KR_} offset:{kroff(0)}")
    a(f"ds_read_b128 {v(KB[1],4)}, v{KA_} offset:{koff(1)}")
    a(f"ds_read_b128 {v(VB[0],4)}, v{VA_} offset:{voff(0,0)}")
    a(f"ds_read_b128 {v(VB[0]+4,4)}, v{VA_} offset:{voff(0,1)}")
    a("s_waitcnt lgkmcnt(3)")
    mfma32(a, SB[0], KB[0], Q1, None)
    mfma32(a, SB[0], KRB[0], Q2POS[0], SB[0])
    a(f"ds_read_b128 {v(KB[0],4)}, v{KA_} offset:{koff(2)}")
    a("s_nop 10")

def wo0_loads(a, sx, vl):
    b = 112 + (sx % 4) * 36
    for t in range(9):
        if t == 4 or t == 8: a("s_add_u32 s61, s61, 4096")
        a(f"buffer_load_dwordx4 {v(b+4*t,4)}, v{vl}, {s(WS_,4)}, s61 offen offset:{(t%4)*1024}")
    a(f"s_add_u32 s61, s61, {36*1024 - 8192}")

def lds_poll(a, tag, vaddr, vtmp, thr):
    a(f"s_mov_b32 s49, {POLL_MAX}")
    a.label(f"L_{tag}")
    a(f"ds_read_b32 v{vtmp}, v{vaddr}")
    a("s_waitcnt lgkmcnt(0)")
    a(f"v_readfirstlane_b32 s47, v{vtmp}")
    a("s_sub_u32 s49, s49, 1")
    a(f"s_cbranch_scc1 L_{tag}_ok")
    a(f"s_cmp_ge_u32 s47, {thr}")
    a(f"s_cbranch_scc1 L_{tag}_ok")
    a("s_sleep 2")
    a(f"s_branch L_{tag}")
    a.label(f"L_{tag}_ok")

def flag_poll(a, tag, vaddr, vtmp, s_off, width, sleep=1):
    a(f"s_mov_b32 s49, {POLL_MAX}")
    a.label(f"L_{tag}")
    if width == 1:
        a(f"buffer_load_dword v{vtmp}, v{vaddr}, {s(WS_,4)}, s{s_off} offen sc1")
    else:
        a(f"buffer_load_dwordx2 {v(vtmp,2)}, v{vaddr}, {s(WS_,4)}, s{s_off} offen sc1")
    a("s_waitcnt vmcnt(0)")
    if width == 2: a(f"v_min_u32 v{vtmp}, v{vtmp}, v{vtmp+1}")
    a(f"v_cmp_eq_u32 vcc, 0, v{vtmp}")
    a("s_sub_u32 s49, s49, 1")
    a(f"s_cbranch_scc1 L_{tag}_ok")
    a("s_nop 1")
    a("s_cmp_eq_u64 vcc, 0")
    a(f"s_cbranch_scc1 L_{tag}_ok")
    a(f"s_sleep {sleep}")
    a(f"s_branch L_{tag}")
    a.label(f"L_{tag}_ok")

def flag_store(a, base, vt):
    a("s_lshl_b32 s46, s57, 3")
    a("s_add_u32 s46, s46, s3")
    a("s_lshl_b32 s46, s46, 2")
    a(f"s_add_u32 s46, s46, {base}")
    a(f"v_mov_b32 v{vt}, 0")
    a(f"v_mov_b32 v{vt+1}, 1")
    a("s_mov_b64 exec, 1")
    a(f"buffer_store_dword v{vt+1}, v{vt}, {s(WS_,4)}, s46 offen sc1")
    a("s_mov_b64 exec, -1")

def a_loads(a, step_slot):
    for t in range(3):
        a(f"buffer_load_dwordx4 {v(AR + step_slot*12 + 4*t, 4)}, v2, {s(WSR,4)}, s70 offen offset:{t*1024} {WMOD}")
    a("s_add_u32 s70, s70, 3072")

def prologue(a):
    a(f"s_load_dwordx2 s[4:5], s[0:1], {KA['x']}")
    a(f"s_load_dwordx8 s[16:23], s[0:1], {KA['w1']}")
    a(f"s_load_dwordx2 s[6:7], s[0:1], {KA['out']}")
    a(f"s_load_dwordx2 s[12:13], s[0:1], {KA['ws']}")
    a("v_lshrrev_b32 v7, 6, v0")
    a("v_and_b32 v1, 63, v0")
    a("v_readfirstlane_b32 s3, v7")
    if MAPPING == "A":
        a("s_and_b32 s43, s2, 7")
        a("s_lshr_b32 s56, s2, 3")
    else:
        a("s_and_b32 s43, s2, 3")
        a("s_lshl_b32 s43, s43, 1")
        a("s_bfe_u32 s45, s2, 0x10003")
        a("s_add_u32 s43, s43, s45")
        a("s_lshr_b32 s56, s2, 4")
        a("s_lshl_b32 s56, s56, 1")
        a("s_bfe_u32 s45, s2, 0x10002")
        a("s_add_u32 s56, s56, s45")
    a("s_lshl_b32 s57, s56, 3")
    a("s_add_u32 s57, s57, s43")
    a("s_lshl_b32 s42, s57, 3")
    a("s_and_b32 s40, s3, 3")
    a("s_lshr_b32 s41, s3, 2")
    a("s_movk_i32 s44, 1152")
    a("v_and_b32 v5, 15, v1")
    a("v_mul_u32_u24 v5, 36, v5")
    a("v_bfe_u32 v6, v1, 4, 1")
    a("v_mad_u32_u24 v5, v6, s44, v5")
    a("v_lshrrev_b32 v7, 5, v1")
    a("v_lshl_add_u32 v6, v7, 4, v5")
    a("s_lshl_b32 s45, s40, 1")
    a("s_add_u32 s45, s45, s42")
    a("s_mul_i32 s45, s45, 1152")
    a("s_mul_i32 s46, s41, 576")
    a("s_add_u32 s45, s45, s46")
    a(f"s_add_u32 s45, s45, {WS_Q}")
    a("v_lshlrev_b32 v8, 3, v1")
    a("v_lshlrev_b32 v9, 4, v1")
    a("s_lshl_b32 s47, s3, 10")
    a("s_waitcnt lgkmcnt(0)")
    srd(a, WS_, 12, WS_END)

def attention(a):
    ws = WS_
    a(f"buffer_load_dwordx4 {v(Q1,4)}, v6, {s(ws,4)}, s45 offen")
    a(f"buffer_load_dword v{QX[0]}, v5, {s(ws,4)}, s45 offen offset:32")
    a(f"s_mov_b32 s46, {WS_KMAX}")
    a(f"buffer_load_dwordx4 v[24:27], v9, {s(ws,4)}, s46 offen")
    for i in range(4):
        a(f"s_add_u32 m0, s47, {i*8192}")
        a(f"s_add_u32 s46, s47, {WS_KV + i*8192}")
        a(f"buffer_load_dwordx4 v9, {s(ws,4)}, s46 offen lds")
    srd(a, XS_, 4, S * D * 2)
    a("s_cmp_lg_u32 s41, 0")
    a("s_cbranch_scc0 L_a_nodma")
    a("s_lshl_b32 s47, s40, 10")
    for i in range(29):
        if i == 6:
            a("s_waitcnt vmcnt(3)")
            a("s_barrier")
        a(f"s_add_u32 m0, s47, {32768 + i*4096}")
        a(f"s_add_u32 s46, s47, {WS_KV + 32768 + i*4096}")
        a(f"buffer_load_dwordx4 v9, {s(ws,4)}, s46 offen lds")
    a("s_setprio 3")
    a("s_branch L_a_dmadone")
    a.label("L_a_nodma")
    a("s_setprio 2")
    a.label("L_a_dmadone")
    a(f"v_mov_b32 v{KA_}, v9")
    a(f"v_add_u32 v{KR_}, 4096, v9")
    a(f"v_mov_b32 v8, {4608 + 288}")
    a("v_cmp_gt_u32 s[50:51], 32, v1")
    a(f"v_cndmask_b32 v{KR_}, v8, v{KR_}, s[50:51]")
    a("v_and_b32 v5, 31, v1")
    sigma_v(a, 6, 5, 8, 9)
    if VZERO:
        a("v_mov_b32 v8, 0x8000")
    else:
        a("v_add_u32 v8, -20, v5")
        a("v_cmp_gt_u32 vcc, 8, v8")
        a("v_cndmask_b32 v8, 4, 0, vcc")
    a("v_cmp_lt_u32 vcc, 18, v5")
    a("v_cndmask_b32 v6, v6, v8, vcc")
    a("v_lshlrev_b32 v6, 4, v6")
    a("s_movk_i32 s46, 304")
    a(f"v_mad_u32_u24 v{VA_}, v7, s46, v6")
    a(f"v_add_u32 v{VA_}, 4608, v{VA_}")
    for r in (10, 11, 13, 14, 15, 16, 18, 19): a(f"v_mov_b32 v{r}, 0")
    for r in range(O, O + 16): a(f"v_mov_b32 v{r}, 0")
    for r in range(P + 4, P + 8): a(f"v_mov_b32 v{r}, 0")
    for r in range(VB[1] + 4, VB[1] + 8): a(f"v_mov_b32 v{r}, 0")
    stamp(a, 1)
    a("s_cmp_lg_u32 s41, 0")
    a("s_cbranch_scc1 L_a_qready")
    a(f"v_mov_b32 v8, {L_CNT}")
    a("ds_write_b32 v8, v10")
    a("s_waitcnt vmcnt(4)")
    a.label("L_a_qready")
    a(f"v_dot2_f32_bf16 v5, v{Q1}, v{Q1}, 0")
    for i in range(1, 4):
        a(f"v_dot2_f32_bf16 v5, v{Q1+i}, v{Q1+i}, v5")
    a("v_max_f32 v24, v24, v25")
    a("v_max3_f32 v24, v24, v26, v27")
    for rr in (8, 4, 2, 1):
        a(f"v_max_f32_dpp v24, v24, v24 row_ror:{rr} row_mask:0xf bank_mask:0xf")
    a("v_mov_b32 v25, v24")
    a("v_mov_b32 v6, v5")
    a("v_permlane16_swap_b32 v24, v25")
    a("v_permlane32_swap_b32 v5, v6")
    a("v_max_f32 v24, v24, v25")
    a("v_add_f32 v5, v5, v6")
    a("v_mov_b32 v25, v24")
    a(f"v_dot2_f32_bf16 v5, v{QX[0]}, v{QX[0]}, v5")
    a("v_permlane32_swap_b32 v24, v25")
    a("v_add_f32 v24, v24, v25")
    a("v_mul_f32 v5, v5, v24")
    a("v_sqrt_f32 v5, v5")
    a(f"v_mul_f32 v5, {fbits(-1.02)}, v5")
    a("v_cvt_pk_bf16_f32 v5, v5, 0")
    a(f"v_cndmask_b32 v{QX[0]}, v5, v{QX[0]}, s[50:51]")
    a(f"v_mov_b32 v{QX[1]}, v{QX[0]}")
    a("s_mov_b32 s60, 0")
    a("s_mov_b32 s48, 0")
    a("v_lshlrev_b32 v9, 4, v1")
    a("s_cmp_lg_u32 s41, 0")
    a("s_cbranch_scc1 L_a_young_pre")
    a(f"s_mov_b32 s59, {16 // TPI}")
    a("s_waitcnt vmcnt(0) lgkmcnt(0)")
    a("s_barrier")
    a.label("L_a_start")
    stamp(a, 3)
    pipe_start(a)
    a.raw(".p2align 6")
    a.label("L_a_loop")
    for t in range(TPI): tile(a, t)
    a.label("L_a_loop_end")
    step = (TPI // 4) * KV_BLK
    a(f"v_add_u32 v{KA_}, {step}, v{KA_}")
    a(f"v_add_u32 v{KR_}, {step}, v{KR_}")
    a(f"v_add_u32 v{VA_}, {step}, v{VA_}")
    a("s_add_u32 s48, s48, 1")
    a("s_cmp_eq_u32 s48, s59")
    a("s_cbranch_scc1 L_a_inter")
    a(f"s_cmp_lt_u32 s48, {64 // TPI}")
    a("s_cbranch_scc1 L_a_loop")
    mfma32(a, O, VB[1] + 4, P + 4, O)
    a.label("L_a_norm")
    stamp(a, 4)
    a("s_waitcnt lgkmcnt(0)")
    a("s_nop 12")
    a(f"v_mov_b32 v5, v{O+10}")
    a(f"v_mov_b32 v6, v{O+10}")
    a("v_permlane32_swap_b32 v5, v6")
    a(f"v_mov_b32 v7, {fbits(2.0**-40)}")
    a("v_cmp_nge_f32 vcc, v5, v7")
    a("s_nop 3")
    a("s_cmp_lg_u64 vcc, 0")
    a("s_cselect_b32 s49, 1, 0")
    a("s_andn2_b32 s49, s49, s60")
    a("s_cbranch_scc1 L_a_fallback")
    a("v_rcp_f32 v5, v5")
    a("v_bfe_u32 v6, v1, 4, 1")
    a("s_lshl_b32 s46, s40, 1")
    a("v_add_u32 v6, s46, v6")
    a("v_mul_u32_u24 v6, 608, v6")
    a("v_and_b32 v7, 15, v1")
    a("v_lshl_add_u32 v8, v7, 2, v6")
    a("v_lshl_add_u32 v6, v7, 5, v6")
    a("v_lshrrev_b32 v7, 5, v1")
    a("v_lshl_add_u32 v6, v7, 4, v6")
    a(f"v_add_u32 v6, {L_OS}, v6")
    a(f"v_add_u32 v8, {L_OS + 512}, v8")
    for i in range(10):
        a(f"v_mul_f32 v{O+i}, v{O+i}, v5")
    for i in range(5):
        a(f"v_cvt_pk_bf16_f32 v{P+i}, v{O+2*i}, v{O+2*i+1}")
    a("s_cmp_eq_u32 s41, 0")
    a("s_cbranch_scc1 L_a_poll2_ok")
    a(f"v_mov_b32 v9, {L_CNT}")
    lds_poll(a, "a_poll2", 9, 7, 8)
    a(f"ds_write_b128 v6, {v(P,4)}")
    a("s_mov_b64 exec, 0xffffffff")
    a(f"ds_write_b32 v8, v{P+4}")
    a("s_mov_b64 exec, -1")
    a("v_and_b32 v5, 7, v1")
    a("v_mul_u32_u24 v4, 608, v5")
    a("v_lshrrev_b32 v6, 4, v1")
    a("v_lshl_add_u32 v4, v6, 4, v4")
    a(f"v_add_u32 v4, {L_OS}, v4")
    a("v_lshl_add_u32 v3, v6, 3, v5")
    a("v_lshlrev_b32 v3, 4, v3")
    a("s_mul_i32 s46, s40, 1536")
    a(f"s_add_u32 s46, s46, {L_CP}")
    a("v_add_u32 v3, s46, v3")
    a("v_lshlrev_b32 v2, 4, v1")
    a("s_mul_i32 s70, s3, 165888")
    a(f"s_mul_i32 s47, s43, {SLICE}")
    a("s_add_u32 s70, s70, s47")
    a(f"s_add_u32 s70, s70, {WS_W}")
    a(f"s_mov_b32 s{WSR}, s12")
    a(f"s_and_b32 s{WSR+1}, s13, 0xffff")
    a(f"s_add_u32 s{WSR+2}, s70, 165888")
    a(f"s_mov_b32 s{WSR+3}, 0x00020000")
    a("s_mov_b32 s54, 0x00ff00ff")
    a("s_mov_b32 s55, 0x00ff00ff")
    a("s_cmp_lg_u32 s41, 0")
    a("s_cbranch_scc1 L_a_young_tail")

    WA = 16
    WB = 112
    a(f"v_mov_b32 v8, {L_CNT}")
    a("v_mov_b32 v9, 1")
    a("s_waitcnt lgkmcnt(0)")
    a("s_mov_b64 exec, 1")
    a("ds_add_u32 v8, v9")
    a("s_mov_b64 exec, -1")
    a("s_mul_i32 s61, s40, 9216")
    a(f"s_add_u32 s61, s61, {WS_WO}")
    for sx in range(4): wo0_loads(a, sx, 2)
    a("v_mul_u32_u24 v10, 1152, v5")
    a("v_lshl_add_u32 v11, v6, 3, v10")
    a("v_lshl_add_u32 v10, v6, 4, v10")
    a("s_mul_i32 s46, s42, 1152")
    a("s_mul_i32 s47, s40, 288")
    a("s_add_u32 s52, s46, s47")
    for i in range(4):
        a(f"buffer_load_dwordx4 {v(92+4*i,4)}, v10, {s(XS_,4)}, s52 offen offset:{i*64}")
    a(f"buffer_load_dwordx2 v[108:109], v11, {s(XS_,4)}, s52 offen offset:256")
    lds_poll(a, "a_poll", 8, 9, 4)
    stamp(a, 5)
    for sx in range(9):
        a(f"ds_read_b128 {v(56+4*sx,4)}, v4 offset:{sx*64}")
    a("v_mov_b32 v9, 1")
    a("s_waitcnt lgkmcnt(0)")
    a("s_mov_b64 exec, 1")
    a("ds_add_u32 v8, v9")
    a("s_mov_b64 exec, -1")
    a("s_setprio 0")
    for sx in range(9):
        a(f"s_waitcnt vmcnt({min(3, 8 - sx)*9 + (5 if sx < 4 else 0)})")
        b = WB + (sx % 4) * 36
        for t in range(9):
            mfma16(a, WA + 4*t, b + 4*t, 56 + 4*sx, None if sx == 0 else WA + 4*t)
        if sx + 4 < 9: wo0_loads(a, sx + 4, 2)
    a("s_setprio 2")
    a("s_mov_b32 s46, 0x00003f80")
    a("s_mov_b32 s47, 0x3f800000")
    for k in list(range(12, 18)) + list(range(12)):
        a(f"v_dot2_f32_bf16 v{WA+2*k}, v{92+k}, s46, v{WA+2*k}")
        a(f"v_dot2_f32_bf16 v{WA+2*k+1}, v{92+k}, s47, v{WA+2*k+1}")
    stamp(a, 23)
    a("s_mov_b64 exec, s[54:55]")
    for t in range(3):
        a(f"ds_write_b128 v3, {v(WA+24+4*t,4)} offset:{t*512}")
    a("s_mov_b64 exec, -1")
    a("s_waitcnt lgkmcnt(0)")
    a("s_mul_i32 s46, s40, 9216")
    a(f"s_add_u32 s46, s46, {WS_WO + 9*36*1024}")
    for sx in range(9):
        for t in range(6):
            if t == 4: a("s_add_u32 s46, s46, 4096")
            a(f"buffer_load_dwordx4 {v(40+(sx*6+t)*4,4)}, v2, {s(ws,4)}, s46 offen offset:{(t%4)*1024}")
        a(f"s_add_u32 s46, s46, {36*1024 - 4096}")
    a("v_lshlrev_b32 v8, 3, v1")
    a("s_lshl_b32 s46, s43, 9")
    a(f"s_add_u32 s46, s46, {WS_FPACK}")
    flag_poll(a, "a_pkpoll", 8, 10, 46, 2, sleep=8)
    stamp(a, 6)
    a("s_barrier")
    stamp(a, 7)
    a(f"ds_read_b128 v[8:11], v4 offset:0")
    for sx in range(9):
        if sx + 1 < 9:
            a(f"ds_read_b128 {v(8+((sx+1)&1)*4,4)}, v4 offset:{(sx+1)*64}")
        a(f"s_waitcnt lgkmcnt({1 if sx+1 < 9 else 0})")
        for t in range(6):
            mfma16(a, WA + 4*t, 40 + (sx*6+t)*4, 8 + (sx&1)*4, WA + 4*t)
    ln_tail(a, WA, 6, 0)
    a("s_branch L_m_roleB")

    a.label("L_a_young_tail")
    a("s_waitcnt vmcnt(0) lgkmcnt(0)")
    stamp(a, 6)
    a("s_barrier")
    stamp(a, 7)
    for t in range(3):
        a(f"ds_read_b128 {v(WA+4*t,4)}, v3 offset:{t*512}")
    for sx in range(9):
        a(f"ds_read_b128 {v(112+4*sx,4)}, v4 offset:{sx*64}")
    for sx in range(9):
        a(f"s_waitcnt lgkmcnt({8-sx})")
        for t in range(3):
            mfma16(a, WA + 4*t, 148 + (sx*3+t)*4, 112 + 4*sx, WA + 4*t)
    ln_tail(a, WA, 3, 6)
    for k in range(3): a_loads(a, k)
    a("s_waitcnt vmcnt(9)")
    flag_store(a, WS_FY, 8)
    stamp(a, 26); stamp_rt(a, 40)
    for k in range(3, RDS - 1): a_loads(a, k)
    a("s_branch L_m_roleA")

    a.label("L_a_inter")
    a("s_barrier")
    a("s_branch L_a_loop")

    a.label("L_a_young_pre")
    a("s_lshl_b32 s58, s56, 2")
    a("s_add_u32 s58, s58, s40")
    a("s_min_u32 s59, s58, 119")
    sja, selA, selB = w_pack_setup(a, 59, 43, 16, 20, 24, 72, 61, 62, 63, 1, 5, 6, 7)
    a("s_mov_b32 s59, 99")
    a("s_mov_b32 s52, s63")
    a("s_waitcnt vmcnt(8)")
    w_pack_loads(a, 2, 24, 61, 62, sja, 5, 6, 112)
    a("s_waitcnt vmcnt(32)")
    stamp(a, 2)
    a("s_barrier")
    a("s_waitcnt vmcnt(30)")
    w_pack_loads(a, 2, 24, 61, 62, sja, 5, 6, 144)
    stamp(a, 20)
    pipe_start(a)
    for t in range(TPI):
        tile(a, t)
        if t == PK_T[0]:
            for st in range(4):
                a(f"s_waitcnt vmcnt({(3-st)*16 + st*3})")
                w_pack_stores(a, 112 + st*16, 176 + (st & 1)*12, selA, selB, ws, 9, 63)
            for i in range(4): a(f"v_mov_b32 v{200+i}, -1")
            a("s_mul_i32 s46, s57, 73728")
            a("s_mul_i32 s47, s40, 18432")
            a("s_add_u32 s46, s46, s47")
            a(f"s_add_u32 s46, s46, {WS_P + 6144}")
            for i in range(6):
                if i == 3: a("s_add_u32 s46, s46, 9216")
                a(f"buffer_store_dwordx4 v[200:203], v9, {s(ws,4)}, s46 offen offset:{(i%3)*1024} sc1")
            stamp(a, 21)
        if t == PK_T[1]:
            a("s_waitcnt vmcnt(0)")
            a("v_mov_b32 v5, 0")
            a("v_mov_b32 v6, 1")
            a("s_lshl_b32 s46, s43, 7")
            a("s_add_u32 s46, s46, s58")
            a("s_lshl_b32 s46, s46, 2")
            a(f"s_add_u32 s46, s46, {WS_FPACK}")
            a("s_mov_b64 exec, 1")
            a(f"buffer_store_dword v6, v5, {s(ws,4)}, s46 offen sc1")
            a("s_mov_b64 exec, -1")
            for i in range(12):
                a(f"buffer_load_dwordx4 v[112:115], v9, {s(ws,4)}, s52 offen offset:{(i%4)*1024} sc1")
                if i % 4 == 3: a("s_add_u32 s52, s52, 4096")
            a("s_mul_i32 s46, s40, 9216")
            a(f"s_add_u32 s46, s46, {WS_WO + (9*36 + 6)*1024}")
            for sx in range(9):
                for tt in range(3):
                    a(f"buffer_load_dwordx4 {v(148 + (sx*3+tt)*4, 4)}, v9, {s(ws,4)}, s46 offen offset:{tt*1024}")
                a(f"s_add_u32 s46, s46, {36*1024}")
            stamp(a, 22)
            a("s_setprio 1")
    a("s_branch L_a_loop_end")
    fallback(a)

def ln_tail(a, WA, nt, t0):
    ws = WS_
    n = nt * 4
    T = 44 if nt == 6 else 148
    stamp(a, 8)
    a(f"v_add_f32 v8, v{WA}, v{WA+1}")
    a(f"v_mul_f32 v9, v{WA}, v{WA}")
    a(f"v_fmac_f32 v9, v{WA+1}, v{WA+1}")
    for i in range(2, n):
        a(f"v_add_f32 v8, v8, v{WA+i}")
        a(f"v_fmac_f32 v9, v{WA+i}, v{WA+i}")
    for sw in ("v_permlane32_swap_b32", "v_permlane16_swap_b32"):
        a("v_mov_b32 v10, v8")
        a("v_mov_b32 v11, v9")
        a(f"{sw} v8, v10")
        a(f"{sw} v9, v11")
        a("v_add_f32 v8, v8, v10")
        a("v_add_f32 v9, v9, v11")
    a("v_lshlrev_b32 v10, 6, v5")
    a(f"v_add_u32 v10, {L_ST}, v10")
    a("s_lshl_b32 s46, s3, 3")
    a("v_add_u32 v11, s46, v10")
    a("s_mov_b64 exec, 0xff")
    a("ds_write_b64 v11, v[8:9]")
    a("s_mov_b64 exec, -1")
    for k in range(n // 2):
        a(f"v_cvt_pk_bf16_f32 v{T+k}, v{WA+2*k}, v{WA+2*k+1}")
    a("s_mul_i32 s46, s40, 18")
    a(f"s_add_u32 s46, s46, {2*t0}")
    a("v_add_u32 v12, s46, v6")
    a("v_lshlrev_b32 v13, 4, v5")
    a("v_lshl_add_u32 v14, v12, 7, v13")
    a(f"v_add_u32 v14, {L_HH}, v14")
    a("s_waitcnt lgkmcnt(0)")
    a("s_barrier")
    stamp(a, 9); stamp_rt(a, 47)
    U = T + 12
    for i in range(4):
        a(f"ds_read_b128 {v(U+4*i,4)}, v10 offset:{i*16}")
    a("v_lshrrev_b32 v15, 2, v12")
    a("v_lshl_add_u32 v15, v15, 12, v13")
    a("v_and_b32 v12, 3, v12")
    a("v_lshl_add_u32 v12, v12, 8, v15")
    if nt == 3:
        a("v_lshrrev_b32 v15, 1, v6")
        a("s_add_u32 s46, s46, 4")
        a("v_add_u32 v15, s46, v15")
        a("v_and_b32 v7, 1, v6")
        a("v_lshl_add_u32 v13, v7, 3, v13")
        a("v_lshl_add_u32 v7, v15, 7, v13")
        a(f"v_add_u32 v7, {L_HH}, v7")
        a("v_lshrrev_b32 v8, 2, v15")
        a("v_lshl_add_u32 v13, v8, 12, v13")
        a("v_and_b32 v15, 3, v15")
        a("v_lshl_add_u32 v13, v15, 8, v13")
    a("s_mov_b64 exec, s[54:55]")
    for i in range(nt // 2):
        a(f"ds_write_b128 v14, {v(T+4*i,4)} offset:{i*512}")
    if nt == 3: a(f"ds_write_b64 v7, {v(T+4,2)}")
    a("s_mov_b64 exec, -1")
    a("s_mul_i32 s46, s56, 73728")
    a("s_lshr_b32 s47, s43, 1")
    a("s_lshl_b32 s47, s47, 10")
    a("s_add_u32 s46, s46, s47")
    a("s_and_b32 s47, s43, 1")
    a("s_lshl_b32 s47, s47, 7")
    a("s_add_u32 s46, s46, s47")
    a(f"s_add_u32 s46, s46, {WS_Y}")
    a(f"s_waitcnt lgkmcnt({nt//2 + (nt & 1)})")
    for i in range(1, 8):
        a(f"v_add_f32 v{U}, v{U}, v{U+2*i}")
        a(f"v_add_f32 v{U+1}, v{U+1}, v{U+2*i+1}")
    a(f"v_mul_f32 v8, {fbits(1.0/D)}, v{U}")
    a(f"v_mul_f32 v9, {fbits(1.0/D)}, v{U+1}")
    a("v_fma_f32 v9, -v8, v8, v9")
    a("v_max_f32 v9, 0, v9")
    a(f"v_add_f32 v10, {fbits(1e-5)}, v9")
    a("v_rcp_f32 v11, v10")
    a("v_rsq_f32 v10, v10")
    a(f"v_fmaak_f32 v11, v9, v11, {fbits(1e-5)}")
    a("v_rsq_f32 v11, v11")
    a("v_mul_f32 v10, v10, v11")
    a("v_mul_f32 v8, v8, v10")
    a("s_mov_b64 exec, s[54:55]")
    for i in range(nt // 2):
        for k in range(8):
            a(f"v_fma_f32 v{WA+8*i+k}, v{WA+8*i+k}, v10, -v8")
        for k in range(4):
            a(f"v_cvt_pk_bf16_f32 v{U+4*i+k}, v{WA+8*i+2*k}, v{WA+8*i+2*k+1}")
        a(f"buffer_store_dwordx4 {v(U+4*i,4)}, v12, {s(ws,4)}, s46 offen sc1")
        if i + 1 < nt // 2: a("v_add_u32 v12, 4096, v12")
    if nt == 3:
        for k in range(4):
            a(f"v_fma_f32 v{WA+8+k}, v{WA+8+k}, v10, -v8")
        for k in range(2):
            a(f"v_cvt_pk_bf16_f32 v{U+4+k}, v{WA+8+2*k}, v{WA+8+2*k+1}")
        a(f"buffer_store_dwordx2 {v(U+4,2)}, v13, {s(ws,4)}, s46 offen sc1")
    a("s_mov_b64 exec, -1")

def fallback(a):
    a.label("L_a_fallback")
    a("s_mov_b32 s60, 1")
    tot = 16 * KV_BLK
    a(f"v_cndmask_b32 v{QX[0]}, 0, v{QX[0]}, s[50:51]")
    a(f"v_mov_b32 v{QX[1]}, v{QX[0]}")
    a("v_mov_b32 v5, 0xff800000")
    for ps in range(2):
        for r in (KA_, KR_, VA_):
            a(f"v_subrev_u32 v{r}, {tot}, v{r}")
        a("s_mov_b32 s48, 0")
        a.label(f"L_a_fb{ps}")
        a(f"ds_read_b128 {v(KRB[0],4)}, v{KR_}")
        for t in range(4):
            a(f"ds_read_b128 {v(KB[0],4)}, v{KA_} offset:{koff(t)}")
            if ps == 1:
                a(f"ds_read_b128 {v(VB[0],4)}, v{VA_} offset:{voff(t,0)}")
                a(f"ds_read_b128 {v(VB[0]+4,4)}, v{VA_} offset:{voff(t,1)}")
            a("s_waitcnt lgkmcnt(0)")
            mfma32(a, SB[0], KB[0], Q1, None)
            mfma32(a, SB[0], KRB[0], Q2POS[t], SB[0])
            S0 = SB[0]
            if ps == 0:
                for i in range(8):
                    a(f"v_max3_f32 v5, v{S0+2*i}, v{S0+2*i+1}, v5")
            else:
                for i in range(16): a(f"v_sub_f32 v{S0+i}, v{S0+i}, v5")
                for i in range(16): a(f"v_exp_f32 v{S0+i}, v{S0+i}")
                for i in range(8): a(f"v_cvt_pk_bf16_f32 v{P+i}, v{S0+2*i}, v{S0+2*i+1}")
                mfma32(a, O, VB[0], P, O)
                mfma32(a, O, VB[0] + 4, P + 4, O)
                a("s_nop 7")
        for r in (KA_, KR_, VA_):
            a(f"v_add_u32 v{r}, {KV_BLK}, v{r}")
        a("s_add_u32 s48, s48, 1")
        a("s_cmp_lt_u32 s48, 16")
        a(f"s_cbranch_scc1 L_a_fb{ps}")
        if ps == 0:
            a("v_mov_b32 v6, v5")
            a("v_permlane32_swap_b32 v5, v6")
            a("v_max_f32 v5, v5, v6")
            for r in range(O, O + 16): a(f"v_mov_b32 v{r}, 0")
    a("s_branch L_a_norm")

def gelu(a, regs, tmp, vc1):
    if NOGELU: return
    for k in range(0, len(regs), 8):
        g = regs[k:k+8:2]
        T = [tmp + 2*i for i in range(len(g))]
        if PKGELU:
            for x, t in zip(g, T): a(f"v_pk_mul_f32 {v(t,2)}, {v(x,2)}, {v(x,2)}")
            for x, t in zip(g, T): a(f"v_pk_fma_f32 {v(t,2)}, {v(t,2)}, {v(vc1,2)}, s[78:79]")
            for x, t in zip(g, T): a(f"v_pk_mul_f32 {v(t,2)}, {v(x,2)}, {v(t,2)}")
            for x, t in zip(g, T): a(f"v_exp_f32 v{t}, v{t}"); a(f"v_exp_f32 v{t+1}, v{t+1}")
            for x, t in zip(g, T): a(f"v_pk_add_f32 {v(t,2)}, {v(t,2)}, 1.0 op_sel_hi:[1,0]")
            for x, t in zip(g, T): a(f"v_rcp_f32 v{t}, v{t}"); a(f"v_rcp_f32 v{t+1}, v{t+1}")
            for x, t in zip(g, T): a(f"v_pk_mul_f32 {v(x,2)}, {v(x,2)}, {v(t,2)}")
        else:
            g = regs[k:k+8]; T = [tmp + i for i in range(len(g))]
            for x, t in zip(g, T): a(f"v_mul_f32 v{t}, v{x}, v{x}")
            for x, t in zip(g, T): a(f"v_fmaak_f32 v{t}, v{vc1}, v{t}, {fbits(C0)}")
            for x, t in zip(g, T): a(f"v_mul_f32 v{t}, v{x}, v{t}")
            for x, t in zip(g, T): a(f"v_exp_f32 v{t}, v{t}")
            for x, t in zip(g, T): a(f"v_add_f32 v{t}, 1.0, v{t}")
            for x, t in zip(g, T): a(f"v_rcp_f32 v{t}, v{t}")
            for x, t in zip(g, T): a(f"v_mul_f32 v{x}, v{x}, v{t}")

def acc(t, q): return ACC + (t * 4 + q) * 4

def mlp_setup(a):
    a(f"v_add_u32 v3, {L_Y}, v2")
    a(f"v_add_u32 v4, {L_Y + 36864}, v2")
    a("v_and_b32 v9, 15, v1")
    a("v_lshlrev_b32 v9, 4, v9")
    a(f"v_mov_b32 v{GT+22}, {fbits(C1)}")
    a(f"v_mov_b32 v{GT+23}, {fbits(C1)}")
    a(f"s_mov_b32 s78, {fbits(C0)}")
    a(f"s_mov_b32 s79, {fbits(C0)}")
    a("v_bfe_u32 v14, v1, 3, 1")
    a("s_mov_b32 s46, 73728")
    a("v_mul_lo_u32 v14, v14, s46")
    a("v_lshl_add_u32 v14, v5, 4, v14")
    a("v_and_b32 v15, 1, v6")
    a("s_mov_b32 s46, 147456")
    a("v_mul_lo_u32 v15, v15, s46")
    a("v_add_u32 v15, v15, v14")
    a("v_lshrrev_b32 v7, 1, v6")
    a("v_lshl_add_u32 v15, v7, 7, v15")
    a("v_lshl_add_u32 v14, v6, 7, v14")
    a("s_lshl_b32 s71, s56, 6")
    a("s_add_u32 s71, s71, s43")
    a("s_mul_i32 s71, s71, 9216")
    a(f"s_add_u32 s71, s71, {WS_P}")

def bias_init(a):
    a("s_mul_i32 s46, s68, 192")
    a(f"s_add_u32 s46, s46, {L_B1}")
    a("v_lshl_add_u32 v11, v6, 5, s46")
    a("v_lshl_add_u32 v12, v6, 4, s46")
    a(f"ds_read_b128 {v(CI,4)}, v11 offset:{L_B1D - L_B1}")
    a(f"ds_read_b128 {v(CI+4,4)}, v11 offset:{L_B1D - L_B1 + 16}")
    a(f"ds_read_b128 {v(CI+8,4)}, v12 offset:128")

def to_gemm2(a):
    for r in (3, 4):
        a(f"v_add_u32 v{r}, {L_H - L_Y}, v{r}")
    for i in range(12): a(f"v_mov_b32 v{CI+i}, 0")

def call(a, name):
    a(f"s_call_b64 s[74:75], {name}")

def mlp(a):
    ws = WS_
    a.label("L_m_roleA")
    mlp_setup(a)
    a("s_setprio 3")
    a("s_barrier")
    stamp(a, 10); stamp_rt(a, 48)
    a("s_mov_b32 s68, s40")
    bias_init(a)
    a("s_mov_b32 s69, 3")
    call(a, "L_m_pass")
    stamp(a, 12)
    a("s_setprio 1")
    call(a, "L_m_gelu")
    stamp(a, 13)
    a("s_setprio 1")
    a("s_add_u32 s68, s40, 8")
    bias_init(a)
    a("s_mov_b32 s69, 0")
    call(a, "L_m_pass")
    a("s_setprio 0")
    stamp(a, 14)
    a("s_barrier")
    stamp(a, 11)
    call(a, "L_m_gelu")
    stamp(a, 15)
    a("s_waitcnt lgkmcnt(0)")
    a("s_barrier")
    a("s_setprio 2")
    to_gemm2(a)
    a("s_mov_b32 s69, 10")
    call(a, "L_m_pass")
    a("s_setprio 0")
    a("s_add_u32 s68, s40, 4")
    stamp(a, 16)
    if GATEA: a("s_barrier")
    call(a, "L_m_store")
    reduce_setup(a)
    if not GATEA: a("s_barrier")
    stamp(a, 24)
    a("s_waitcnt vmcnt(0)")
    flag_store(a, WS_FP1, 11)
    stamp(a, 25)
    a("s_cmp_eq_u32 s40, 3")
    a("s_cbranch_scc1 L_r_st1")
    flag_poll(a, "r_poll0", 8, GT, 53, 1)
    a("s_mov_b32 s48, s40")
    call(a, "L_r_item")
    a("s_cmp_eq_u32 s40, 0")
    a("s_cbranch_scc1 L_m_done")
    a.label("L_r_st1")
    a("s_add_u32 s48, s40, 2")
    a("s_add_u32 s53, s53, 16")
    flag_poll(a, "r_poll1", 8, GT, 53, 1)
    stamp(a, 17)
    call(a, "L_r_item")
    a("s_branch L_m_done")
    a.label("L_m_roleB")
    for k in range(3): a_loads(a, k)
    a("s_waitcnt vmcnt(9)")
    flag_store(a, WS_FY, 8)
    stamp(a, 26); stamp_rt(a, 40)
    a("s_lshl_b32 s46, s56, 8")
    a(f"s_add_u32 s53, s46, {WS_FY}")
    srd(a, XS_, 18, F * 2)
    a("s_lshl_b32 s46, s40, 6")
    a("v_add_u32 v8, s46, v1")
    a("v_lshlrev_b32 v11, 2, v8")
    a("s_mul_i32 s46, s43, 1152")
    a(f"buffer_load_dword v{GT}, v11, {s(XS_,4)}, s46 offen")
    a(f"buffer_load_dword v{GT+1}, v11, {s(XS_,4)}, s46 offen offset:1024")
    mlp_setup(a)
    a("v_lshlrev_b32 v11, 3, v8")
    a(f"v_add_u32 v11, {L_B1}, v11")
    a("s_waitcnt vmcnt(0)")
    a(f"v_lshlrev_b32 v{GT+2}, 16, v{GT}")
    a(f"v_and_b32 v{GT+3}, 0xffff0000, v{GT}")
    a(f"v_lshlrev_b32 v{GT+4}, 16, v{GT+1}")
    a(f"v_and_b32 v{GT+5}, 0xffff0000, v{GT+1}")
    a(f"ds_write_b64 v11, {v(GT+2,2)}")
    a("v_lshrrev_b32 v12, 2, v8")
    a("v_lshlrev_b32 v12, 5, v12")
    a("v_and_b32 v13, 3, v8")
    a("v_lshl_add_u32 v12, v13, 2, v12")
    a(f"v_add_u32 v12, {L_B1D}, v12")
    a(f"ds_write2_b32 v12, v{GT+2}, v{GT+3} offset0:0 offset1:4")
    a("v_add_u32 v12, 2048, v12")
    a("s_cmp_lg_u32 s40, 0")
    a("s_cbranch_scc1 L_m_nob2")
    a("s_mov_b64 exec, 0xffffffff")
    a(f"ds_write_b64 v11, {v(GT+4,2)} offset:2048")
    a(f"ds_write2_b32 v12, v{GT+4}, v{GT+5} offset0:0 offset1:4")
    a("s_mov_b64 exec, -1")
    a.label("L_m_nob2")
    for k in range(3, RDS - 1): a_loads(a, k)
    a("v_lshlrev_b32 v8, 2, v1")
    flag_poll(a, "m_ypoll", 8, GT, 53, 1)
    stamp_rt(a, 43)
    stamp(a, 10)
    a("s_mul_i32 s46, s56, 73728")
    a("s_lshl_b32 s47, s40, 10")
    a("s_add_u32 s46, s46, s47")
    a(f"s_add_u32 s46, s46, {WS_Y}")
    for st in range(18):
        a(f"s_add_u32 m0, s47, {L_Y + st*4096}")
        if st: a("s_add_u32 s46, s46, 4096")
        a(f"buffer_load_dwordx4 v2, {s(ws,4)}, s46 offen sc1 {YMOD} lds")
    a("s_waitcnt vmcnt(12) lgkmcnt(0)")
    a("s_barrier")
    a("s_setprio 2")
    a("s_add_u32 s68, s40, 4")
    bias_init(a)
    a("s_mov_b32 s69, 3")
    call(a, "L_m_pass")
    stamp(a, 12)
    a("s_setprio 0")
    call(a, "L_m_gelu")
    stamp(a, 13)
    to_gemm2(a)
    a("s_setprio 3")
    a("s_waitcnt lgkmcnt(0)")
    a("s_barrier")
    stamp(a, 11)
    a("s_mov_b32 s69, 2")
    call(a, "L_m_pass")
    a("s_setprio 0")
    a("s_mov_b32 s68, s40")
    stamp(a, 15)
    a("s_barrier")
    stamp(a, 24)
    call(a, "L_m_store")
    a("s_setprio 1")
    a("s_mov_b32 s69, 14")
    call(a, "L_m_pass")
    a("s_setprio 3")
    a("s_add_u32 s68, s40, 8")
    stamp(a, 16); stamp_rt(a, 46)
    call(a, "L_m_store")
    reduce_setup(a)
    a("s_cmp_eq_u32 s40, 3")
    a("s_cbranch_scc1 L_m_done")
    a("s_add_u32 s48, s40, 6")
    a("s_mov_b32 s73, 1")
    a("s_waitcnt vmcnt(0)")
    stamp_rt(a, 42)
    call(a, "L_r_item")
    a.label("L_m_done")

def subroutines(a):
    ws = WS_
    a.raw(".p2align 6")
    a.label("L_m_pass")
    def b_read(ks, a=a):
        b = BR + (ks % 3) * 16
        for q in range(4):
            a(f"ds_read_b128 {v(b+4*q,4)}, v{3 + ks // 9} offset:{(ks % 9)*4096 + q*1024}")
    def step(ks, loads):
        left = 3*(RDS-2) if loads else 3 * (17 - ks)
        a(f"s_waitcnt vmcnt({left}) lgkmcnt({4 if ks < 17 else 0})")
        b = BR + (ks % 3) * 16
        A = AR + 12 * (ks % RDS)
        R = Lst(); L = Lst()
        if ks + 2 < 18: b_read(ks + 2, R)
        if loads: a_loads(L, (ks - 1) % RDS)
        fill = {}
        for i, x in enumerate(R): fill[(0, 2, 4, 6)[i]] = x
        for i, x in enumerate(L): fill[(1, 5, 8, 10)[i]] = x
        n = 0
        for t in range(3):
            for q in range(4):
                mfma16(a, acc(t, q), A + 4*t, b + 4*q, CI + 4*t if ks == 0 else acc(t, q))
                if n in fill: a(fill[n])
                n += 1
    for ks in range(2): b_read(ks)
    for ks in range(18):
        if ks in (4, 10):
            a(f"s_bitcmp1_b32 s69, {0 if ks == 4 else 1}")
            a(f"s_cbranch_scc0 L_m_nb{ks}")
            if ks == 4: a("s_waitcnt vmcnt(18)")
            a("s_barrier")
            if ks == 10:
                a("s_bitcmp1_b32 s69, 3")
                a("s_cbranch_scc1 L_m_tail")
            a.label(f"L_m_nb{ks}")
        if ks == 8:
            a("s_bitcmp1_b32 s69, 2")
            a("s_cbranch_scc0 L_m_nf")
            flag_store(a, WS_FP1, 11)
            a.label("L_m_nf")
        step(ks, True)
    a("s_nop 7")
    a("s_setpc_b64 s[74:75]")
    a.label("L_m_tail")
    for ks in range(10, 18): step(ks, False)
    a("s_nop 7")
    a("s_setpc_b64 s[74:75]")
    a.label("L_m_gelu")
    a("s_mul_i32 s46, s68, 6")
    a("v_add_u32 v11, s46, v6")
    a("v_lshrrev_b32 v12, 2, v11")
    a("v_lshl_add_u32 v12, v12, 12, v9")
    a("v_and_b32 v11, 3, v11")
    a("v_lshl_add_u32 v11, v11, 8, v12")
    a(f"v_add_u32 v11, {L_H}, v11")
    a("s_add_u32 s46, s46, 4")
    a("v_add_u32 v12, s46, v7")
    a("v_lshrrev_b32 v13, 2, v12")
    a("v_lshl_add_u32 v13, v13, 12, v9")
    a("v_and_b32 v12, 3, v12")
    a("v_lshl_add_u32 v12, v12, 8, v13")
    a("v_and_b32 v13, 1, v6")
    a("v_lshl_add_u32 v12, v13, 3, v12")
    a(f"v_add_u32 v12, {L_H}, v12")
    for qq in range(2):
        for t in range(3):
            gelu(a, list(range(acc(t, 2*qq), acc(t, 2*qq) + 8)), GT, GT + 22)
        for q in (2*qq, 2*qq + 1):
            o = GT + 8 + (q & 1) * 6
            for r in range(4):
                a(f"v_cvt_pk_bf16_f32 v{o+r}, v{acc(0,q)+r}, v{acc(1,q)+r}")
            a(f"v_cvt_pk_bf16_f32 v{o+4}, v{acc(2,q)}, v{acc(2,q)+1}")
            a(f"v_cvt_pk_bf16_f32 v{o+5}, v{acc(2,q)+2}, v{acc(2,q)+3}")
            a(f"ds_write_b128 v11, {v(o,4)} offset:{q*1024}")
            a(f"ds_write_b64 v12, {v(o+4,2)} offset:{q*1024}")
    a("s_setpc_b64 s[74:75]")
    store_sub(a, "L_m_store", False)

def store_sub(a, name, paced):
    ws = WS_
    a.label(name)
    a("s_mul_i32 s46, s68, 768")
    a("s_add_u32 s46, s46, s71")
    for q in range(4):
        o = GT + (q & 1) * 4
        for r in range(4):
            a(f"v_cvt_pk_bf16_f32 v{o+r}, v{acc(0,q)+r}, v{acc(1,q)+r}")
        o2 = GT + 8 + (q >> 1) * 4 + (q & 1) * 2
        a(f"v_cvt_pk_bf16_f32 v{o2}, v{acc(2,q)}, v{acc(2,q)+1}")
        a(f"v_cvt_pk_bf16_f32 v{o2+1}, v{acc(2,q)+2}, v{acc(2,q)+3}")
        a(f"s_add_u32 s47, s46, {q*147456}")
        a(f"buffer_store_dwordx4 {v(o,4)}, v14, {s(ws,4)}, s47 offen sc1" if not DBG & 4 else "s_nop 0")
        if paced: a(f"s_waitcnt vmcnt({PACE})")
        if q & 1:
            b = GT + 8 + (q >> 1) * 4
            a(f"v_permlane16_swap_b32 v{b}, v{b+2}")
            a(f"v_permlane16_swap_b32 v{b+1}, v{b+3}")
            a(f"s_add_u32 s47, s46, {(q-1)*147456}")
            a(f"buffer_store_dwordx4 {v(b,4)}, v15, {s(ws,4)}, s47 offen offset:512 sc1" if not DBG & 4 else "s_nop 0")
            if paced: a(f"s_waitcnt vmcnt({PACE})")
    a("s_nop 1")
    a("s_setpc_b64 s[74:75]")

def reduce_setup(a):
    srd(a, XS_, 22, D * 2)
    srd(a, 24, 6, S * D * 2)
    a("s_mov_b32 s76, 0x00003f80")
    a("s_mov_b32 s77, 0x3f800000")
    a("s_lshl_b32 s46, s56, 8")
    a(f"s_add_u32 s53, s46, {WS_FP1}")
    a("v_lshlrev_b32 v8, 2, v1")
    a("v_and_b32 v8, 0xec, v8")
    a("s_mov_b32 s73, 0")

def reduce_item(a):
    ws = WS_
    a.label("L_r_item")
    R = 32
    a("v_lshrrev_b32 v11, 3, v1")
    a("v_lshlrev_b32 v11, 4, v11")
    a("s_lshl_b32 s45, s48, 7")
    a(f"buffer_load_dwordx4 {v(R+32,4)}, v11, {s(XS_,4)}, s45 offen")
    a("s_mul_i32 s72, s57, 73728")
    a("s_lshl_b32 s47, s48, 10")
    a("s_add_u32 s72, s72, s47")
    a(f"s_add_u32 s72, s72, {WS_P}")
    a(f"s_add_u32 s47, s47, {L_HH}")
    a("v_add_u32 v12, s47, v2")
    a(f"ds_read_b128 {v(R+36,4)}, v12")
    a("s_mov_b32 s62, 0xff")
    a(f"s_mov_b32 s49, {POLL_MAX}")
    a.label("L_r_again")
    for i in range(8):
        a(f"s_bitcmp1_b32 s62, {i}")
        a(f"s_cbranch_scc0 L_r_sk{i}")
        a(f"s_add_u32 s46, s72, {i*9216}")
        a(f"buffer_load_dwordx4 {v(R+4*i,4)}, v2, {s(ws,4)}, s46 offen sc1")
        a.label(f"L_r_sk{i}")
    a("s_cmp_eq_u32 s73, 0")
    a("s_cbranch_scc1 L_r_have")
    a("s_waitcnt vmcnt(0)")
    a("s_mov_b32 s62, 0")
    for i in range(8):
        a(f"v_max3_u32 v13, v{R+4*i}, v{R+4*i+1}, v{R+4*i+2}")
        a(f"v_max_u32 v13, v13, v{R+4*i+3}")
        a("v_cmp_eq_u32 vcc, -1, v13")
        a("s_nop 1")
        a("s_cmp_lg_u64 vcc, 0")
        a(f"s_cselect_b32 s46, {1 << i}, 0")
        a("s_or_b32 s62, s62, s46")
    a("s_cbranch_scc0 L_r_have")
    a(f"s_sleep {RSLEEP}")
    a("s_sub_u32 s49, s49, 1")
    a("s_cbranch_scc0 L_r_again")
    a.label("L_r_have")
    stamp_rt(a, 45)
    a("v_mad_u32_u24 v11, v5, s44, v11")
    a("s_mul_i32 s46, s57, 9216")
    a("s_add_u32 s46, s46, s45")
    a("s_waitcnt lgkmcnt(0)")
    for r in range(4):
        a(f"v_lshlrev_b32 v{16+2*r}, 16, v{R+36+r}")
        a(f"v_and_b32 v{17+2*r}, 0xffff0000, v{R+36+r}")
    for k, i in enumerate([8] + list(range(8))):
        a(f"s_waitcnt vmcnt({8-k})")
        for r in range(4):
            a(f"v_dot2_f32_bf16 v{16+2*r}, v{R+4*i+r}, s76, v{16+2*r}")
            a(f"v_dot2_f32_bf16 v{17+2*r}, v{R+4*i+r}, s77, v{17+2*r}")
    for r in range(4):
        a(f"v_cvt_pk_bf16_f32 v{24+r}, v{16+2*r}, v{17+2*r}")
    a("buffer_store_dwordx4 v[24:27], v11, s[24:27], s46 offen")
    a("s_nop 1")
    a("s_setpc_b64 s[74:75]")

def k_main(name):
    a = Asm()
    kernel_head(a, name)
    a("s_cmp_ge_u32 s2, 256")
    a("s_cbranch_scc1 L_end")
    stamp_first(a)
    prologue(a)
    stamp_init(a, 0)
    attention(a)
    mlp(a)
    stamp_dump(a, 2)
    a.label("L_end")
    a("s_endpgm")
    subroutines(a)
    reduce_item(a)
    return a.finish(), descriptor(name, 256, 80)
```

```python
from common import *
from k_pack import *
import math

MAPPING = os.environ.get("MAPPING", "A")
VZERO = os.environ.get("VZERO", "1") == "1"
WMOD = os.environ.get("WMOD", "sc1")
PKGELU = os.environ.get("PKGELU", "0") == "1"
PACE = int(os.environ.get("PACE", "1"))
DBG = int(os.environ.get("DBG", "0"))
YMOD = os.environ.get("YMOD", "")
GATEA = os.environ.get("GATEA", "1") == "1"
PK_T = tuple(int(x) for x in os.environ.get("PK_T", "3,8").split(","))
RSLEEP = int(os.environ.get("RSLEEP", "4"))
TOUCH = os.environ.get("TOUCH", "1") == "1"
NOGELU = os.environ.get("NOGELU", "0") == "1"
LDS_MAIN = 163840
L_OS = KV_BYTES
L_CP = L_OS + 8 * 608
L_ST = L_CP + 6144
L_CNT = L_ST + 512
L_Y = 0; L_H = 73728; L_B1 = 147456; L_B1D = L_B1 + 2304; L_HH = L_B1 + 4608
assert L_HH + 9216 <= L_ST and L_CNT + 16 <= LDS_MAIN
WS_, XS_ = 32, 36
KA_, KR_, VA_ = 2, 3, 4
Q2POS = {2: 10, 0: 12, 3: 14, 1: 16}; QX = (12, 17)
Q1 = 20; SB = (24, 40); P = 56; O = 64; KB = (80, 84); KRB = (88, 92); VB = (96, 104)
TPI = 16
CI = 16; AR = 28; ACC = 136; BR = 184; GT = 232
RDS = 9
WSR = 64
C0 = -2.0 * 0.7978845608028654 * math.log2(math.e)
C1 = C0 * 0.044715
POLL_MAX = 1 << 20

def koff(t): return (t >> 2) * KV_BLK + (t & 3) * 1024
def kroff(blk): return blk * KV_BLK
def voff(t, mf): return (t >> 2) * KV_BLK + (t & 3) * 1216 + mf * 608

def tile(a, t, bg=None, nbg=0):
    Sc = SB[t & 1]; Sn = SB[(t + 1) & 1]
    def B(k):
        while bg and k > 0:
            x = bg.pop(0); a(x)
            if not x.startswith("s_"): k -= 1
    ex = lambda i: a(f"v_exp_f32 v{Sc+i}, v{Sc+i}")
    cv = lambda i: a(f"v_cvt_pk_bf16_f32 v{P+i}, v{Sc+2*i}, v{Sc+2*i+1}")
    a(f"s_waitcnt lgkmcnt({2 if (t & 3) == 2 else 1})")
    mfma32(a, Sn, KB[(t + 1) & 1], Q1, None)
    a(f"ds_read_b128 {v(VB[(t+1) & 1],4)}, v{VA_} offset:{voff(t+1,0)}")
    for i in range(0, 4): ex(i)
    mfma32(a, O, VB[(t + 1) & 1] + 4, P + 4, O)
    a(f"ds_read_b128 {v(VB[(t+1) & 1]+4,4)}, v{VA_} offset:{voff(t+1,1)}")
    cv(0); cv(1)
    for i in range(4, 8): ex(i)
    mfma32(a, Sn, KRB[((t + 1) >> 2) & 1], Q2POS[(t + 1) & 3], Sn)
    a(f"ds_read_b128 {v(KB[(t+1) & 1],4)}, v{KA_} offset:{koff(t+3)}")
    cv(2); cv(3)
    for i in range(8, 12): ex(i)
    mfma32(a, O, VB[t & 1], P, O)
    if (t & 3) == 1:
        a(f"ds_read_b128 {v(KRB[((t>>2)+1) & 1],4)}, v{KR_} offset:{kroff((t>>2)+1)}")
    cv(4); cv(5)
    for i in range(12, 16): ex(i)
    cv(6); cv(7)

def pipe_start(a):
    a(f"ds_read_b128 {v(KB[0],4)}, v{KA_} offset:{koff(0)}")
    a(f"ds_read_b128 {v(KRB[0],4)}, v{KR_} offset:{kroff(0)}")
    a(f"ds_read_b128 {v(KB[1],4)}, v{KA_} offset:{koff(1)}")
    a(f"ds_read_b128 {v(VB[0],4)}, v{VA_} offset:{voff(0,0)}")
    a(f"ds_read_b128 {v(VB[0]+4,4)}, v{VA_} offset:{voff(0,1)}")
    a("s_waitcnt lgkmcnt(3)")
    mfma32(a, SB[0], KB[0], Q1, None)
    mfma32(a, SB[0], KRB[0], Q2POS[0], SB[0])
    a(f"ds_read_b128 {v(KB[0],4)}, v{KA_} offset:{koff(2)}")
    a("s_nop 10")

def wo0_loads(a, sx, vl):
    b = 112 + (sx % 4) * 36
    for t in range(9):
        if t == 4 or t == 8: a("s_add_u32 s61, s61, 4096")
        a(f"buffer_load_dwordx4 {v(b+4*t,4)}, v{vl}, {s(WS_,4)}, s61 offen offset:{(t%4)*1024}")
    a(f"s_add_u32 s61, s61, {36*1024 - 8192}")

def lds_poll(a, tag, vaddr, vtmp, thr):
    a(f"s_mov_b32 s49, {POLL_MAX}")
    a.label(f"L_{tag}")
    a(f"ds_read_b32 v{vtmp}, v{vaddr}")
    a("s_waitcnt lgkmcnt(0)")
    a(f"v_readfirstlane_b32 s47, v{vtmp}")
    a("s_sub_u32 s49, s49, 1")
    a(f"s_cbranch_scc1 L_{tag}_ok")
    a(f"s_cmp_ge_u32 s47, {thr}")
    a(f"s_cbranch_scc1 L_{tag}_ok")
    a("s_sleep 2")
    a(f"s_branch L_{tag}")
    a.label(f"L_{tag}_ok")

def flag_poll(a, tag, vaddr, vtmp, s_off, width, sleep=1):
    a(f"s_mov_b32 s49, {POLL_MAX}")
    a.label(f"L_{tag}")
    if width == 1:
        a(f"buffer_load_dword v{vtmp}, v{vaddr}, {s(WS_,4)}, s{s_off} offen sc1")
    else:
        a(f"buffer_load_dwordx2 {v(vtmp,2)}, v{vaddr}, {s(WS_,4)}, s{s_off} offen sc1")
    a("s_waitcnt vmcnt(0)")
    if width == 2: a(f"v_min_u32 v{vtmp}, v{vtmp}, v{vtmp+1}")
    a(f"v_cmp_eq_u32 vcc, 0, v{vtmp}")
    a("s_sub_u32 s49, s49, 1")
    a(f"s_cbranch_scc1 L_{tag}_ok")
    a("s_nop 1")
    a("s_cmp_eq_u64 vcc, 0")
    a(f"s_cbranch_scc1 L_{tag}_ok")
    a(f"s_sleep {sleep}")
    a(f"s_branch L_{tag}")
    a.label(f"L_{tag}_ok")

def flag_store(a, base, vt):
    a("s_lshl_b32 s46, s57, 3")
    a("s_add_u32 s46, s46, s3")
    a("s_lshl_b32 s46, s46, 2")
    a(f"s_add_u32 s46, s46, {base}")
    a(f"v_mov_b32 v{vt}, 0")
    a(f"v_mov_b32 v{vt+1}, 1")
    a("s_mov_b64 exec, 1")
    a(f"buffer_store_dword v{vt+1}, v{vt}, {s(WS_,4)}, s46 offen sc1")
    a("s_mov_b64 exec, -1")

def a_loads(a, step_slot):
    for t in range(3):
        a(f"buffer_load_dwordx4 {v(AR + step_slot*12 + 4*t, 4)}, v2, {s(WSR,4)}, s70 offen offset:{t*1024} {WMOD}")
    a("s_add_u32 s70, s70, 3072")

def prologue(a):
    a(f"s_load_dwordx2 s[4:5], s[0:1], {KA['x']}")
    a(f"s_load_dwordx8 s[16:23], s[0:1], {KA['w1']}")
    a(f"s_load_dwordx2 s[6:7], s[0:1], {KA['out']}")
    a(f"s_load_dwordx2 s[12:13], s[0:1], {KA['ws']}")
    a("v_lshrrev_b32 v7, 6, v0")
    a("v_and_b32 v1, 63, v0")
    a("v_readfirstlane_b32 s3, v7")
    if MAPPING == "A":
        a("s_and_b32 s43, s2, 7")
        a("s_lshr_b32 s56, s2, 3")
    else:
        a("s_and_b32 s43, s2, 3")
        a("s_lshl_b32 s43, s43, 1")
        a("s_bfe_u32 s45, s2, 0x10003")
        a("s_add_u32 s43, s43, s45")
        a("s_lshr_b32 s56, s2, 4")
        a("s_lshl_b32 s56, s56, 1")
        a("s_bfe_u32 s45, s2, 0x10002")
        a("s_add_u32 s56, s56, s45")
    a("s_lshl_b32 s57, s56, 3")
    a("s_add_u32 s57, s57, s43")
    a("s_lshl_b32 s42, s57, 3")
    a("s_and_b32 s40, s3, 3")
    a("s_lshr_b32 s41, s3, 2")
    a("s_movk_i32 s44, 1152")
    a("v_and_b32 v5, 15, v1")
    a("v_mul_u32_u24 v5, 36, v5")
    a("v_bfe_u32 v6, v1, 4, 1")
    a("v_mad_u32_u24 v5, v6, s44, v5")
    a("v_lshrrev_b32 v7, 5, v1")
    a("v_lshl_add_u32 v6, v7, 4, v5")
    a("s_lshl_b32 s45, s40, 1")
    a("s_add_u32 s45, s45, s42")
    a("s_mul_i32 s45, s45, 1152")
    a("s_mul_i32 s46, s41, 576")
    a("s_add_u32 s45, s45, s46")
    a(f"s_add_u32 s45, s45, {WS_Q}")
    a("v_lshlrev_b32 v8, 3, v1")
    a("v_lshlrev_b32 v9, 4, v1")
    a("s_lshl_b32 s47, s3, 10")
    a("s_waitcnt lgkmcnt(0)")
    srd(a, WS_, 12, WS_END)

def attention(a):
    ws = WS_
    a(f"buffer_load_dwordx4 {v(Q1,4)}, v6, {s(ws,4)}, s45 offen")
    a(f"buffer_load_dword v{QX[0]}, v5, {s(ws,4)}, s45 offen offset:32")
    a(f"s_mov_b32 s46, {WS_KMAX}")
    a(f"buffer_load_dwordx4 v[24:27], v9, {s(ws,4)}, s46 offen")
    for i in range(4):
        a(f"s_add_u32 m0, s47, {i*8192}")
        a(f"s_add_u32 s46, s47, {WS_KV + i*8192}")
        a(f"buffer_load_dwordx4 v9, {s(ws,4)}, s46 offen lds")
    srd(a, XS_, 4, S * D * 2)
    a("s_cmp_lg_u32 s41, 0")
    a("s_cbranch_scc0 L_a_nodma")
    a("s_lshl_b32 s47, s40, 10")
    for i in range(29):
        if i == 6:
            a("s_waitcnt vmcnt(3)")
            a("s_barrier")
        a(f"s_add_u32 m0, s47, {32768 + i*4096}")
        a(f"s_add_u32 s46, s47, {WS_KV + 32768 + i*4096}")
        a(f"buffer_load_dwordx4 v9, {s(ws,4)}, s46 offen lds")
    a("s_setprio 3")
    a("s_branch L_a_dmadone")
    a.label("L_a_nodma")
    a("s_setprio 2")
    a.label("L_a_dmadone")
    a(f"v_mov_b32 v{KA_}, v9")
    a(f"v_add_u32 v{KR_}, 4096, v9")
    a(f"v_mov_b32 v8, {4608 + 288}")
    a("v_cmp_gt_u32 s[50:51], 32, v1")
    a(f"v_cndmask_b32 v{KR_}, v8, v{KR_}, s[50:51]")
    a("v_and_b32 v5, 31, v1")
    sigma_v(a, 6, 5, 8, 9)
    if VZERO:
        a("v_mov_b32 v8, 0x8000")
    else:
        a("v_add_u32 v8, -20, v5")
        a("v_cmp_gt_u32 vcc, 8, v8")
        a("v_cndmask_b32 v8, 4, 0, vcc")
    a("v_cmp_lt_u32 vcc, 18, v5")
    a("v_cndmask_b32 v6, v6, v8, vcc")
    a("v_lshlrev_b32 v6, 4, v6")
    a("s_movk_i32 s46, 304")
    a(f"v_mad_u32_u24 v{VA_}, v7, s46, v6")
    a(f"v_add_u32 v{VA_}, 4608, v{VA_}")
    for r in (10, 11, 13, 14, 15, 16, 18, 19): a(f"v_mov_b32 v{r}, 0")
    for r in range(O, O + 16): a(f"v_mov_b32 v{r}, 0")
    for r in range(P + 4, P + 8): a(f"v_mov_b32 v{r}, 0")
    for r in range(VB[1] + 4, VB[1] + 8): a(f"v_mov_b32 v{r}, 0")
    stamp(a, 1)
    a("s_cmp_lg_u32 s41, 0")
    a("s_cbranch_scc1 L_a_qready")
    a(f"v_mov_b32 v8, {L_CNT}")
    a("ds_write_b32 v8, v10")
    a("s_waitcnt vmcnt(4)")
    a.label("L_a_qready")
    a(f"v_dot2_f32_bf16 v5, v{Q1}, v{Q1}, 0")
    for i in range(1, 4):
        a(f"v_dot2_f32_bf16 v5, v{Q1+i}, v{Q1+i}, v5")
    a("v_max_f32 v24, v24, v25")
    a("v_max3_f32 v24, v24, v26, v27")
    for rr in (8, 4, 2, 1):
        a(f"v_max_f32_dpp v24, v24, v24 row_ror:{rr} row_mask:0xf bank_mask:0xf")
    a("v_mov_b32 v25, v24")
    a("v_mov_b32 v6, v5")
    a("v_permlane16_swap_b32 v24, v25")
    a("v_permlane32_swap_b32 v5, v6")
    a("v_max_f32 v24, v24, v25")
    a("v_add_f32 v5, v5, v6")
    a("v_mov_b32 v25, v24")
    a(f"v_dot2_f32_bf16 v5, v{QX[0]}, v{QX[0]}, v5")
    a("v_permlane32_swap_b32 v24, v25")
    a("v_add_f32 v24, v24, v25")
    a("v_mul_f32 v5, v5, v24")
    a("v_sqrt_f32 v5, v5")
    a(f"v_mul_f32 v5, {fbits(-1.02)}, v5")
    a("v_cvt_pk_bf16_f32 v5, v5, 0")
    a(f"v_cndmask_b32 v{QX[0]}, v5, v{QX[0]}, s[50:51]")
    a(f"v_mov_b32 v{QX[1]}, v{QX[0]}")
    a("s_mov_b32 s60, 0")
    a("s_mov_b32 s48, 0")
    a("v_lshlrev_b32 v9, 4, v1")
    a("s_cmp_lg_u32 s41, 0")
    a("s_cbranch_scc1 L_a_young_pre")
    a(f"s_mov_b32 s59, {16 // TPI}")
    a("s_waitcnt vmcnt(0) lgkmcnt(0)")
    a("s_barrier")
    a.label("L_a_start")
    stamp(a, 3)
    pipe_start(a)
    a.raw(".p2align 6")
    a.label("L_a_loop")
    for t in range(TPI): tile(a, t)
    a.label("L_a_loop_end")
    step = (TPI // 4) * KV_BLK
    a(f"v_add_u32 v{KA_}, {step}, v{KA_}")
    a(f"v_add_u32 v{KR_}, {step}, v{KR_}")
    a(f"v_add_u32 v{VA_}, {step}, v{VA_}")
    a("s_add_u32 s48, s48, 1")
    a("s_cmp_eq_u32 s48, s59")
    a("s_cbranch_scc1 L_a_inter")
    a(f"s_cmp_lt_u32 s48, {64 // TPI}")
    a("s_cbranch_scc1 L_a_loop")
    mfma32(a, O, VB[1] + 4, P + 4, O)
    a.label("L_a_norm")
    stamp(a, 4)
    a("s_waitcnt lgkmcnt(0)")
    a("s_nop 12")
    a(f"v_mov_b32 v5, v{O+10}")
    a(f"v_mov_b32 v6, v{O+10}")
    a("v_permlane32_swap_b32 v5, v6")
    a(f"v_mov_b32 v7, {fbits(2.0**-40)}")
    a("v_cmp_nge_f32 vcc, v5, v7")
    a("s_nop 3")
    a("s_cmp_lg_u64 vcc, 0")
    a("s_cselect_b32 s49, 1, 0")
    a("s_andn2_b32 s49, s49, s60")
    a("s_cbranch_scc1 L_a_fallback")
    a("v_rcp_f32 v5, v5")
    a("v_bfe_u32 v6, v1, 4, 1")
    a("s_lshl_b32 s46, s40, 1")
    a("v_add_u32 v6, s46, v6")
    a("v_mul_u32_u24 v6, 608, v6")
    a("v_and_b32 v7, 15, v1")
    a("v_lshl_add_u32 v8, v7, 2, v6")
    a("v_lshl_add_u32 v6, v7, 5, v6")
    a("v_lshrrev_b32 v7, 5, v1")
    a("v_lshl_add_u32 v6, v7, 4, v6")
    a(f"v_add_u32 v6, {L_OS}, v6")
    a(f"v_add_u32 v8, {L_OS + 512}, v8")
    for i in range(10):
        a(f"v_mul_f32 v{O+i}, v{O+i}, v5")
    for i in range(5):
        a(f"v_cvt_pk_bf16_f32 v{P+i}, v{O+2*i}, v{O+2*i+1}")
    a("s_cmp_eq_u32 s41, 0")
    a("s_cbranch_scc1 L_a_poll2_ok")
    a(f"v_mov_b32 v9, {L_CNT}")
    lds_poll(a, "a_poll2", 9, 7, 8)
    a(f"ds_write_b128 v6, {v(P,4)}")
    a("s_mov_b64 exec, 0xffffffff")
    a(f"ds_write_b32 v8, v{P+4}")
    a("s_mov_b64 exec, -1")
    a("v_and_b32 v5, 7, v1")
    a("v_mul_u32_u24 v4, 608, v5")
    a("v_lshrrev_b32 v6, 4, v1")
    a("v_lshl_add_u32 v4, v6, 4, v4")
    a(f"v_add_u32 v4, {L_OS}, v4")
    a("v_lshl_add_u32 v3, v6, 3, v5")
    a("v_lshlrev_b32 v3, 4, v3")
    a("s_mul_i32 s46, s40, 1536")
    a(f"s_add_u32 s46, s46, {L_CP}")
    a("v_add_u32 v3, s46, v3")
    a("v_lshlrev_b32 v2, 4, v1")
    a("s_mul_i32 s70, s3, 165888")
    a(f"s_mul_i32 s47, s43, {SLICE}")
    a("s_add_u32 s70, s70, s47")
    a(f"s_add_u32 s70, s70, {WS_W}")
    a(f"s_mov_b32 s{WSR}, s12")
    a(f"s_and_b32 s{WSR+1}, s13, 0xffff")
    a(f"s_add_u32 s{WSR+2}, s70, 165888")
    a(f"s_mov_b32 s{WSR+3}, 0x00020000")
    a("s_mov_b32 s54, 0x00ff00ff")
    a("s_mov_b32 s55, 0x00ff00ff")
    a("s_cmp_lg_u32 s41, 0")
    a("s_cbranch_scc1 L_a_young_tail")

    WA = 16
    WB = 112
    a(f"v_mov_b32 v8, {L_CNT}")
    a("v_mov_b32 v9, 1")
    a("s_waitcnt lgkmcnt(0)")
    a("s_mov_b64 exec, 1")
    a("ds_add_u32 v8, v9")
    a("s_mov_b64 exec, -1")
    a("s_mul_i32 s61, s40, 9216")
    a(f"s_add_u32 s61, s61, {WS_WO}")
    for sx in range(4): wo0_loads(a, sx, 2)
    a("v_mul_u32_u24 v10, 1152, v5")
    a("v_lshl_add_u32 v11, v6, 3, v10")
    a("v_lshl_add_u32 v10, v6, 4, v10")
    a("s_mul_i32 s46, s42, 1152")
    a("s_mul_i32 s47, s40, 288")
    a("s_add_u32 s52, s46, s47")
    for i in range(4):
        a(f"buffer_load_dwordx4 {v(92+4*i,4)}, v10, {s(XS_,4)}, s52 offen offset:{i*64}")
    a(f"buffer_load_dwordx2 v[108:109], v11, {s(XS_,4)}, s52 offen offset:256")
    lds_poll(a, "a_poll", 8, 9, 4)
    stamp(a, 5)
    for sx in range(9):
        a(f"ds_read_b128 {v(56+4*sx,4)}, v4 offset:{sx*64}")
    a("v_mov_b32 v9, 1")
    a("s_waitcnt lgkmcnt(0)")
    a("s_mov_b64 exec, 1")
    a("ds_add_u32 v8, v9")
    a("s_mov_b64 exec, -1")
    a("s_setprio 0")
    for sx in range(9):
        a(f"s_waitcnt vmcnt({min(3, 8 - sx)*9 + (5 if sx < 4 else 0)})")
        b = WB + (sx % 4) * 36
        for t in range(9):
            mfma16(a, WA + 4*t, b + 4*t, 56 + 4*sx, None if sx == 0 else WA + 4*t)
        if sx + 4 < 9: wo0_loads(a, sx + 4, 2)
    a("s_setprio 2")
    a("s_mov_b32 s46, 0x00003f80")
    a("s_mov_b32 s47, 0x3f800000")
    for k in list(range(12, 18)) + list(range(12)):
        a(f"v_dot2_f32_bf16 v{WA+2*k}, v{92+k}, s46, v{WA+2*k}")
        a(f"v_dot2_f32_bf16 v{WA+2*k+1}, v{92+k}, s47, v{WA+2*k+1}")
    stamp(a, 23)
    a("s_mov_b64 exec, s[54:55]")
    for t in range(3):
        a(f"ds_write_b128 v3, {v(WA+24+4*t,4)} offset:{t*512}")
    a("s_mov_b64 exec, -1")
    a("s_waitcnt lgkmcnt(0)")
    a("s_mul_i32 s46, s40, 9216")
    a(f"s_add_u32 s46, s46, {WS_WO + 9*36*1024}")
    for sx in range(9):
        for t in range(6):
            if t == 4: a("s_add_u32 s46, s46, 4096")
            a(f"buffer_load_dwordx4 {v(40+(sx*6+t)*4,4)}, v2, {s(ws,4)}, s46 offen offset:{(t%4)*1024}")
        a(f"s_add_u32 s46, s46, {36*1024 - 4096}")
    a("v_lshlrev_b32 v8, 3, v1")
    a("s_lshl_b32 s46, s43, 9")
    a(f"s_add_u32 s46, s46, {WS_FPACK}")
    flag_poll(a, "a_pkpoll", 8, 10, 46, 2, sleep=8)
    stamp(a, 6)
    a("s_barrier")
    stamp(a, 7)
    a(f"ds_read_b128 v[8:11], v4 offset:0")
    for sx in range(9):
        if sx + 1 < 9:
            a(f"ds_read_b128 {v(8+((sx+1)&1)*4,4)}, v4 offset:{(sx+1)*64}")
        a(f"s_waitcnt lgkmcnt({1 if sx+1 < 9 else 0})")
        for t in range(6):
            mfma16(a, WA + 4*t, 40 + (sx*6+t)*4, 8 + (sx&1)*4, WA + 4*t)
    ln_tail(a, WA, 6, 0)
    a("s_branch L_m_roleB")

    a.label("L_a_young_tail")
    a("s_waitcnt vmcnt(0) lgkmcnt(0)")
    stamp(a, 6)
    a("s_barrier")
    stamp(a, 7)
    for t in range(3):
        a(f"ds_read_b128 {v(WA+4*t,4)}, v3 offset:{t*512}")
    for sx in range(9):
        a(f"ds_read_b128 {v(112+4*sx,4)}, v4 offset:{sx*64}")
    for sx in range(9):
        a(f"s_waitcnt lgkmcnt({8-sx})")
        for t in range(3):
            mfma16(a, WA + 4*t, 148 + (sx*3+t)*4, 112 + 4*sx, WA + 4*t)
    ln_tail(a, WA, 3, 6)
    for k in range(3): a_loads(a, k)
    a("s_waitcnt vmcnt(9)")
    flag_store(a, WS_FY, 8)
    stamp(a, 26); stamp_rt(a, 40)
    for k in range(3, RDS - 1): a_loads(a, k)
    a("s_branch L_m_roleA")

    a.label("L_a_inter")
    a("s_barrier")
    a("s_branch L_a_loop")

    a.label("L_a_young_pre")
    a("s_lshl_b32 s58, s56, 2")
    a("s_add_u32 s58, s58, s40")
    a("s_min_u32 s59, s58, 119")
    sja, selA, selB = w_pack_setup(a, 59, 43, 16, 20, 24, 72, 61, 62, 63, 1, 5, 6, 7)
    a("s_mov_b32 s59, 99")
    a("s_mov_b32 s52, s63")
    a("s_waitcnt vmcnt(8)")
    w_pack_loads(a, 2, 24, 61, 62, sja, 5, 6, 112)
    a("s_waitcnt vmcnt(32)")
    stamp(a, 2)
    a("s_barrier")
    a("s_waitcnt vmcnt(26)")
    w_pack_loads(a, 2, 24, 61, 62, sja, 5, 6, 144)
    if TOUCH:
        a("s_mov_b32 s46, 0x24000")
        a("s_lshl_b32 s47, s40, 6")
        a("v_add_u32 v7, s47, v1")
        a("v_mul_lo_u32 v7, v7, s46")
        a(f"buffer_load_dword v252, v7, {s(ws,4)}, 0 offen")
        srd(a, 28, 6, S * D * 2)
        a("v_lshlrev_b32 v7, 16, v1")
        a("buffer_load_dword v253, v7, s[28:31], 0 offen")
        a("v_mov_b32 v7, 0")
        a("global_load_dword v254, v7, s[18:19]")
        a("global_load_dword v255, v7, s[22:23]")
    stamp(a, 20)
    pipe_start(a)
    for t in range(TPI):
        tile(a, t)
        if t == PK_T[0]:
            for st in range(4):
                a(f"s_waitcnt vmcnt({(3-st)*16 + st*3 + (4 if TOUCH else 0)})")
                w_pack_stores(a, 112 + st*16, 176 + (st & 1)*12, selA, selB, ws, 9, 63)
            for i in range(4): a(f"v_mov_b32 v{200+i}, -1")
            a("s_mul_i32 s46, s57, 73728")
            a("s_mul_i32 s47, s40, 18432")
            a("s_add_u32 s46, s46, s47")
            a(f"s_add_u32 s46, s46, {WS_P + 6144}")
            for i in range(6):
                if i == 3: a("s_add_u32 s46, s46, 9216")
                a(f"buffer_store_dwordx4 v[200:203], v9, {s(ws,4)}, s46 offen offset:{(i%3)*1024} sc1")
            stamp(a, 21)
        if t == PK_T[1]:
            a("s_waitcnt vmcnt(0)")
            a("v_mov_b32 v5, 0")
            a("v_mov_b32 v6, 1")
            a("s_lshl_b32 s46, s43, 7")
            a("s_add_u32 s46, s46, s58")
            a("s_lshl_b32 s46, s46, 2")
            a(f"s_add_u32 s46, s46, {WS_FPACK}")
            a("s_mov_b64 exec, 1")
            a(f"buffer_store_dword v6, v5, {s(ws,4)}, s46 offen sc1")
            a("s_mov_b64 exec, -1")
            for i in range(12):
                a(f"buffer_load_dwordx4 v[112:115], v9, {s(ws,4)}, s52 offen offset:{(i%4)*1024} sc1")
                if i % 4 == 3: a("s_add_u32 s52, s52, 4096")
            a("s_mul_i32 s46, s40, 9216")
            a(f"s_add_u32 s46, s46, {WS_WO + (9*36 + 6)*1024}")
            for sx in range(9):
                for tt in range(3):
                    a(f"buffer_load_dwordx4 {v(148 + (sx*3+tt)*4, 4)}, v9, {s(ws,4)}, s46 offen offset:{tt*1024}")
                a(f"s_add_u32 s46, s46, {36*1024}")
            stamp(a, 22)
            a("s_setprio 1")
    a("s_branch L_a_loop_end")
    fallback(a)

def ln_tail(a, WA, nt, t0):
    ws = WS_
    n = nt * 4
    T = 44 if nt == 6 else 148
    stamp(a, 8)
    a(f"v_add_f32 v8, v{WA}, v{WA+1}")
    a(f"v_mul_f32 v9, v{WA}, v{WA}")
    a(f"v_fmac_f32 v9, v{WA+1}, v{WA+1}")
    for i in range(2, n):
        a(f"v_add_f32 v8, v8, v{WA+i}")
        a(f"v_fmac_f32 v9, v{WA+i}, v{WA+i}")
    for sw in ("v_permlane32_swap_b32", "v_permlane16_swap_b32"):
        a("v_mov_b32 v10, v8")
        a("v_mov_b32 v11, v9")
        a(f"{sw} v8, v10")
        a(f"{sw} v9, v11")
        a("v_add_f32 v8, v8, v10")
        a("v_add_f32 v9, v9, v11")
    a("v_lshlrev_b32 v10, 6, v5")
    a(f"v_add_u32 v10, {L_ST}, v10")
    a("s_lshl_b32 s46, s3, 3")
    a("v_add_u32 v11, s46, v10")
    a("s_mov_b64 exec, 0xff")
    a("ds_write_b64 v11, v[8:9]")
    a("s_mov_b64 exec, -1")
    for k in range(n // 2):
        a(f"v_cvt_pk_bf16_f32 v{T+k}, v{WA+2*k}, v{WA+2*k+1}")
    a("s_mul_i32 s46, s40, 18")
    a(f"s_add_u32 s46, s46, {2*t0}")
    a("v_add_u32 v12, s46, v6")
    a("v_lshlrev_b32 v13, 4, v5")
    a("v_lshl_add_u32 v14, v12, 7, v13")
    a(f"v_add_u32 v14, {L_HH}, v14")
    a("s_waitcnt lgkmcnt(0)")
    a("s_barrier")
    stamp(a, 9); stamp_rt(a, 47)
    U = T + 12
    for i in range(4):
        a(f"ds_read_b128 {v(U+4*i,4)}, v10 offset:{i*16}")
    a("v_lshrrev_b32 v15, 2, v12")
    a("v_lshl_add_u32 v15, v15, 12, v13")
    a("v_and_b32 v12, 3, v12")
    a("v_lshl_add_u32 v12, v12, 8, v15")
    if nt == 3:
        a("v_lshrrev_b32 v15, 1, v6")
        a("s_add_u32 s46, s46, 4")
        a("v_add_u32 v15, s46, v15")
        a("v_and_b32 v7, 1, v6")
        a("v_lshl_add_u32 v13, v7, 3, v13")
        a("v_lshl_add_u32 v7, v15, 7, v13")
        a(f"v_add_u32 v7, {L_HH}, v7")
        a("v_lshrrev_b32 v8, 2, v15")
        a("v_lshl_add_u32 v13, v8, 12, v13")
        a("v_and_b32 v15, 3, v15")
        a("v_lshl_add_u32 v13, v15, 8, v13")
    a("s_mov_b64 exec, s[54:55]")
    for i in range(nt // 2):
        a(f"ds_write_b128 v14, {v(T+4*i,4)} offset:{i*512}")
    if nt == 3: a(f"ds_write_b64 v7, {v(T+4,2)}")
    a("s_mov_b64 exec, -1")
    a("s_mul_i32 s46, s56, 73728")
    a("s_lshr_b32 s47, s43, 1")
    a("s_lshl_b32 s47, s47, 10")
    a("s_add_u32 s46, s46, s47")
    a("s_and_b32 s47, s43, 1")
    a("s_lshl_b32 s47, s47, 7")
    a("s_add_u32 s46, s46, s47")
    a(f"s_add_u32 s46, s46, {WS_Y}")
    a(f"s_waitcnt lgkmcnt({nt//2 + (nt & 1)})")
    for i in range(1, 8):
        a(f"v_add_f32 v{U}, v{U}, v{U+2*i}")
        a(f"v_add_f32 v{U+1}, v{U+1}, v{U+2*i+1}")
    a(f"v_mul_f32 v8, {fbits(1.0/D)}, v{U}")
    a(f"v_mul_f32 v9, {fbits(1.0/D)}, v{U+1}")
    a("v_fma_f32 v9, -v8, v8, v9")
    a("v_max_f32 v9, 0, v9")
    a(f"v_add_f32 v10, {fbits(1e-5)}, v9")
    a("v_rcp_f32 v11, v10")
    a("v_rsq_f32 v10, v10")
    a(f"v_fmaak_f32 v11, v9, v11, {fbits(1e-5)}")
    a("v_rsq_f32 v11, v11")
    a("v_mul_f32 v10, v10, v11")
    a("v_mul_f32 v8, v8, v10")
    a("s_mov_b64 exec, s[54:55]")
    for i in range(nt // 2):
        for k in range(8):
            a(f"v_fma_f32 v{WA+8*i+k}, v{WA+8*i+k}, v10, -v8")
        for k in range(4):
            a(f"v_cvt_pk_bf16_f32 v{U+4*i+k}, v{WA+8*i+2*k}, v{WA+8*i+2*k+1}")
        a(f"buffer_store_dwordx4 {v(U+4*i,4)}, v12, {s(ws,4)}, s46 offen sc1")
        if i + 1 < nt // 2: a("v_add_u32 v12, 4096, v12")
    if nt == 3:
        for k in range(4):
            a(f"v_fma_f32 v{WA+8+k}, v{WA+8+k}, v10, -v8")
        for k in range(2):
            a(f"v_cvt_pk_bf16_f32 v{U+4+k}, v{WA+8+2*k}, v{WA+8+2*k+1}")
        a(f"buffer_store_dwordx2 {v(U+4,2)}, v13, {s(ws,4)}, s46 offen sc1")
    a("s_mov_b64 exec, -1")

def fallback(a):
    a.label("L_a_fallback")
    a("s_mov_b32 s60, 1")
    tot = 16 * KV_BLK
    a(f"v_cndmask_b32 v{QX[0]}, 0, v{QX[0]}, s[50:51]")
    a(f"v_mov_b32 v{QX[1]}, v{QX[0]}")
    a("v_mov_b32 v5, 0xff800000")
    for ps in range(2):
        for r in (KA_, KR_, VA_):
            a(f"v_subrev_u32 v{r}, {tot}, v{r}")
        a("s_mov_b32 s48, 0")
        a.label(f"L_a_fb{ps}")
        a(f"ds_read_b128 {v(KRB[0],4)}, v{KR_}")
        for t in range(4):
            a(f"ds_read_b128 {v(KB[0],4)}, v{KA_} offset:{koff(t)}")
            if ps == 1:
                a(f"ds_read_b128 {v(VB[0],4)}, v{VA_} offset:{voff(t,0)}")
                a(f"ds_read_b128 {v(VB[0]+4,4)}, v{VA_} offset:{voff(t,1)}")
            a("s_waitcnt lgkmcnt(0)")
            mfma32(a, SB[0], KB[0], Q1, None)
            mfma32(a, SB[0], KRB[0], Q2POS[t], SB[0])
            S0 = SB[0]
            if ps == 0:
                for i in range(8):
                    a(f"v_max3_f32 v5, v{S0+2*i}, v{S0+2*i+1}, v5")
            else:
                for i in range(16): a(f"v_sub_f32 v{S0+i}, v{S0+i}, v5")
                for i in range(16): a(f"v_exp_f32 v{S0+i}, v{S0+i}")
                for i in range(8): a(f"v_cvt_pk_bf16_f32 v{P+i}, v{S0+2*i}, v{S0+2*i+1}")
                mfma32(a, O, VB[0], P, O)
                mfma32(a, O, VB[0] + 4, P + 4, O)
                a("s_nop 7")
        for r in (KA_, KR_, VA_):
            a(f"v_add_u32 v{r}, {KV_BLK}, v{r}")
        a("s_add_u32 s48, s48, 1")
        a("s_cmp_lt_u32 s48, 16")
        a(f"s_cbranch_scc1 L_a_fb{ps}")
        if ps == 0:
            a("v_mov_b32 v6, v5")
            a("v_permlane32_swap_b32 v5, v6")
            a("v_max_f32 v5, v5, v6")
            for r in range(O, O + 16): a(f"v_mov_b32 v{r}, 0")
    a("s_branch L_a_norm")

def gelu(a, regs, tmp, vc1):
    if NOGELU: return
    for k in range(0, len(regs), 8):
        g = regs[k:k+8:2]
        T = [tmp + 2*i for i in range(len(g))]
        if PKGELU:
            for x, t in zip(g, T): a(f"v_pk_mul_f32 {v(t,2)}, {v(x,2)}, {v(x,2)}")
            for x, t in zip(g, T): a(f"v_pk_fma_f32 {v(t,2)}, {v(t,2)}, {v(vc1,2)}, s[78:79]")
            for x, t in zip(g, T): a(f"v_pk_mul_f32 {v(t,2)}, {v(x,2)}, {v(t,2)}")
            for x, t in zip(g, T): a(f"v_exp_f32 v{t}, v{t}"); a(f"v_exp_f32 v{t+1}, v{t+1}")
            for x, t in zip(g, T): a(f"v_pk_add_f32 {v(t,2)}, {v(t,2)}, 1.0 op_sel_hi:[1,0]")
            for x, t in zip(g, T): a(f"v_rcp_f32 v{t}, v{t}"); a(f"v_rcp_f32 v{t+1}, v{t+1}")
            for x, t in zip(g, T): a(f"v_pk_mul_f32 {v(x,2)}, {v(x,2)}, {v(t,2)}")
        else:
            g = regs[k:k+8]; T = [tmp + i for i in range(len(g))]
            for x, t in zip(g, T): a(f"v_mul_f32 v{t}, v{x}, v{x}")
            for x, t in zip(g, T): a(f"v_fmaak_f32 v{t}, v{vc1}, v{t}, {fbits(C0)}")
            for x, t in zip(g, T): a(f"v_mul_f32 v{t}, v{x}, v{t}")
            for x, t in zip(g, T): a(f"v_exp_f32 v{t}, v{t}")
            for x, t in zip(g, T): a(f"v_add_f32 v{t}, 1.0, v{t}")
            for x, t in zip(g, T): a(f"v_rcp_f32 v{t}, v{t}")
            for x, t in zip(g, T): a(f"v_mul_f32 v{x}, v{x}, v{t}")

def acc(t, q): return ACC + (t * 4 + q) * 4

def mlp_setup(a):
    a(f"v_add_u32 v3, {L_Y}, v2")
    a(f"v_add_u32 v4, {L_Y + 36864}, v2")
    a("v_and_b32 v9, 15, v1")
    a("v_lshlrev_b32 v9, 4, v9")
    a(f"v_mov_b32 v{GT+22}, {fbits(C1)}")
    a(f"v_mov_b32 v{GT+23}, {fbits(C1)}")
    a(f"s_mov_b32 s78, {fbits(C0)}")
    a(f"s_mov_b32 s79, {fbits(C0)}")
    a("v_bfe_u32 v14, v1, 3, 1")
    a("s_mov_b32 s46, 73728")
    a("v_mul_lo_u32 v14, v14, s46")
    a("v_lshl_add_u32 v14, v5, 4, v14")
    a("v_and_b32 v15, 1, v6")
    a("s_mov_b32 s46, 147456")
    a("v_mul_lo_u32 v15, v15, s46")
    a("v_add_u32 v15, v15, v14")
    a("v_lshrrev_b32 v7, 1, v6")
    a("v_lshl_add_u32 v15, v7, 7, v15")
    a("v_lshl_add_u32 v14, v6, 7, v14")
    a("s_lshl_b32 s71, s56, 6")
    a("s_add_u32 s71, s71, s43")
    a("s_mul_i32 s71, s71, 9216")
    a(f"s_add_u32 s71, s71, {WS_P}")

def bias_init(a):
    a("s_mul_i32 s46, s68, 192")
    a(f"s_add_u32 s46, s46, {L_B1}")
    a("v_lshl_add_u32 v11, v6, 5, s46")
    a("v_lshl_add_u32 v12, v6, 4, s46")
    a(f"ds_read_b128 {v(CI,4)}, v11 offset:{L_B1D - L_B1}")
    a(f"ds_read_b128 {v(CI+4,4)}, v11 offset:{L_B1D - L_B1 + 16}")
    a(f"ds_read_b128 {v(CI+8,4)}, v12 offset:128")

def to_gemm2(a):
    for r in (3, 4):
        a(f"v_add_u32 v{r}, {L_H - L_Y}, v{r}")
    for i in range(12): a(f"v_mov_b32 v{CI+i}, 0")

def call(a, name):
    a(f"s_call_b64 s[74:75], {name}")

def mlp(a):
    ws = WS_
    a.label("L_m_roleA")
    mlp_setup(a)
    a("s_setprio 3")
    a("s_barrier")
    stamp(a, 10); stamp_rt(a, 48)
    a("s_mov_b32 s68, s40")
    bias_init(a)
    a("s_mov_b32 s69, 3")
    call(a, "L_m_pass")
    stamp(a, 12)
    a("s_setprio 1")
    call(a, "L_m_gelu")
    stamp(a, 13)
    a("s_setprio 1")
    a("s_add_u32 s68, s40, 8")
    bias_init(a)
    a("s_mov_b32 s69, 0")
    call(a, "L_m_pass")
    a("s_setprio 0")
    stamp(a, 14)
    a("s_barrier")
    stamp(a, 11)
    call(a, "L_m_gelu")
    stamp(a, 15)
    a("s_waitcnt lgkmcnt(0)")
    a("s_barrier")
    a("s_setprio 2")
    to_gemm2(a)
    a("s_mov_b32 s69, 10")
    call(a, "L_m_pass")
    a("s_setprio 0")
    a("s_add_u32 s68, s40, 4")
    stamp(a, 16)
    if GATEA: a("s_barrier")
    call(a, "L_m_store")
    reduce_setup(a)
    if not GATEA: a("s_barrier")
    stamp(a, 24)
    a("s_waitcnt vmcnt(0)")
    flag_store(a, WS_FP1, 11)
    stamp(a, 25)
    a("s_cmp_eq_u32 s40, 3")
    a("s_cbranch_scc1 L_r_st1")
    flag_poll(a, "r_poll0", 8, GT, 53, 1)
    a("s_mov_b32 s48, s40")
    call(a, "L_r_item")
    a("s_cmp_eq_u32 s40, 0")
    a("s_cbranch_scc1 L_m_done")
    a.label("L_r_st1")
    a("s_add_u32 s48, s40, 2")
    a("s_add_u32 s53, s53, 16")
    flag_poll(a, "r_poll1", 8, GT, 53, 1)
    stamp(a, 17)
    call(a, "L_r_item")
    a("s_branch L_m_done")
    a.label("L_m_roleB")
    for k in range(3): a_loads(a, k)
    a("s_waitcnt vmcnt(9)")
    flag_store(a, WS_FY, 8)
    stamp(a, 26); stamp_rt(a, 40)
    a("s_lshl_b32 s46, s56, 8")
    a(f"s_add_u32 s53, s46, {WS_FY}")
    srd(a, XS_, 18, F * 2)
    a("s_lshl_b32 s46, s40, 6")
    a("v_add_u32 v8, s46, v1")
    a("v_lshlrev_b32 v11, 2, v8")
    a("s_mul_i32 s46, s43, 1152")
    a(f"buffer_load_dword v{GT}, v11, {s(XS_,4)}, s46 offen")
    a(f"buffer_load_dword v{GT+1}, v11, {s(XS_,4)}, s46 offen offset:1024")
    mlp_setup(a)
    a("v_lshlrev_b32 v11, 3, v8")
    a(f"v_add_u32 v11, {L_B1}, v11")
    a("s_waitcnt vmcnt(0)")
    a(f"v_lshlrev_b32 v{GT+2}, 16, v{GT}")
    a(f"v_and_b32 v{GT+3}, 0xffff0000, v{GT}")
    a(f"v_lshlrev_b32 v{GT+4}, 16, v{GT+1}")
    a(f"v_and_b32 v{GT+5}, 0xffff0000, v{GT+1}")
    a(f"ds_write_b64 v11, {v(GT+2,2)}")
    a("v_lshrrev_b32 v12, 2, v8")
    a("v_lshlrev_b32 v12, 5, v12")
    a("v_and_b32 v13, 3, v8")
    a("v_lshl_add_u32 v12, v13, 2, v12")
    a(f"v_add_u32 v12, {L_B1D}, v12")
    a(f"ds_write2_b32 v12, v{GT+2}, v{GT+3} offset0:0 offset1:4")
    a("v_add_u32 v12, 2048, v12")
    a("s_cmp_lg_u32 s40, 0")
    a("s_cbranch_scc1 L_m_nob2")
    a("s_mov_b64 exec, 0xffffffff")
    a(f"ds_write_b64 v11, {v(GT+4,2)} offset:2048")
    a(f"ds_write2_b32 v12, v{GT+4}, v{GT+5} offset0:0 offset1:4")
    a("s_mov_b64 exec, -1")
    a.label("L_m_nob2")
    for k in range(3, RDS - 1): a_loads(a, k)
    a("v_lshlrev_b32 v8, 2, v1")
    flag_poll(a, "m_ypoll", 8, GT, 53, 1)
    stamp_rt(a, 43)
    stamp(a, 10)
    a("s_mul_i32 s46, s56, 73728")
    a("s_lshl_b32 s47, s40, 10")
    a("s_add_u32 s46, s46, s47")
    a(f"s_add_u32 s46, s46, {WS_Y}")
    for st in range(18):
        a(f"s_add_u32 m0, s47, {L_Y + st*4096}")
        if st: a("s_add_u32 s46, s46, 4096")
        a(f"buffer_load_dwordx4 v2, {s(ws,4)}, s46 offen sc1 {YMOD} lds")
    a("s_waitcnt vmcnt(12) lgkmcnt(0)")
    a("s_barrier")
    a("s_setprio 2")
    a("s_add_u32 s68, s40, 4")
    bias_init(a)
    a("s_mov_b32 s69, 3")
    call(a, "L_m_pass")
    stamp(a, 12)
    a("s_setprio 0")
    call(a, "L_m_gelu")
    stamp(a, 13)
    to_gemm2(a)
    a("s_setprio 3")
    a("s_waitcnt lgkmcnt(0)")
    a("s_barrier")
    stamp(a, 11)
    a("s_mov_b32 s69, 2")
    call(a, "L_m_pass")
    a("s_setprio 0")
    a("s_mov_b32 s68, s40")
    stamp(a, 15)
    a("s_barrier")
    stamp(a, 24)
    call(a, "L_m_store")
    a("s_setprio 1")
    a("s_mov_b32 s69, 14")
    call(a, "L_m_pass")
    a("s_setprio 3")
    a("s_add_u32 s68, s40, 8")
    stamp(a, 16); stamp_rt(a, 46)
    call(a, "L_m_store")
    reduce_setup(a)
    a("s_cmp_eq_u32 s40, 3")
    a("s_cbranch_scc1 L_m_done")
    a("s_add_u32 s48, s40, 6")
    a("s_mov_b32 s73, 1")
    a("s_waitcnt vmcnt(0)")
    stamp_rt(a, 42)
    call(a, "L_r_item")
    a.label("L_m_done")

def subroutines(a):
    ws = WS_
    a.raw(".p2align 6")
    a.label("L_m_pass")
    def b_read(ks, a=a):
        b = BR + (ks % 3) * 16
        for q in range(4):
            a(f"ds_read_b128 {v(b+4*q,4)}, v{3 + ks // 9} offset:{(ks % 9)*4096 + q*1024}")
    def step(ks, loads):
        left = 3*(RDS-2) if loads else 3 * (17 - ks)
        a(f"s_waitcnt vmcnt({left}) lgkmcnt({4 if ks < 17 else 0})")
        b = BR + (ks % 3) * 16
        A = AR + 12 * (ks % RDS)
        R = Lst(); L = Lst()
        if ks + 2 < 18: b_read(ks + 2, R)
        if loads: a_loads(L, (ks - 1) % RDS)
        fill = {}
        for i, x in enumerate(R): fill[(0, 2, 4, 6)[i]] = x
        for i, x in enumerate(L): fill[(1, 5, 8, 10)[i]] = x
        n = 0
        for t in range(3):
            for q in range(4):
                mfma16(a, acc(t, q), A + 4*t, b + 4*q, CI + 4*t if ks == 0 else acc(t, q))
                if n in fill: a(fill[n])
                n += 1
    for ks in range(2): b_read(ks)
    for ks in range(18):
        if ks in (4, 10):
            a(f"s_bitcmp1_b32 s69, {0 if ks == 4 else 1}")
            a(f"s_cbranch_scc0 L_m_nb{ks}")
            if ks == 4: a("s_waitcnt vmcnt(18)")
            a("s_barrier")
            if ks == 10:
                a("s_bitcmp1_b32 s69, 3")
                a("s_cbranch_scc1 L_m_tail")
            a.label(f"L_m_nb{ks}")
        if ks == 8:
            a("s_bitcmp1_b32 s69, 2")
            a("s_cbranch_scc0 L_m_nf")
            flag_store(a, WS_FP1, 11)
            a.label("L_m_nf")
        step(ks, True)
    a("s_nop 7")
    a("s_setpc_b64 s[74:75]")
    a.label("L_m_tail")
    for ks in range(10, 18): step(ks, False)
    a("s_nop 7")
    a("s_setpc_b64 s[74:75]")
    a.label("L_m_gelu")
    a("s_mul_i32 s46, s68, 6")
    a("v_add_u32 v11, s46, v6")
    a("v_lshrrev_b32 v12, 2, v11")
    a("v_lshl_add_u32 v12, v12, 12, v9")
    a("v_and_b32 v11, 3, v11")
    a("v_lshl_add_u32 v11, v11, 8, v12")
    a(f"v_add_u32 v11, {L_H}, v11")
    a("s_add_u32 s46, s46, 4")
    a("v_add_u32 v12, s46, v7")
    a("v_lshrrev_b32 v13, 2, v12")
    a("v_lshl_add_u32 v13, v13, 12, v9")
    a("v_and_b32 v12, 3, v12")
    a("v_lshl_add_u32 v12, v12, 8, v13")
    a("v_and_b32 v13, 1, v6")
    a("v_lshl_add_u32 v12, v13, 3, v12")
    a(f"v_add_u32 v12, {L_H}, v12")
    for qq in range(2):
        for t in range(3):
            gelu(a, list(range(acc(t, 2*qq), acc(t, 2*qq) + 8)), GT, GT + 22)
        for q in (2*qq, 2*qq + 1):
            o = GT + 8 + (q & 1) * 6
            for r in range(4):
                a(f"v_cvt_pk_bf16_f32 v{o+r}, v{acc(0,q)+r}, v{acc(1,q)+r}")
            a(f"v_cvt_pk_bf16_f32 v{o+4}, v{acc(2,q)}, v{acc(2,q)+1}")
            a(f"v_cvt_pk_bf16_f32 v{o+5}, v{acc(2,q)+2}, v{acc(2,q)+3}")
            a(f"ds_write_b128 v11, {v(o,4)} offset:{q*1024}")
            a(f"ds_write_b64 v12, {v(o+4,2)} offset:{q*1024}")
    a("s_setpc_b64 s[74:75]")
    store_sub(a, "L_m_store", False)

def store_sub(a, name, paced):
    ws = WS_
    a.label(name)
    a("s_mul_i32 s46, s68, 768")
    a("s_add_u32 s46, s46, s71")
    for q in range(4):
        o = GT + (q & 1) * 4
        for r in range(4):
            a(f"v_cvt_pk_bf16_f32 v{o+r}, v{acc(0,q)+r}, v{acc(1,q)+r}")
        o2 = GT + 8 + (q >> 1) * 4 + (q & 1) * 2
        a(f"v_cvt_pk_bf16_f32 v{o2}, v{acc(2,q)}, v{acc(2,q)+1}")
        a(f"v_cvt_pk_bf16_f32 v{o2+1}, v{acc(2,q)+2}, v{acc(2,q)+3}")
        a(f"s_add_u32 s47, s46, {q*147456}")
        a(f"buffer_store_dwordx4 {v(o,4)}, v14, {s(ws,4)}, s47 offen sc1" if not DBG & 4 else "s_nop 0")
        if paced: a(f"s_waitcnt vmcnt({PACE})")
        if q & 1:
            b = GT + 8 + (q >> 1) * 4
            a(f"v_permlane16_swap_b32 v{b}, v{b+2}")
            a(f"v_permlane16_swap_b32 v{b+1}, v{b+3}")
            a(f"s_add_u32 s47, s46, {(q-1)*147456}")
            a(f"buffer_store_dwordx4 {v(b,4)}, v15, {s(ws,4)}, s47 offen offset:512 sc1" if not DBG & 4 else "s_nop 0")
            if paced: a(f"s_waitcnt vmcnt({PACE})")
    a("s_nop 1")
    a("s_setpc_b64 s[74:75]")

def reduce_setup(a):
    srd(a, XS_, 22, D * 2)
    srd(a, 24, 6, S * D * 2)
    a("s_mov_b32 s76, 0x00003f80")
    a("s_mov_b32 s77, 0x3f800000")
    a("s_lshl_b32 s46, s56, 8")
    a(f"s_add_u32 s53, s46, {WS_FP1}")
    a("v_lshlrev_b32 v8, 2, v1")
    a("v_and_b32 v8, 0xec, v8")
    a("s_mov_b32 s73, 0")

def reduce_item(a):
    ws = WS_
    a.label("L_r_item")
    R = 32
    a("v_lshrrev_b32 v11, 3, v1")
    a("v_lshlrev_b32 v11, 4, v11")
    a("s_lshl_b32 s45, s48, 7")
    a(f"buffer_load_dwordx4 {v(R+32,4)}, v11, {s(XS_,4)}, s45 offen")
    a("s_mul_i32 s72, s57, 73728")
    a("s_lshl_b32 s47, s48, 10")
    a("s_add_u32 s72, s72, s47")
    a(f"s_add_u32 s72, s72, {WS_P}")
    a(f"s_add_u32 s47, s47, {L_HH}")
    a("v_add_u32 v12, s47, v2")
    a(f"ds_read_b128 {v(R+36,4)}, v12")
    a("s_mov_b32 s62, 0xff")
    a(f"s_mov_b32 s49, {POLL_MAX}")
    a.label("L_r_again")
    for i in range(8):
        a(f"s_bitcmp1_b32 s62, {i}")
        a(f"s_cbranch_scc0 L_r_sk{i}")
        a(f"s_add_u32 s46, s72, {i*9216}")
        a(f"buffer_load_dwordx4 {v(R+4*i,4)}, v2, {s(ws,4)}, s46 offen sc1")
        a.label(f"L_r_sk{i}")
    a("s_cmp_eq_u32 s73, 0")
    a("s_cbranch_scc1 L_r_have")
    a("s_waitcnt vmcnt(0)")
    a("s_mov_b32 s62, 0")
    for i in range(8):
        a(f"v_max3_u32 v13, v{R+4*i}, v{R+4*i+1}, v{R+4*i+2}")
        a(f"v_max_u32 v13, v13, v{R+4*i+3}")
        a("v_cmp_eq_u32 vcc, -1, v13")
        a("s_nop 1")
        a("s_cmp_lg_u64 vcc, 0")
        a(f"s_cselect_b32 s46, {1 << i}, 0")
        a("s_or_b32 s62, s62, s46")
    a("s_cbranch_scc0 L_r_have")
    a(f"s_sleep {RSLEEP}")
    a("s_sub_u32 s49, s49, 1")
    a("s_cbranch_scc0 L_r_again")
    a.label("L_r_have")
    stamp_rt(a, 45)
    a("v_mad_u32_u24 v11, v5, s44, v11")
    a("s_mul_i32 s46, s57, 9216")
    a("s_add_u32 s46, s46, s45")
    a("s_waitcnt lgkmcnt(0)")
    for r in range(4):
        a(f"v_lshlrev_b32 v{16+2*r}, 16, v{R+36+r}")
        a(f"v_and_b32 v{17+2*r}, 0xffff0000, v{R+36+r}")
    for k, i in enumerate([8] + list(range(8))):
        a(f"s_waitcnt vmcnt({8-k})")
        for r in range(4):
            a(f"v_dot2_f32_bf16 v{16+2*r}, v{R+4*i+r}, s76, v{16+2*r}")
            a(f"v_dot2_f32_bf16 v{17+2*r}, v{R+4*i+r}, s77, v{17+2*r}")
    for r in range(4):
        a(f"v_cvt_pk_bf16_f32 v{24+r}, v{16+2*r}, v{17+2*r}")
    a("buffer_store_dwordx4 v[24:27], v11, s[24:27], s46 offen")
    a("s_nop 1")
    a("s_setpc_b64 s[74:75]")

def k_main(name):
    a = Asm()
    kernel_head(a, name)
    a("s_cmp_ge_u32 s2, 256")
    a("s_cbranch_scc1 L_end")
    stamp_first(a)
    prologue(a)
    stamp_init(a, 0)
    attention(a)
    mlp(a)
    stamp_dump(a, 2)
    a.label("L_end")
    a("s_endpgm")
    subroutines(a)
    reduce_item(a)
    return a.finish(), descriptor(name, 256, 80)
```

```python
from common import *
from k_pack import *
import math

QSCALE = math.log2(math.e) / math.sqrt(DH)
LDS_QKV = 163840
LX = 0; LW = 73728; LE = LW + 17 * 5120
assert LE + 1280 + 512 <= LDS_QKV
MAIN_CODE_KB = [0]
QDBG = int(os.environ.get("QDBG", "0"))

def k_qkv(name):
    a = Asm()
    kernel_head(a, name)
    XF = 16
    AF = 28
    ACC = 64
    GRAM = 76; CS = 80; ONES = 100; G17 = 104; WOR = 104; T = 120
    a("s_cmp_ge_u32 s2, 256")
    a("s_cbranch_scc1 L_q_end")
    stamp_first(a)
    a(f"s_load_dwordx8 s[4:11], s[0:1], {KA['x']}")
    a(f"s_load_dwordx2 s[12:13], s[0:1], {KA['ws']}")
    a(f"s_load_dwordx2 s[14:15], s[0:1], {KA['wo']}")
    a("v_and_b32 v1, 63, v0")
    a("v_lshrrev_b32 v7, 6, v0")
    a("v_readfirstlane_b32 s3, v7")
    stamp_init(a, 127)
    a("s_and_b32 s40, s2, 31")
    a("s_lshr_b32 s41, s2, 5")
    a("s_movk_i32 s44, 1152")
    a("s_lshl_b32 s42, s40, 6")
    a("s_and_b32 s43, s3, 3")
    a("v_lshlrev_b32 v6, 4, v1")
    a("v_lshrrev_b32 v10, 4, v1")
    a("v_and_b32 v11, 15, v1")
    a("s_cmp_ge_u32 s3, 12")
    a("s_cbranch_scc1 L_q_aux")
    a("s_cmp_ge_u32 s3, 4")
    a("s_cbranch_scc1 L_q_compute")
    a("v_lshrrev_b32 v8, 3, v1")
    a("v_and_b32 v9, 7, v1")
    a("v_xor_b32 v12, v9, v8")
    a("v_lshlrev_b32 v12, 4, v12")
    a("v_mad_u32_u24 v12, v8, s44, v12")
    a("v_and_b32 v13, 2, v8")
    a("v_xor_b32 v13, v9, v13")
    a("v_lshlrev_b32 v13, 4, v13")
    a("v_mad_u32_u24 v13, v8, s44, v13")
    a("v_xor_b32 v14, 64, v13")
    a(f"v_add_u32 v14, {8*1152}, v14")
    a("s_lshr_b32 s45, s40, 3")
    a("s_add_u32 s60, s45, s41")
    a("s_lshl_b32 s45, s43, 4")
    a("s_add_u32 s46, s42, s45")
    a("s_mul_i32 s46, s46, 1152")
    a(f"s_mul_i32 s47, s43, {32*1152}")
    a("s_lshl_b32 s48, s41, 7")
    a("s_add_u32 s47, s47, s48")
    a("s_lshl_b32 s50, s43, 11")
    a("s_mul_i32 s51, s43, 5120")
    a(f"s_add_u32 s51, s51, {LW}")
    a("s_waitcnt lgkmcnt(0)")
    srd(a, 16, 4, S * D * 2)
    srd(a, 20, 6, D * D * 2)
    first = [True]
    def round_issue(rho):
        if rho < 4:
            a(f"s_add_u32 s61, s60, {rho}")
            a("s_and_b32 s61, s61, 3")
        else:
            a("s_mov_b32 s61, 4")
        a("s_lshl_b32 s62, s61, 8")
        a("s_add_u32 s62, s62, s46")
        a(f"s_mul_i32 s63, s61, {128*1152}")
        a("s_add_u32 s63, s63, s47")
        a(f"s_add_u32 s64, s62, {8*1152}")
        def dx(h):
            kp = 2*rho + h
            a(f"s_add_u32 m0, s50, {LX + kp*8192 - h*128}")
            a(f"buffer_load_dwordx4 v12, s[16:19], s62 offen offset:{h*128} lds")
            a(f"s_add_u32 m0, s50, {LX + kp*8192 + 1024 - h*128}")
            a(f"buffer_load_dwordx4 v12, s[16:19], s64 offen offset:{h*128} lds")
        dx(0)
        if rho == 4:
            a("s_cmp_lg_u32 s43, 0")
            a("s_cbranch_scc1 L_q_g17")
        for p in range(4):
            a(f"s_add_u32 m0, s51, {rho*20480 + p*1024}")
            if p == 2: a(f"s_add_u32 s63, s63, {16*1152}")
            a(f"buffer_load_dwordx4 v{13 + (p & 1)}, s[20:23], s63 offen lds")
        if first[0]:
            first[0] = False
            a("s_cmp_lt_u32 s41, 6")
            a("s_cselect_b32 s24, s8, s10")
            a("s_cselect_b32 s25, s9, s11")
            a("s_cmp_lt_u32 s41, 4")
            a("s_cselect_b32 s24, s6, s24")
            a("s_cselect_b32 s25, s7, s25")
            csel(a, 26, D * D * 2, D * DH * 2)
            csel(a, 54, 1152, 36)
            a("s_lshl_b32 s55, s41, 5")
            a("s_add_u32 s56, s55, 1024")
            a("s_and_b32 s55, s55, 32")
            a("s_cmp_lt_u32 s41, 4")
            a("s_cselect_b32 s55, s56, s55")
            a("s_and_b32 s25, s25, 0xffff")
            a("s_mov_b32 s27, 0x00020000")
            a("s_lshl_b32 s56, s43, 5")
            a("s_mul_i32 s56, s56, s54")
            a("s_add_u32 s55, s55, s56")
            a("s_lshl_b32 s56, s54, 7")
            a("v_lshrrev_b32 v8, 1, v1")
            a("v_lshrrev_b32 v9, 2, v1")
            a("v_and_b32 v9, 4, v9")
            a("v_xor_b32 v8, v8, v9")
            a("v_and_b32 v9, 1, v1")
            a("v_lshlrev_b32 v9, 4, v9")
            a("v_mad_u32_u24 v15, v8, s54, v9")
        a("s_mul_i32 s65, s61, s56")
        a("s_add_u32 s65, s65, s55")
        a(f"s_add_u32 m0, s51, {rho*20480 + 4096}")
        a("buffer_load_dwordx4 v15, s[24:27], s65 offen lds")
        if rho < 4: dx(1)
        else:
            a("s_branch L_q_issued")
            a.label("L_q_g17")
            for p in range(4):
                if p == 2: a(f"s_add_u32 s63, s63, {16*1152}")
                a(f"buffer_load_dwordx4 {v(G17+4*p,4)}, v{13 + (p & 1)}, s[20:23], s63 offen")
            a("s_mul_i32 s65, s61, s56")
            a("s_add_u32 s65, s65, s55")
            a(f"buffer_load_dwordx4 {v(G17+16,4)}, v15, s[24:27], s65 offen")
            a.label("L_q_issued")
    round_issue(0); round_issue(1)
    stamp(a, 1)
    for rho in range(4):
        a(f"s_waitcnt vmcnt({9 if rho < 3 else 7})")
        a("s_barrier")
        if rho == 0: stamp(a, 4)
        if rho < 3: round_issue(rho + 2)
    a("s_waitcnt vmcnt(0)")
    a("s_cmp_lg_u32 s43, 1")
    a("s_cbranch_scc1 L_q_nog17")
    a(f"v_add_u32 v9, {LW}, v6")
    for p in range(5):
        a(f"ds_write_b128 v9, {v(G17+4*p,4)} offset:{p*1024}")
    a("s_waitcnt lgkmcnt(0)")
    a.label("L_q_nog17")
    a("s_barrier")
    stamp(a, 8)
    a("s_branch L_q_fin")
    a.label("L_q_aux")
    tr_addrs(a, "0")
    a("v_xor_b32 v7, 64, v2")
    a("v_xor_b32 v8, 64, v3")
    a("s_mul_i32 s45, s43, 5120")
    for r in (2, 3, 4, 5, 7, 8): a(f"v_add_u32 v{r}, s45, v{r}")
    for i in range(4): a(f"v_mov_b32 v{ONES+i}, 0x3f803f80")
    a("s_waitcnt lgkmcnt(0)")
    srd(a, 32, 12, WS_END)
    srd(a, 36, 14, D * D * 2)
    a("s_lshl_b32 s57, s43, 8")
    a("s_add_u32 s57, s57, s2")
    a("s_min_u32 s70, s57, 647")
    W = Lst()
    wo_job_loads(W, 70, 36, 71, 58, 1, 9, 12, 48)
    k0 = [i for i, x in enumerate(W) if x.startswith("buffer_load")][0]
    for x in W[:k0]: a(x)
    a("s_getpc_b64 s[66:67]")
    a.label("L_q_pc")
    a("s_lshr_b32 s68, s2, 3")
    a("s_lshl_b32 s68, s68, 2")
    a("s_add_u32 s68, s68, s43")
    a(f"s_min_u32 s68, s68, {MAIN_CODE_KB[0] - 1}")
    a("s_lshl_b32 s68, s68, 10")
    a("s_add_u32 s68, s68, main_kernel - L_q_pc")
    a("s_add_u32 s66, s66, s68")
    a("s_addc_u32 s67, s67, 0")
    a(f"s_load_dwordx2 s[16:17], s[0:1], {KA['w1']}")
    a(f"s_load_dwordx2 s[18:19], s[0:1], {KA['w2']}")
    a("s_waitcnt lgkmcnt(0)")
    a("s_bitcmp1_b32 s43, 0")
    a("s_cselect_b32 s20, s16, s18")
    a("s_cselect_b32 s21, s17, s19")
    a("s_and_b32 s21, s21, 0xffff")
    a(f"s_mov_b32 s22, {D*F*2}")
    a("s_mov_b32 s23, 0x00020000")
    a("s_mov_b32 s45, 0x14400")
    a("v_mul_lo_u32 v13, v1, s45")
    a("s_mul_i32 s45, s43, 320")
    a(f"s_add_u32 s45, s45, {LE}")
    a("v_lshl_add_u32 v12, v10, 4, s45")
    a("s_mov_b32 s60, 0x00010001")
    a("s_mov_b32 s61, 0x00010001")
    def cs_round(rho):
        off = rho * 20480 if rho < 3 else 0
        if rho == 3:
            for r in (2, 3, 4, 5, 7, 8): a(f"v_add_u32 v{r}, 61440, v{r}")
        if rho == 4:
            a("s_cmp_ge_u32 s43, 2")
            a("s_cbranch_scc1 L_q_cs_skip")
            a("s_cmp_eq_u32 s43, 0")
            csel(a, 45, 20480, (-(61440 + 5120)) & 0xffffffff)
            for r in (2, 3, 4, 5, 7, 8): a(f"v_add_u32 v{r}, s45, v{r}")
        for t, r in enumerate((2, 3, 7, 8)):
            a(f"ds_read_b64_tr_b16 {v(AF+4*t,2)}, v{r} offset:{off}")
            a(f"ds_read_b64_tr_b16 {v(AF+4*t+2,2)}, v{r} offset:{off + 512}")
        a(f"ds_read_b64_tr_b16 {v(AF+16,2)}, v4 offset:{off}")
        a(f"ds_read_b64_tr_b16 {v(AF+18,2)}, v5 offset:{off}")
        a("s_waitcnt lgkmcnt(0)")
        for t in range(5):
            mfma16(a, CS + 4*t, AF + 4*t, ONES, None if rho == 0 else CS + 4*t)
        if rho == 4: a.label("L_q_cs_skip")
    for rho in range(5):
        a("s_barrier")
        if rho == 3:
            for x in W[k0:]: a(x)
            a(f"global_load_dword v124, v6, s[66:67]")
            if os.environ.get("TOUCH", "1") == "1":
                a("buffer_load_dword v125, v13, s[20:23], 0 offen")
        cs_round(rho)
    a("s_nop 7")
    a("s_mov_b64 exec, s[60:61]")
    for t in range(5):
        a(f"ds_write_b128 v12, {v(CS+4*t,4)} offset:{t*64}")
    a("s_mov_b64 exec, -1")
    a("s_waitcnt lgkmcnt(0)")
    a("s_barrier")
    stamp(a, 9)
    a("s_cmp_ge_u32 s57, 648")
    a("s_cbranch_scc1 L_q_fin")
    a(f"s_waitcnt vmcnt({2 if os.environ.get('TOUCH', '1') == '1' else 1})")
    merge_store(a, 48, 56, 32, 6, 58)
    a("s_cmp_ge_u32 s57, 28")
    a("s_cbranch_scc1 L_q_fin")
    for i in range(4): a(f"v_mov_b32 v{116+i}, 0")
    a("s_lshl_b32 s45, s57, 10")
    a(f"s_add_u32 s45, s45, {WS_FLAGS}")
    a(f"buffer_store_dwordx4 v[116:119], v6, s[32:35], s45 offen")
    a("s_branch L_q_fin")
    a.label("L_q_compute")
    a("s_getpc_b64 s[66:67]")
    a.label("L_q_pc2")
    a(f"s_sub_u32 s66, s66, L_q_pc2 - {name}")
    a("s_subb_u32 s67, s67, 0")
    a("s_sub_u32 s59, s3, 4")
    a("s_lshl_b32 s45, s59, 10")
    a("v_add_u32 v2, s45, v6")
    a(f"global_load_dwordx4 {v(T,4)}, v2, s[66:67]")
    a("v_and_b32 v12, 7, v1")
    a("v_xor_b32 v12, v10, v12")
    a("v_lshlrev_b32 v12, 4, v12")
    a("v_lshl_add_u32 v7, v11, 7, v12")
    a("s_lshl_b32 s45, s43, 11")
    a("v_add_u32 v7, s45, v7")
    a("v_xor_b32 v8, 64, v7")
    a("s_lshr_b32 s45, s59, 2")
    a("s_lshl_b32 s45, s45, 1")
    tr_addrs(a, "s45")
    for i in range(4): a(f"v_mov_b32 v{ONES+i}, 0x3f803f80")
    a("s_lshl_b32 s45, s43, 4")
    a("s_add_u32 s42, s42, s45")
    a("v_add_u32 v9, s42, v11")
    a("s_lshl_b32 s46, s43, 7")
    a(f"s_add_u32 s46, s46, {LE + 1280}")
    a("v_lshl_add_u32 v13, v11, 3, s46")
    a(f"v_lshlrev_b32 v12, 4, v10")
    a(f"v_add_u32 v12, {LE}, v12")
    a("v_and_b32 v14, 3, v1")
    a("v_cmp_eq_u32 s[60:61], 1, v14")
    a("v_cmp_eq_u32 s[62:63], 2, v14")
    a("v_cmp_eq_u32 s[64:65], 3, v14")
    a("v_bfe_u32 v15, v1, 2, 2")
    a("v_cmp_eq_u32 s[68:69], v15, v10")
    a("v_and_b32 v14, 1, v10")
    a("v_lshlrev_b32 v14, 5, v14")
    a("v_lshrrev_b32 v15, 1, v10")
    a("v_lshl_add_u32 v14, v15, 4, v14")
    a(f"v_mad_u32_u24 v{T+4}, v9, s44, v14")
    a("s_waitcnt lgkmcnt(0)")
    srd(a, 32, 12, WS_END)
    a("s_cmp_ge_u32 s59, 4")
    a("s_cbranch_scc1 L_q_nh1")
    for nh in range(2):
        if nh: a.label("L_q_nh1")
        nt = 3 - nh
        nr = 7 if nh == 0 else 5
        wregs = (2, 3, 4, 5) if nh == 0 else (2, 3)
        def reads(sx):
            if QDBG & 1:
                if sx == 0:
                    for _ in range(5): a("s_barrier")
                    stamp(a, 4)
            elif sx % 4 == 0:
                a("s_barrier")
                if sx == 0: stamp(a, 4)
            if sx in (8, 16):
                a("v_add_u32 v7, 32768, v7"); a("v_add_u32 v8, 32768, v8")
                for r in wregs: a(f"v_add_u32 v{r}, 40960, v{r}")
            if sx == 17:
                for r in wregs: a(f"v_subrev_u32 v{r}, 81920, v{r}")
            xb = XF + (sx % 3) * 4; ab = AF + (sx % 3) * 12
            kp = (sx >> 1) % 4; G = (sx % 8) if sx < 17 else 0
            a(f"ds_read_b128 {v(xb,4)}, v{7 + (sx & 1)} offset:{kp*8192}")
            for t in range(2):
                a(f"ds_read_b64_tr_b16 {v(ab+4*t,2)}, v{2+t} offset:{G*5120}")
                a(f"ds_read_b64_tr_b16 {v(ab+4*t+2,2)}, v{2+t} offset:{G*5120 + 512}")
            if nh == 0:
                a(f"ds_read_b64_tr_b16 {v(ab+8,2)}, v4 offset:{G*5120}")
                a(f"ds_read_b64_tr_b16 {v(ab+10,2)}, v5 offset:{G*5120}")
        reads(0); reads(1)
        for sx in range(18):
            a(f"s_waitcnt lgkmcnt({nr if sx < 17 else 0})")
            xb = XF + (sx % 3) * 4; ab = AF + (sx % 3) * 12
            for t in range(nt):
                if not QDBG & 2: mfma16(a, ACC + 4*t, ab + 4*t, xb, None if sx == 0 else ACC + 4*t)
            if nh == 1 and not QDBG & 2:
                mfma16(a, ACC + 8, ONES, xb, None if sx == 0 else ACC + 8)
                mfma16(a, GRAM, xb, xb, None if sx == 0 else GRAM)
            if sx + 2 < 18: reads(sx + 2)
        stamp(a, 7)
        if nh == 1:
            a(f"v_cndmask_b32 v15, v{GRAM}, v{GRAM+1}, s[60:61]")
            a(f"v_cndmask_b32 v15, v15, v{GRAM+2}, s[62:63]")
            a(f"v_cndmask_b32 v15, v15, v{GRAM+3}, s[64:65]")
            a(f"v_mul_f32 v14, {fbits(1.0/D)}, v{ACC+8}")
            a(f"v_mul_f32 v15, {fbits(1.0/D)}, v15")
            a("v_fma_f32 v15, -v14, v14, v15")
            a("v_max_f32 v15, 0, v15")
            a(f"v_add_f32 v15, {fbits(1e-5)}, v15")
            a("v_rsq_f32 v15, v15")
            a("s_mov_b64 exec, s[68:69]")
            a("ds_write_b64 v13, v[14:15]")
            a("s_mov_b64 exec, -1")
            a("s_waitcnt lgkmcnt(0)")
        a("s_barrier")
        stamp(a, 9)
        tiles = (0, 1, 4) if nh == 0 else (2, 3)
        a("ds_read_b64 v[14:15], v13")
        for t, tl in enumerate(tiles):
            for w in range(4):
                a(f"ds_read_b128 {v(16 + t*16 + w*4, 4)}, v12 offset:{w*320 + tl*64}")
        a("s_lshl_b32 s46, s41, 7")
        a(f"s_add_u32 s46, s46, {WS_Q + nh*64}")
        a(f"s_waitcnt lgkmcnt({4*nt})")
        a("v_mov_b32 v13, v15")
        a(f"v_mul_f32 v15, {fbits(QSCALE)}, v15")
        for t in range(nt):
            a(f"s_waitcnt lgkmcnt({4*(nt-1-t)})")
            b = 16 + t*16
            for i in range(4):
                a(f"v_add_f32 v{b+i}, v{b+i}, v{b+4+i}")
                a(f"v_add_f32 v{b+8+i}, v{b+8+i}, v{b+12+i}")
            for i in range(4):
                a(f"v_add_f32 v{b+i}, v{b+i}, v{b+8+i}")
            for i in range(4):
                a(f"v_fma_f32 v{ACC+4*t+i}, -v14, v{b+i}, v{ACC+4*t+i}")
            if t < 2:
                for i in range(4):
                    a(f"v_mul_f32 v{ACC+4*t+i}, v{ACC+4*t+i}, v15")
                a(f"v_cvt_pk_bf16_f32 v{CS+2*t}, v{ACC+4*t}, v{ACC+4*t+1}")
                a(f"v_cvt_pk_bf16_f32 v{CS+2*t+1}, v{ACC+4*t+2}, v{ACC+4*t+3}")
            if t == 1:
                a(f"v_permlane16_swap_b32 v{CS}, v{CS+2}")
                a(f"v_permlane16_swap_b32 v{CS+1}, v{CS+3}")
                a(f"buffer_store_dwordx4 {v(CS,4)}, v{T+4}, s[32:35], s46 offen")
        if nh == 0:
            special(a, ACC + 8, CS + 4)
    a.label("L_q_fin")
    for _ in range(int(os.environ.get("QPAD", "0"))): a("s_sleep 32")
    stamp_dump(a, 1)
    a.label("L_q_end")
    a("s_endpgm")
    return a.finish(), descriptor(name, 128, 80)

def tr_addrs(a, t0):
    a("v_bfe_u32 v16, v1, 2, 2")
    a("v_lshl_add_u32 v17, v10, 3, v16")
    a("v_lshrrev_b32 v18, 1, v16")
    a("v_and_b32 v19, 1, v10")
    a("v_lshl_add_u32 v18, v19, 1, v18")
    a(f"v_xor_b32 v18, {t0}, v18")
    a("v_lshlrev_b32 v18, 5, v18")
    a("v_lshl_add_u32 v2, v17, 7, v18")
    a("v_and_b32 v18, 3, v1")
    a("v_lshl_add_u32 v2, v18, 3, v2")
    a(f"v_add_u32 v2, {LW}, v2")
    a("v_xor_b32 v3, 32, v2")
    a("v_lshlrev_b32 v19, 2, v19")
    a("v_xor_b32 v17, v17, v19")
    a("v_lshlrev_b32 v4, 5, v17")
    a("v_lshl_add_u32 v4, v18, 3, v4")
    a(f"v_add_u32 v4, {LW + 4096}, v4")
    a("v_xor_b32 v5, 128, v4")

def special(a, A, Pk):
    a("s_cmp_lt_u32 s41, 4")
    a("s_cselect_b64 vcc, -1, 0")
    a("v_cndmask_b32 v13, v13, v15, vcc")
    for i in range(4): a(f"v_mul_f32 v{A+i}, v{A+i}, v13")
    a(f"v_cvt_pk_bf16_f32 v{Pk}, v{A}, v{A+1}")
    a(f"v_cvt_pk_bf16_f32 v{Pk+1}, v{A+2}, v{A+3}")
    a("s_cbranch_scc0 L_q_kv")
    a("v_lshlrev_b32 v2, 3, v10")
    a("v_mad_u32_u24 v2, v9, s44, v2")
    a("s_lshl_b32 s46, s41, 5")
    a(f"s_add_u32 s46, s46, {WS_Q + 1024}")
    a(f"buffer_store_dwordx2 {v(Pk,2)}, v2, s[32:35], s46 offen")
    a("s_branch L_q_fin")
    a.label("L_q_kv")
    a("s_lshr_b32 s45, s42, 7")
    a(f"s_mul_i32 s45, s45, {KV_BLK}")
    a(f"s_add_u32 s45, s45, {WS_KV}")
    a("s_bfe_u32 s46, s42, 0x20005")
    a("v_and_b32 v2, 31, v9")
    a("s_cmp_ge_u32 s41, 6")
    a("s_cbranch_scc1 L_q_v")
    sigma_v(a, 3, 2, 4, 5)
    a(f"v_mul_f32 v14, v{A}, v{A}")
    a(f"v_fmac_f32 v14, v{A+1}, v{A+1}")
    a("s_lshr_b32 s49, s42, 2")
    a(f"s_add_u32 s49, s49, {WS_KMAX}")
    a("s_cmp_eq_u32 s41, 5")
    a("s_cbranch_scc1 L_q_k1")
    a("v_lshrrev_b32 v4, 1, v10")
    a("v_lshl_add_u32 v4, v4, 5, v3")
    a("v_lshlrev_b32 v4, 4, v4")
    a("v_and_b32 v5, 1, v10")
    a("v_lshl_add_u32 v4, v5, 3, v4")
    a("s_lshl_b32 s47, s46, 10")
    a("s_add_u32 s47, s47, s45")
    a(f"buffer_store_dwordx2 {v(Pk,2)}, v4, s[32:35], s47 offen")
    a(f"v_fmac_f32 v14, v{A+2}, v{A+2}")
    a(f"v_fmac_f32 v14, v{A+3}, v{A+3}")
    a("v_mov_b32 v15, v14")
    a("v_permlane32_swap_b32 v14, v15")
    a("v_add_f32 v14, v14, v15")
    a("v_mov_b32 v15, v14")
    a("v_permlane16_swap_b32 v14, v15")
    a("v_add_f32 v14, v14, v15")
    a("s_branch L_q_kmax")
    a.label("L_q_k1")
    a("v_lshlrev_b32 v3, 4, v3")
    a("s_lshl_b32 s48, s46, 2")
    a("s_add_u32 s48, s48, s45")
    a("s_add_u32 s48, s48, 4096")
    a("s_add_u32 s49, s49, 512")
    a("s_mov_b64 exec, 0xffff")
    a(f"buffer_store_dword v{Pk}, v3, s[32:35], s48 offen")
    a("s_mov_b64 exec, -1")
    a.label("L_q_kmax")
    a("s_nop 1")
    for rr in (8, 4, 2, 1):
        a(f"v_max_f32_dpp v14, v14, v14 row_ror:{rr} row_mask:0xf bank_mask:0xf")
    a("v_mov_b32 v2, 0")
    a("s_mov_b64 exec, 1")
    a("buffer_store_dword v14, v2, s[32:35], s49 offen")
    a("s_branch L_q_fin")
    a.label("L_q_v")
    a("v_lshrrev_b32 v5, 3, v2")
    a("v_mul_u32_u24 v5, 304, v5")
    a("v_and_b32 v4, 7, v2")
    a("v_lshl_add_u32 v5, v4, 1, v5")
    a("s_mul_i32 s47, s46, 1216")
    a("s_add_u32 s47, s47, s45")
    a("s_add_u32 s47, s47, 4608")
    a("s_cmp_eq_u32 s41, 7")
    a("s_cbranch_scc1 L_q_v1")
    a("v_lshl_add_u32 v4, v10, 6, v5")
    a(f"buffer_store_short v{Pk}, v4, s[32:35], s47 offen")
    a(f"buffer_store_short_d16_hi v{Pk}, v4, s[32:35], s47 offen offset:16")
    a(f"buffer_store_short v{Pk+1}, v4, s[32:35], s47 offen offset:32")
    a(f"buffer_store_short_d16_hi v{Pk+1}, v4, s[32:35], s47 offen offset:48")
    a("s_branch L_q_fin")
    a.label("L_q_v1")
    a("v_mov_b32 v4, 0x3f80")
    a("s_mov_b64 exec, 0xffff")
    a(f"buffer_store_short v{Pk}, v5, s[32:35], s47 offen offset:256")
    a(f"buffer_store_short_d16_hi v{Pk}, v5, s[32:35], s47 offen offset:272")
    a(f"buffer_store_short v4, v5, s[32:35], s47 offen offset:288")
    a("s_branch L_q_fin")
```

```python
import os
from asmlib import *
from layout import *

def srd(a, d, base, nbytes):
    a(f"s_mov_b32 s{d}, s{base}")
    a(f"s_and_b32 s{d+1}, s{base+1}, 0xffff")
    a(f"s_mov_b32 s{d+2}, {nbytes}")
    a(f"s_mov_b32 s{d+3}, 0x00020000")

def sigma_v(a, dst, src, t1, t2):
    a(f"v_and_b32 v{t1}, 4, v{src}")
    a(f"v_and_b32 v{t2}, 8, v{src}")
    a(f"v_and_b32 v{dst}, 0x13, v{src}")
    a(f"v_lshl_or_b32 v{dst}, v{t1}, 1, v{dst}")
    a(f"v_lshrrev_b32 v{t2}, 1, v{t2}")
    a(f"v_or_b32 v{dst}, v{dst}, v{t2}")

def sdiv(a, q, r, x, c, t):
    magic = -(-(1 << 32) // c)
    a(f"s_mov_b32 s{t}, {magic}")
    a(f"s_mul_hi_u32 s{q}, s{x}, s{t}")
    a(f"s_mul_i32 s{t}, s{q}, {c}")
    a(f"s_sub_u32 s{r}, s{x}, s{t}")

def kernel_head(a, name):
    a.raw(".p2align 8")
    a.raw(f".globl {name}")
    a.raw(f".type {name},@function")
    a.label(name)

def descriptor(name, nv, ns=102):
    acc = (min(nv, 256) + 3) // 4 * 4
    return f""".p2align 6
.amdhsa_kernel {name}
  .amdhsa_next_free_vgpr {nv}
  .amdhsa_next_free_sgpr {102 if os.environ.get("PROF", "0") == "1" else ns}
  .amdhsa_accum_offset {acc}
  .amdhsa_group_segment_fixed_size 0
  .amdhsa_kernarg_size 104
  .amdhsa_user_sgpr_count 2
  .amdhsa_user_sgpr_kernarg_segment_ptr 1
  .amdhsa_system_sgpr_workgroup_id_x 1
.end_amdhsa_kernel
"""

def mfma32(a, d, A, B, C):
    c = "0" if C is None else v(C, 16)
    a(f"v_mfma_f32_32x32x16_bf16 {v(d,16)}, {v(A,4)}, {v(B,4)}, {c}")
def mfma16(a, d, A, B, C):
    c = "0" if C is None else v(C, 4)
    a(f"v_mfma_f32_16x16x32_bf16 {v(d,4)}, {v(A,4)}, {v(B,4)}, {c}")

def fbits(x):
    import struct
    return "0x%08x" % struct.unpack("<I", struct.pack("<f", x))[0]

def csel(a, d, x, y):
    a(f"s_mov_b32 s{d}, {y}")
    a(f"s_cmov_b32 s{d}, {x}")

def interleave(main, fill):
    out = []
    n, m = len(main), len(fill)
    j = 0
    for i, x in enumerate(main):
        out.append(x)
        want = (i + 1) * m // n
        while j < want:
            out.append(fill[j]); j += 1
    out += fill[j:]
    return out

class Lst(list):
    def __call__(self, text):
        for ln in text.split("\n"):
            if ln.strip(): self.append(ln.strip())

import os
PROF = os.environ.get("PROF", "0") == "1"
WS_PROF = 64 << 20
SV = 0
def stamp(a, i):
    if not PROF: return
    a("s_memtime s[98:99]")
    a("s_waitcnt lgkmcnt(0)")
    a(f"v_writelane_b32 v{STAMPV[0]}, s98, {i}")
def stamp_rt(a, i):
    if not PROF: return
    a("s_memrealtime s[98:99]")
    a("s_waitcnt lgkmcnt(0)")
    a(f"v_writelane_b32 v{STAMPV[0]}, s98, {i}")
STAMPV = [0]
def stamp_first(a):
    if not PROF: return
    a("s_memrealtime s[94:95]")
    a("s_memtime s[96:97]")
def stamp_init(a, vreg):
    STAMPV[0] = vreg
    if not PROF: return
    a("s_waitcnt lgkmcnt(0)")
    a(f"v_mov_b32 v{vreg}, 0")
    a(f"v_writelane_b32 v{vreg}, s96, 0")
    a(f"v_writelane_b32 v{vreg}, s94, 62")
def stamp_dump(a, kidx, vlane=1, wsp=12):
    if not PROF: return
    a("s_mov_b64 exec, -1")
    a("s_waitcnt vmcnt(0)")
    stamp(a, 61); stamp_rt(a, 63)
    a(f"s_sub_u32 s88, s{wsp}, {WSOFF}")
    a(f"s_subb_u32 s89, s{wsp+1}, 0")
    a(f"s_and_b32 s89, s89, 0xffff")
    a(f"s_mov_b32 s90, {WS_PROF + (8 << 20)}")
    a("s_mov_b32 s91, 0x00020000")
    a(f"s_add_u32 s92, s2, {kidx*256}")
    a("s_lshl_b32 s92, s92, 4")
    a("s_add_u32 s92, s92, s3")
    a("s_lshl_b32 s92, s92, 8")
    a(f"s_add_u32 s92, s92, {WS_PROF}")
    a(f"v_lshlrev_b32 v{vlane}, 2, v{vlane}")
    a(f"buffer_store_dword v{STAMPV[0]}, v{vlane}, s[88:91], s92 offen")
    a("s_waitcnt vmcnt(0)")

WSOFF = int(os.environ.get("WSOFF", "0")) << 20
def ws_shift(a):
    if WSOFF:
        a(f"s_add_u32 s12, s12, {WSOFF}")
        a("s_addc_u32 s13, s13, 0")
```

```python
from common import *
from k_pack import *
import math

MAPPING = os.environ.get("MAPPING", "B")
VZERO = os.environ.get("VZERO", "1") == "1"
WMOD = os.environ.get("WMOD", "sc1")
PKGELU = os.environ.get("PKGELU", "0") == "1"
PACE = int(os.environ.get("PACE", "1"))
DBG = int(os.environ.get("DBG", "0"))
YMOD = os.environ.get("YMOD", "")
GATEA = os.environ.get("GATEA", "0") == "1"
PK_T = tuple(int(x) for x in os.environ.get("PK_T", "3,8").split(","))
RSLEEP = int(os.environ.get("RSLEEP", "4"))
TOUCH = os.environ.get("TOUCH", "0") == "1"
BLOAD = os.environ.get("BLOAD", "1") == "1"
EARLY0 = os.environ.get("SENT1", "0") == "1"
OUTMOD = os.environ.get("OUTMOD", "")
SENT1 = os.environ.get("SENT1", "0") == "1"
NOGELU = os.environ.get("NOGELU", "0") == "1"
LDS_MAIN = 163840
L_OS = KV_BYTES
L_CP = L_OS + 8 * 608
L_ST = L_CP + 6144
L_CNT = L_ST + 512
L_Y = 0; L_H = 73728; L_B1 = 147456; L_B1D = L_B1 + 2304; L_HH = L_B1 + 4608
assert L_HH + 9216 <= L_ST and L_CNT + 16 <= LDS_MAIN
WS_, XS_ = 32, 36
KA_, KR_, VA_ = 2, 3, 4
Q2POS = {2: 10, 0: 12, 3: 14, 1: 16}; QX = (12, 17)
Q1 = 20; SB = (24, 40); P = 56; O = 64; KB = (80, 84); KRB = (88, 92); VB = (96, 104)
TPI = 16
CI = 16; AR = 28; ACC = 136; BR = 184; GT = 232
RDS = 9
WSR = 64
C0 = -2.0 * 0.7978845608028654 * math.log2(math.e)
C1 = C0 * 0.044715
POLL_MAX = 1 << 20

def koff(t): return (t >> 2) * KV_BLK + (t & 3) * 1024
def kroff(blk): return blk * KV_BLK
def voff(t, mf): return (t >> 2) * KV_BLK + (t & 3) * 1216 + mf * 608

def tile(a, t, bg=None, nbg=0):
    Sc = SB[t & 1]; Sn = SB[(t + 1) & 1]
    def B(k):
        while bg and k > 0:
            x = bg.pop(0); a(x)
            if not x.startswith("s_"): k -= 1
    ex = lambda i: a(f"v_exp_f32 v{Sc+i}, v{Sc+i}")
    cv = lambda i: a(f"v_cvt_pk_bf16_f32 v{P+i}, v{Sc+2*i}, v{Sc+2*i+1}")
    a(f"s_waitcnt lgkmcnt({2 if (t & 3) == 2 else 1})")
    mfma32(a, Sn, KB[(t + 1) & 1], Q1, None)
    a(f"ds_read_b128 {v(VB[(t+1) & 1],4)}, v{VA_} offset:{voff(t+1,0)}")
    for i in range(0, 4): ex(i)
    mfma32(a, O, VB[(t + 1) & 1] + 4, P + 4, O)
    a(f"ds_read_b128 {v(VB[(t+1) & 1]+4,4)}, v{VA_} offset:{voff(t+1,1)}")
    cv(0); cv(1)
    for i in range(4, 8): ex(i)
    mfma32(a, Sn, KRB[((t + 1) >> 2) & 1], Q2POS[(t + 1) & 3], Sn)
    a(f"ds_read_b128 {v(KB[(t+1) & 1],4)}, v{KA_} offset:{koff(t+3)}")
    cv(2); cv(3)
    for i in range(8, 12): ex(i)
    mfma32(a, O, VB[t & 1], P, O)
    if (t & 3) == 1:
        a(f"ds_read_b128 {v(KRB[((t>>2)+1) & 1],4)}, v{KR_} offset:{kroff((t>>2)+1)}")
    cv(4); cv(5)
    for i in range(12, 16): ex(i)
    cv(6); cv(7)

def pipe_start(a):
    a(f"ds_read_b128 {v(KB[0],4)}, v{KA_} offset:{koff(0)}")
    a(f"ds_read_b128 {v(KRB[0],4)}, v{KR_} offset:{kroff(0)}")
    a(f"ds_read_b128 {v(KB[1],4)}, v{KA_} offset:{koff(1)}")
    a(f"ds_read_b128 {v(VB[0],4)}, v{VA_} offset:{voff(0,0)}")
    a(f"ds_read_b128 {v(VB[0]+4,4)}, v{VA_} offset:{voff(0,1)}")
    a("s_waitcnt lgkmcnt(3)")
    mfma32(a, SB[0], KB[0], Q1, None)
    mfma32(a, SB[0], KRB[0], Q2POS[0], SB[0])
    a(f"ds_read_b128 {v(KB[0],4)}, v{KA_} offset:{koff(2)}")
    a("s_nop 10")

def wo0_loads(a, sx, vl):
    b = 112 + (sx % 4) * 36
    for t in range(9):
        if t == 4 or t == 8: a("s_add_u32 s61, s61, 4096")
        a(f"buffer_load_dwordx4 {v(b+4*t,4)}, v{vl}, {s(WS_,4)}, s61 offen offset:{(t%4)*1024}")
    a(f"s_add_u32 s61, s61, {36*1024 - 8192}")

def lds_poll(a, tag, vaddr, vtmp, thr):
    a(f"s_mov_b32 s49, {POLL_MAX}")
    a.label(f"L_{tag}")
    a(f"ds_read_b32 v{vtmp}, v{vaddr}")
    a("s_waitcnt lgkmcnt(0)")
    a(f"v_readfirstlane_b32 s47, v{vtmp}")
    a("s_sub_u32 s49, s49, 1")
    a(f"s_cbranch_scc1 L_{tag}_ok")
    a(f"s_cmp_ge_u32 s47, {thr}")
    a(f"s_cbranch_scc1 L_{tag}_ok")
    a("s_sleep 2")
    a(f"s_branch L_{tag}")
    a.label(f"L_{tag}_ok")

def flag_poll(a, tag, vaddr, vtmp, s_off, width, sleep=1):
    a(f"s_mov_b32 s49, {POLL_MAX}")
    a.label(f"L_{tag}")
    if width == 1:
        a(f"buffer_load_dword v{vtmp}, v{vaddr}, {s(WS_,4)}, s{s_off} offen sc1")
    else:
        a(f"buffer_load_dwordx2 {v(vtmp,2)}, v{vaddr}, {s(WS_,4)}, s{s_off} offen sc1")
    a("s_waitcnt vmcnt(0)")
    if width == 2: a(f"v_min_u32 v{vtmp}, v{vtmp}, v{vtmp+1}")
    a(f"v_cmp_eq_u32 vcc, 0, v{vtmp}")
    a("s_sub_u32 s49, s49, 1")
    a(f"s_cbranch_scc1 L_{tag}_ok")
    a("s_nop 1")
    a("s_cmp_eq_u64 vcc, 0")
    a(f"s_cbranch_scc1 L_{tag}_ok")
    a(f"s_sleep {sleep}")
    a(f"s_branch L_{tag}")
    a.label(f"L_{tag}_ok")

def flag_store(a, base, vt):
    a("s_lshl_b32 s46, s57, 3")
    a("s_add_u32 s46, s46, s3")
    a("s_lshl_b32 s46, s46, 2")
    a(f"s_add_u32 s46, s46, {base}")
    a(f"v_mov_b32 v{vt}, 0")
    a(f"v_mov_b32 v{vt+1}, 1")
    a("s_mov_b64 exec, 1")
    a(f"buffer_store_dword v{vt+1}, v{vt}, {s(WS_,4)}, s46 offen sc1")
    a("s_mov_b64 exec, -1")

def a_loads(a, step_slot):
    for t in range(3):
        a(f"buffer_load_dwordx4 {v(AR + step_slot*12 + 4*t, 4)}, v2, {s(WSR,4)}, s70 offen offset:{t*1024} {WMOD}")
    a("s_add_u32 s70, s70, 3072")

def prologue(a):
    a(f"s_load_dwordx2 s[4:5], s[0:1], {KA['x']}")
    a(f"s_load_dwordx8 s[16:23], s[0:1], {KA['w1']}")
    a(f"s_load_dwordx2 s[6:7], s[0:1], {KA['out']}")
    a(f"s_load_dwordx2 s[12:13], s[0:1], {KA['ws']}")
    a("v_lshrrev_b32 v7, 6, v0")
    a("v_and_b32 v1, 63, v0")
    a("v_readfirstlane_b32 s3, v7")
    nb = {"A": 3, "B": 2, "C": 1, "D": 0}[MAPPING]
    a(f"s_and_b32 s43, s2, {(1 << nb) - 1}")
    a(f"s_lshl_b32 s43, s43, {3 - nb}")
    a(f"s_bfe_u32 s45, s2, {hex(((3 - nb) << 16) | 3)}")
    a("s_add_u32 s43, s43, s45")
    a(f"s_lshr_b32 s56, s2, {6 - nb}")
    a(f"s_lshl_b32 s56, s56, {3 - nb}")
    a(f"s_bfe_u32 s45, s2, {hex(((3 - nb) << 16) | nb)}")
    a("s_add_u32 s56, s56, s45")
    a("s_lshl_b32 s57, s56, 3")
    a("s_add_u32 s57, s57, s43")
    a("s_lshl_b32 s42, s57, 3")
    a("s_and_b32 s40, s3, 3")
    a("s_lshr_b32 s41, s3, 2")
    a("s_movk_i32 s44, 1152")
    a("v_and_b32 v5, 15, v1")
    a("v_mul_u32_u24 v5, 36, v5")
    a("v_bfe_u32 v6, v1, 4, 1")
    a("v_mad_u32_u24 v5, v6, s44, v5")
    a("v_lshrrev_b32 v7, 5, v1")
    a("v_lshl_add_u32 v6, v7, 4, v5")
    a("s_lshl_b32 s45, s40, 1")
    a("s_add_u32 s45, s45, s42")
    a("s_mul_i32 s45, s45, 1152")
    a("s_mul_i32 s46, s41, 576")
    a("s_add_u32 s45, s45, s46")
    a(f"s_add_u32 s45, s45, {WS_Q}")
    a("v_lshlrev_b32 v8, 3, v1")
    a("v_lshlrev_b32 v9, 4, v1")
    a("s_lshl_b32 s47, s3, 10")
    a("s_waitcnt lgkmcnt(0)")
    ws_shift(a)
    srd(a, WS_, 12, WS_END)

def attention(a):
    ws = WS_
    a(f"buffer_load_dwordx4 {v(Q1,4)}, v6, {s(ws,4)}, s45 offen")
    a(f"buffer_load_dword v{QX[0]}, v5, {s(ws,4)}, s45 offen offset:32")
    a(f"s_mov_b32 s46, {WS_KMAX}")
    a(f"buffer_load_dwordx4 v[24:27], v9, {s(ws,4)}, s46 offen")
    for i in range(4):
        a(f"s_add_u32 m0, s47, {i*8192}")
        a(f"s_add_u32 s46, s47, {WS_KV + i*8192}")
        a(f"buffer_load_dwordx4 v9, {s(ws,4)}, s46 offen lds")
    srd(a, XS_, 4, S * D * 2)
    a("s_cmp_lg_u32 s41, 0")
    a("s_cbranch_scc0 L_a_nodma")
    a("s_lshl_b32 s47, s40, 10")
    for i in range(29):
        if i == 6:
            a("s_waitcnt vmcnt(3)")
            a("s_barrier")
        a(f"s_add_u32 m0, s47, {32768 + i*4096}")
        a(f"s_add_u32 s46, s47, {WS_KV + 32768 + i*4096}")
        a(f"buffer_load_dwordx4 v9, {s(ws,4)}, s46 offen lds")
    a("s_setprio 3")
    a("s_branch L_a_dmadone")
    a.label("L_a_nodma")
    a("s_setprio 2")
    a.label("L_a_dmadone")
    a(f"v_mov_b32 v{KA_}, v9")
    a(f"v_add_u32 v{KR_}, 4096, v9")
    a(f"v_mov_b32 v8, {4608 + 288}")
    a("v_cmp_gt_u32 s[50:51], 32, v1")
    a(f"v_cndmask_b32 v{KR_}, v8, v{KR_}, s[50:51]")
    a("v_and_b32 v5, 31, v1")
    sigma_v(a, 6, 5, 8, 9)
    if VZERO:
        a("v_mov_b32 v8, 0x8000")
    else:
        a("v_add_u32 v8, -20, v5")
        a("v_cmp_gt_u32 vcc, 8, v8")
        a("v_cndmask_b32 v8, 4, 0, vcc")
    a("v_cmp_lt_u32 vcc, 18, v5")
    a("v_cndmask_b32 v6, v6, v8, vcc")
    a("v_lshlrev_b32 v6, 4, v6")
    a("s_movk_i32 s46, 304")
    a(f"v_mad_u32_u24 v{VA_}, v7, s46, v6")
    a(f"v_add_u32 v{VA_}, 4608, v{VA_}")
    for r in (10, 11, 13, 14, 15, 16, 18, 19): a(f"v_mov_b32 v{r}, 0")
    for r in range(O, O + 16): a(f"v_mov_b32 v{r}, 0")
    for r in range(P + 4, P + 8): a(f"v_mov_b32 v{r}, 0")
    for r in range(VB[1] + 4, VB[1] + 8): a(f"v_mov_b32 v{r}, 0")
    stamp(a, 1)
    a("s_cmp_lg_u32 s41, 0")
    a("s_cbranch_scc1 L_a_qready")
    a(f"v_mov_b32 v8, {L_CNT}")
    a("ds_write_b32 v8, v10")
    a("s_waitcnt vmcnt(4)")
    a.label("L_a_qready")
    a(f"v_dot2_f32_bf16 v5, v{Q1}, v{Q1}, 0")
    for i in range(1, 4):
        a(f"v_dot2_f32_bf16 v5, v{Q1+i}, v{Q1+i}, v5")
    a("v_max_f32 v24, v24, v25")
    a("v_max3_f32 v24, v24, v26, v27")
    for rr in (8, 4, 2, 1):
        a(f"v_max_f32_dpp v24, v24, v24 row_ror:{rr} row_mask:0xf bank_mask:0xf")
    a("v_mov_b32 v25, v24")
    a("v_mov_b32 v6, v5")
    a("v_permlane16_swap_b32 v24, v25")
    a("v_permlane32_swap_b32 v5, v6")
    a("v_max_f32 v24, v24, v25")
    a("v_add_f32 v5, v5, v6")
    a("v_mov_b32 v25, v24")
    a(f"v_dot2_f32_bf16 v5, v{QX[0]}, v{QX[0]}, v5")
    a("v_permlane32_swap_b32 v24, v25")
    a("v_add_f32 v24, v24, v25")
    a("v_mul_f32 v5, v5, v24")
    a("v_sqrt_f32 v5, v5")
    a(f"v_mul_f32 v5, {fbits(-1.02)}, v5")
    a("v_cvt_pk_bf16_f32 v5, v5, 0")
    a(f"v_cndmask_b32 v{QX[0]}, v5, v{QX[0]}, s[50:51]")
    a(f"v_mov_b32 v{QX[1]}, v{QX[0]}")
    a("s_mov_b32 s60, 0")
    a("s_mov_b32 s48, 0")
    a("v_lshlrev_b32 v9, 4, v1")
    a("s_cmp_lg_u32 s41, 0")
    a("s_cbranch_scc1 L_a_young_pre")
    a(f"s_mov_b32 s59, {16 // TPI}")
    a("s_waitcnt vmcnt(0) lgkmcnt(0)")
    a("s_barrier")
    a.label("L_a_start")
    stamp(a, 3)
    pipe_start(a)
    a.raw(".p2align 6")
    a.label("L_a_loop")
    for t in range(TPI): tile(a, t)
    a.label("L_a_loop_end")
    step = (TPI // 4) * KV_BLK
    a(f"v_add_u32 v{KA_}, {step}, v{KA_}")
    a(f"v_add_u32 v{KR_}, {step}, v{KR_}")
    a(f"v_add_u32 v{VA_}, {step}, v{VA_}")
    a("s_add_u32 s48, s48, 1")
    a("s_cmp_eq_u32 s48, s59")
    a("s_cbranch_scc1 L_a_inter")
    a(f"s_cmp_lt_u32 s48, {64 // TPI}")
    a("s_cbranch_scc1 L_a_loop")
    mfma32(a, O, VB[1] + 4, P + 4, O)
    a.label("L_a_norm")
    stamp(a, 4)
    a("s_waitcnt lgkmcnt(0)")
    a("s_nop 12")
    a(f"v_mov_b32 v5, v{O+10}")
    a(f"v_mov_b32 v6, v{O+10}")
    a("v_permlane32_swap_b32 v5, v6")
    a(f"v_mov_b32 v7, {fbits(2.0**-40)}")
    a("v_cmp_nge_f32 vcc, v5, v7")
    a("s_nop 3")
    a("s_cmp_lg_u64 vcc, 0")
    a("s_cselect_b32 s49, 1, 0")
    a("s_andn2_b32 s49, s49, s60")
    a("s_cbranch_scc1 L_a_fallback")
    a("v_rcp_f32 v5, v5")
    a("v_bfe_u32 v6, v1, 4, 1")
    a("s_lshl_b32 s46, s40, 1")
    a("v_add_u32 v6, s46, v6")
    a("v_mul_u32_u24 v6, 608, v6")
    a("v_and_b32 v7, 15, v1")
    a("v_lshl_add_u32 v8, v7, 2, v6")
    a("v_lshl_add_u32 v6, v7, 5, v6")
    a("v_lshrrev_b32 v7, 5, v1")
    a("v_lshl_add_u32 v6, v7, 4, v6")
    a(f"v_add_u32 v6, {L_OS}, v6")
    a(f"v_add_u32 v8, {L_OS + 512}, v8")
    for i in range(10):
        a(f"v_mul_f32 v{O+i}, v{O+i}, v5")
    for i in range(5):
        a(f"v_cvt_pk_bf16_f32 v{P+i}, v{O+2*i}, v{O+2*i+1}")
    a("s_cmp_eq_u32 s41, 0")
    a("s_cbranch_scc1 L_a_poll2_ok")
    a(f"v_mov_b32 v9, {L_CNT}")
    lds_poll(a, "a_poll2", 9, 7, 8)
    a(f"ds_write_b128 v6, {v(P,4)}")
    a("s_mov_b64 exec, 0xffffffff")
    a(f"ds_write_b32 v8, v{P+4}")
    a("s_mov_b64 exec, -1")
    a("v_and_b32 v5, 7, v1")
    a("v_mul_u32_u24 v4, 608, v5")
    a("v_lshrrev_b32 v6, 4, v1")
    a("v_lshl_add_u32 v4, v6, 4, v4")
    a(f"v_add_u32 v4, {L_OS}, v4")
    a("v_lshl_add_u32 v3, v6, 3, v5")
    a("v_lshlrev_b32 v3, 4, v3")
    a("s_mul_i32 s46, s40, 1536")
    a(f"s_add_u32 s46, s46, {L_CP}")
    a("v_add_u32 v3, s46, v3")
    a("v_lshlrev_b32 v2, 4, v1")
    a("s_mul_i32 s70, s3, 165888")
    a(f"s_mul_i32 s47, s43, {SLICE}")
    a("s_add_u32 s70, s70, s47")
    a(f"s_add_u32 s70, s70, {WS_W}")
    a(f"s_mov_b32 s{WSR}, s12")
    a(f"s_and_b32 s{WSR+1}, s13, 0xffff")
    a(f"s_add_u32 s{WSR+2}, s70, 165888")
    a(f"s_mov_b32 s{WSR+3}, 0x00020000")
    a("s_mov_b32 s54, 0x00ff00ff")
    a("s_mov_b32 s55, 0x00ff00ff")
    a("s_cmp_lg_u32 s41, 0")
    a("s_cbranch_scc1 L_a_young_tail")

    WA = 16
    WB = 112
    a(f"v_mov_b32 v8, {L_CNT}")
    a("v_mov_b32 v9, 1")
    a("s_waitcnt lgkmcnt(0)")
    a("s_mov_b64 exec, 1")
    a("ds_add_u32 v8, v9")
    a("s_mov_b64 exec, -1")
    a("s_mul_i32 s61, s40, 9216")
    a(f"s_add_u32 s61, s61, {WS_WO}")
    for sx in range(4): wo0_loads(a, sx, 2)
    a("v_mul_u32_u24 v10, 1152, v5")
    a("v_lshl_add_u32 v11, v6, 3, v10")
    a("v_lshl_add_u32 v10, v6, 4, v10")
    a("s_mul_i32 s46, s42, 1152")
    a("s_mul_i32 s47, s40, 288")
    a("s_add_u32 s52, s46, s47")
    for i in range(4):
        a(f"buffer_load_dwordx4 {v(92+4*i,4)}, v10, {s(XS_,4)}, s52 offen offset:{i*64}")
    a(f"buffer_load_dwordx2 v[108:109], v11, {s(XS_,4)}, s52 offen offset:256")
    lds_poll(a, "a_poll", 8, 9, 4)
    stamp(a, 5)
    for sx in range(9):
        a(f"ds_read_b128 {v(56+4*sx,4)}, v4 offset:{sx*64}")
    a("v_mov_b32 v9, 1")
    a("s_waitcnt lgkmcnt(0)")
    a("s_mov_b64 exec, 1")
    a("ds_add_u32 v8, v9")
    a("s_mov_b64 exec, -1")
    a("s_setprio 0")
    for sx in range(9):
        a(f"s_waitcnt vmcnt({min(3, 8 - sx)*9 + (5 if sx < 4 else 0)})")
        b = WB + (sx % 4) * 36
        for t in range(9):
            mfma16(a, WA + 4*t, b + 4*t, 56 + 4*sx, None if sx == 0 else WA + 4*t)
        if sx + 4 < 9: wo0_loads(a, sx + 4, 2)
    a("s_setprio 2")
    a("s_mov_b32 s46, 0x00003f80")
    a("s_mov_b32 s47, 0x3f800000")
    for k in list(range(12, 18)) + list(range(12)):
        a(f"v_dot2_f32_bf16 v{WA+2*k}, v{92+k}, s46, v{WA+2*k}")
        a(f"v_dot2_f32_bf16 v{WA+2*k+1}, v{92+k}, s47, v{WA+2*k+1}")
    stamp(a, 23)
    a("s_mov_b64 exec, s[54:55]")
    for t in range(3):
        a(f"ds_write_b128 v3, {v(WA+24+4*t,4)} offset:{t*512}")
    a("s_mov_b64 exec, -1")
    a("s_waitcnt lgkmcnt(0)")
    a("s_mul_i32 s46, s40, 9216")
    a(f"s_add_u32 s46, s46, {WS_WO + 9*36*1024}")
    for sx in range(9):
        for t in range(6):
            if t == 4: a("s_add_u32 s46, s46, 4096")
            a(f"buffer_load_dwordx4 {v(40+(sx*6+t)*4,4)}, v2, {s(ws,4)}, s46 offen offset:{(t%4)*1024}")
        a(f"s_add_u32 s46, s46, {36*1024 - 4096}")
    a("v_lshlrev_b32 v8, 3, v1")
    a("s_lshl_b32 s46, s43, 9")
    a(f"s_add_u32 s46, s46, {WS_FPACK}")
    flag_poll(a, "a_pkpoll", 8, 10, 46, 2, sleep=8)
    stamp(a, 6)
    a("s_barrier")
    stamp(a, 7)
    a(f"ds_read_b128 v[8:11], v4 offset:0")
    for sx in range(9):
        if sx + 1 < 9:
            a(f"ds_read_b128 {v(8+((sx+1)&1)*4,4)}, v4 offset:{(sx+1)*64}")
        a(f"s_waitcnt lgkmcnt({1 if sx+1 < 9 else 0})")
        for t in range(6):
            mfma16(a, WA + 4*t, 40 + (sx*6+t)*4, 8 + (sx&1)*4, WA + 4*t)
    ln_tail(a, WA, 6, 0)
    a("s_branch L_m_roleB")

    a.label("L_a_young_tail")
    a("s_waitcnt vmcnt(0) lgkmcnt(0)")
    stamp(a, 6)
    a("s_barrier")
    stamp(a, 7)
    for t in range(3):
        a(f"ds_read_b128 {v(WA+4*t,4)}, v3 offset:{t*512}")
    for sx in range(9):
        a(f"ds_read_b128 {v(112+4*sx,4)}, v4 offset:{sx*64}")
    for sx in range(9):
        a(f"s_waitcnt lgkmcnt({8-sx})")
        for t in range(3):
            mfma16(a, WA + 4*t, 148 + (sx*3+t)*4, 112 + 4*sx, WA + 4*t)
    ln_tail(a, WA, 3, 6)
    for k in range(3): a_loads(a, k)
    a("s_waitcnt vmcnt(9)")
    flag_store(a, WS_FY, 8)
    stamp(a, 26); stamp_rt(a, 40)
    for k in range(3, RDS - 1): a_loads(a, k)
    a("s_branch L_m_roleA")

    a.label("L_a_inter")
    a("s_barrier")
    a("s_branch L_a_loop")

    a.label("L_a_young_pre")
    a("s_lshl_b32 s58, s56, 2")
    a("s_add_u32 s58, s58, s40")
    a("s_min_u32 s59, s58, 119")
    sja, selA, selB = w_pack_setup(a, 59, 43, 16, 20, 24, 72, 61, 62, 63, 1, 5, 6, 7)
    a("s_mov_b32 s59, 99")
    a("s_mov_b32 s52, s63")
    a("s_waitcnt vmcnt(8)")
    w_pack_loads(a, 2, 24, 61, 62, sja, 5, 6, 112)
    a("s_waitcnt vmcnt(32)")
    stamp(a, 2)
    a("s_barrier")
    a("s_waitcnt vmcnt(26)")
    w_pack_loads(a, 2, 24, 61, 62, sja, 5, 6, 144)
    if TOUCH:
        a("s_mov_b32 s46, 0x24000")
        a("s_lshl_b32 s47, s40, 6")
        a("v_add_u32 v7, s47, v1")
        a("v_mul_lo_u32 v7, v7, s46")
        a(f"buffer_load_dword v252, v7, {s(ws,4)}, 0 offen")
        srd(a, 28, 6, S * D * 2)
        a("v_lshlrev_b32 v7, 16, v1")
        a("buffer_load_dword v253, v7, s[28:31], 0 offen")
        a("v_mov_b32 v7, 0")
        a("global_load_dword v254, v7, s[18:19]")
        a("global_load_dword v255, v7, s[22:23]")
    stamp(a, 20)
    pipe_start(a)
    for t in range(TPI):
        tile(a, t)
        if t == PK_T[0]:
            for st in range(4):
                a(f"s_waitcnt vmcnt({(3-st)*16 + st*3 + (4 if TOUCH else 0)})")
                w_pack_stores(a, 112 + st*16, 176 + (st & 1)*12, selA, selB, ws, 9, 63)
            for i in range(4): a(f"v_mov_b32 v{200+i}, -1")
            a("s_mul_i32 s46, s57, 73728")
            a("s_mul_i32 s47, s40, 18432")
            a("s_add_u32 s46, s46, s47")
            if SENT1:
                a(f"s_add_u32 s46, s46, {WS_P + 3072}")
                for i in range(12):
                    if i and i % 3 == 0: a(f"s_add_u32 s46, s46, {6144 if i == 6 else 3072}")
                    a(f"buffer_store_dwordx4 v[200:203], v9, {s(ws,4)}, s46 offen offset:{(i%3)*1024} sc1")
            else:
                a(f"s_add_u32 s46, s46, {WS_P + 6144}")
                for i in range(6):
                    if i == 3: a("s_add_u32 s46, s46, 9216")
                    a(f"buffer_store_dwordx4 v[200:203], v9, {s(ws,4)}, s46 offen offset:{(i%3)*1024} sc1")
            stamp(a, 21)
        if t == PK_T[1]:
            a("s_waitcnt vmcnt(0)")
            a("v_mov_b32 v5, 0")
            a("v_mov_b32 v6, 1")
            a("s_lshl_b32 s46, s43, 7")
            a("s_add_u32 s46, s46, s58")
            a("s_lshl_b32 s46, s46, 2")
            a(f"s_add_u32 s46, s46, {WS_FPACK}")
            a("s_mov_b64 exec, 1")
            a(f"buffer_store_dword v6, v5, {s(ws,4)}, s46 offen sc1")
            a("s_mov_b64 exec, -1")
            for i in range(12):
                a(f"buffer_load_dwordx4 v[112:115], v9, {s(ws,4)}, s52 offen offset:{(i%4)*1024} sc1")
                if i % 4 == 3: a("s_add_u32 s52, s52, 4096")
            a("s_mul_i32 s46, s40, 9216")
            a(f"s_add_u32 s46, s46, {WS_WO + (9*36 + 6)*1024}")
            for sx in range(9):
                for tt in range(3):
                    a(f"buffer_load_dwordx4 {v(148 + (sx*3+tt)*4, 4)}, v9, {s(ws,4)}, s46 offen offset:{tt*1024}")
                a(f"s_add_u32 s46, s46, {36*1024}")
            stamp(a, 22)
            a("s_setprio 1")
    a("s_branch L_a_loop_end")
    fallback(a)

def ln_tail(a, WA, nt, t0):
    ws = WS_
    n = nt * 4
    T = 44 if nt == 6 else 148
    stamp(a, 8)
    a(f"v_add_f32 v8, v{WA}, v{WA+1}")
    a(f"v_mul_f32 v9, v{WA}, v{WA}")
    a(f"v_fmac_f32 v9, v{WA+1}, v{WA+1}")
    for i in range(2, n):
        a(f"v_add_f32 v8, v8, v{WA+i}")
        a(f"v_fmac_f32 v9, v{WA+i}, v{WA+i}")
    for sw in ("v_permlane32_swap_b32", "v_permlane16_swap_b32"):
        a("v_mov_b32 v10, v8")
        a("v_mov_b32 v11, v9")
        a(f"{sw} v8, v10")
        a(f"{sw} v9, v11")
        a("v_add_f32 v8, v8, v10")
        a("v_add_f32 v9, v9, v11")
    a("v_lshlrev_b32 v10, 6, v5")
    a(f"v_add_u32 v10, {L_ST}, v10")
    a("s_lshl_b32 s46, s3, 3")
    a("v_add_u32 v11, s46, v10")
    a("s_mov_b64 exec, 0xff")
    a("ds_write_b64 v11, v[8:9]")
    a("s_mov_b64 exec, -1")
    for k in range(n // 2):
        a(f"v_cvt_pk_bf16_f32 v{T+k}, v{WA+2*k}, v{WA+2*k+1}")
    a("s_mul_i32 s46, s40, 18")
    a(f"s_add_u32 s46, s46, {2*t0}")
    a("v_add_u32 v12, s46, v6")
    a("v_lshlrev_b32 v13, 4, v5")
    a("v_lshl_add_u32 v14, v12, 7, v13")
    a(f"v_add_u32 v14, {L_HH}, v14")
    a("s_waitcnt lgkmcnt(0)")
    a("s_barrier")
    stamp(a, 9); stamp_rt(a, 47)
    U = T + 12
    for i in range(4):
        a(f"ds_read_b128 {v(U+4*i,4)}, v10 offset:{i*16}")
    a("v_lshrrev_b32 v15, 2, v12")
    a("v_lshl_add_u32 v15, v15, 12, v13")
    a("v_and_b32 v12, 3, v12")
    a("v_lshl_add_u32 v12, v12, 8, v15")
    if nt == 3:
        a("v_lshrrev_b32 v15, 1, v6")
        a("s_add_u32 s46, s46, 4")
        a("v_add_u32 v15, s46, v15")
        a("v_and_b32 v7, 1, v6")
        a("v_lshl_add_u32 v13, v7, 3, v13")
        a("v_lshl_add_u32 v7, v15, 7, v13")
        a(f"v_add_u32 v7, {L_HH}, v7")
        a("v_lshrrev_b32 v8, 2, v15")
        a("v_lshl_add_u32 v13, v8, 12, v13")
        a("v_and_b32 v15, 3, v15")
        a("v_lshl_add_u32 v13, v15, 8, v13")
    a("s_mov_b64 exec, s[54:55]")
    for i in range(nt // 2):
        a(f"ds_write_b128 v14, {v(T+4*i,4)} offset:{i*512}")
    if nt == 3: a(f"ds_write_b64 v7, {v(T+4,2)}")
    a("s_mov_b64 exec, -1")
    a("s_mul_i32 s46, s56, 73728")
    a("s_lshr_b32 s47, s43, 1")
    a("s_lshl_b32 s47, s47, 10")
    a("s_add_u32 s46, s46, s47")
    a("s_and_b32 s47, s43, 1")
    a("s_lshl_b32 s47, s47, 7")
    a("s_add_u32 s46, s46, s47")
    a(f"s_add_u32 s46, s46, {WS_Y}")
    a(f"s_waitcnt lgkmcnt({nt//2 + (nt & 1)})")
    for i in range(1, 8):
        a(f"v_add_f32 v{U}, v{U}, v{U+2*i}")
        a(f"v_add_f32 v{U+1}, v{U+1}, v{U+2*i+1}")
    a(f"v_mul_f32 v8, {fbits(1.0/D)}, v{U}")
    a(f"v_mul_f32 v9, {fbits(1.0/D)}, v{U+1}")
    a("v_fma_f32 v9, -v8, v8, v9")
    a("v_max_f32 v9, 0, v9")
    a(f"v_add_f32 v10, {fbits(1e-5)}, v9")
    a("v_rcp_f32 v11, v10")
    a("v_rsq_f32 v10, v10")
    a(f"v_fmaak_f32 v11, v9, v11, {fbits(1e-5)}")
    a("v_rsq_f32 v11, v11")
    a("v_mul_f32 v10, v10, v11")
    a("v_mul_f32 v8, v8, v10")
    a("s_mov_b64 exec, s[54:55]")
    for i in range(nt // 2):
        for k in range(8):
            a(f"v_fma_f32 v{WA+8*i+k}, v{WA+8*i+k}, v10, -v8")
        for k in range(4):
            a(f"v_cvt_pk_bf16_f32 v{U+4*i+k}, v{WA+8*i+2*k}, v{WA+8*i+2*k+1}")
        a(f"buffer_store_dwordx4 {v(U+4*i,4)}, v12, {s(ws,4)}, s46 offen sc1")
        if i + 1 < nt // 2: a("v_add_u32 v12, 4096, v12")
    if nt == 3:
        for k in range(4):
            a(f"v_fma_f32 v{WA+8+k}, v{WA+8+k}, v10, -v8")
        for k in range(2):
            a(f"v_cvt_pk_bf16_f32 v{U+4+k}, v{WA+8+2*k}, v{WA+8+2*k+1}")
        a(f"buffer_store_dwordx2 {v(U+4,2)}, v13, {s(ws,4)}, s46 offen sc1")
    a("s_mov_b64 exec, -1")

def fallback(a):
    a.label("L_a_fallback")
    a("s_mov_b32 s60, 1")
    tot = 16 * KV_BLK
    a(f"v_cndmask_b32 v{QX[0]}, 0, v{QX[0]}, s[50:51]")
    a(f"v_mov_b32 v{QX[1]}, v{QX[0]}")
    a("v_mov_b32 v5, 0xff800000")
    for ps in range(2):
        for r in (KA_, KR_, VA_):
            a(f"v_subrev_u32 v{r}, {tot}, v{r}")
        a("s_mov_b32 s48, 0")
        a.label(f"L_a_fb{ps}")
        a(f"ds_read_b128 {v(KRB[0],4)}, v{KR_}")
        for t in range(4):
            a(f"ds_read_b128 {v(KB[0],4)}, v{KA_} offset:{koff(t)}")
            if ps == 1:
                a(f"ds_read_b128 {v(VB[0],4)}, v{VA_} offset:{voff(t,0)}")
                a(f"ds_read_b128 {v(VB[0]+4,4)}, v{VA_} offset:{voff(t,1)}")
            a("s_waitcnt lgkmcnt(0)")
            mfma32(a, SB[0], KB[0], Q1, None)
            mfma32(a, SB[0], KRB[0], Q2POS[t], SB[0])
            S0 = SB[0]
            if ps == 0:
                for i in range(8):
                    a(f"v_max3_f32 v5, v{S0+2*i}, v{S0+2*i+1}, v5")
            else:
                for i in range(16): a(f"v_sub_f32 v{S0+i}, v{S0+i}, v5")
                for i in range(16): a(f"v_exp_f32 v{S0+i}, v{S0+i}")
                for i in range(8): a(f"v_cvt_pk_bf16_f32 v{P+i}, v{S0+2*i}, v{S0+2*i+1}")
                mfma32(a, O, VB[0], P, O)
                mfma32(a, O, VB[0] + 4, P + 4, O)
                a("s_nop 7")
        for r in (KA_, KR_, VA_):
            a(f"v_add_u32 v{r}, {KV_BLK}, v{r}")
        a("s_add_u32 s48, s48, 1")
        a("s_cmp_lt_u32 s48, 16")
        a(f"s_cbranch_scc1 L_a_fb{ps}")
        if ps == 0:
            a("v_mov_b32 v6, v5")
            a("v_permlane32_swap_b32 v5, v6")
            a("v_max_f32 v5, v5, v6")
            for r in range(O, O + 16): a(f"v_mov_b32 v{r}, 0")
    a("s_branch L_a_norm")

def gelu(a, regs, tmp, vc1):
    if NOGELU: return
    for k in range(0, len(regs), 8):
        g = regs[k:k+8:2]
        T = [tmp + 2*i for i in range(len(g))]
        if PKGELU:
            for x, t in zip(g, T): a(f"v_pk_mul_f32 {v(t,2)}, {v(x,2)}, {v(x,2)}")
            for x, t in zip(g, T): a(f"v_pk_fma_f32 {v(t,2)}, {v(t,2)}, {v(vc1,2)}, s[78:79]")
            for x, t in zip(g, T): a(f"v_pk_mul_f32 {v(t,2)}, {v(x,2)}, {v(t,2)}")
            for x, t in zip(g, T): a(f"v_exp_f32 v{t}, v{t}"); a(f"v_exp_f32 v{t+1}, v{t+1}")
            for x, t in zip(g, T): a(f"v_pk_add_f32 {v(t,2)}, {v(t,2)}, 1.0 op_sel_hi:[1,0]")
            for x, t in zip(g, T): a(f"v_rcp_f32 v{t}, v{t}"); a(f"v_rcp_f32 v{t+1}, v{t+1}")
            for x, t in zip(g, T): a(f"v_pk_mul_f32 {v(x,2)}, {v(x,2)}, {v(t,2)}")
        else:
            g = regs[k:k+8]; T = [tmp + i for i in range(len(g))]
            for x, t in zip(g, T): a(f"v_mul_f32 v{t}, v{x}, v{x}")
            for x, t in zip(g, T): a(f"v_fmaak_f32 v{t}, v{vc1}, v{t}, {fbits(C0)}")
            for x, t in zip(g, T): a(f"v_mul_f32 v{t}, v{x}, v{t}")
            for x, t in zip(g, T): a(f"v_exp_f32 v{t}, v{t}")
            for x, t in zip(g, T): a(f"v_add_f32 v{t}, 1.0, v{t}")
            for x, t in zip(g, T): a(f"v_rcp_f32 v{t}, v{t}")
            for x, t in zip(g, T): a(f"v_mul_f32 v{x}, v{x}, v{t}")

def acc(t, q): return ACC + (t * 4 + q) * 4

def mlp_setup(a):
    a(f"v_add_u32 v3, {L_Y}, v2")
    a(f"v_add_u32 v4, {L_Y + 36864}, v2")
    a("v_and_b32 v9, 15, v1")
    a("v_lshlrev_b32 v9, 4, v9")
    a(f"v_mov_b32 v{GT+22}, {fbits(C1)}")
    a(f"v_mov_b32 v{GT+23}, {fbits(C1)}")
    a(f"s_mov_b32 s78, {fbits(C0)}")
    a(f"s_mov_b32 s79, {fbits(C0)}")
    a("v_bfe_u32 v14, v1, 3, 1")
    a("s_mov_b32 s46, 73728")
    a("v_mul_lo_u32 v14, v14, s46")
    a("v_lshl_add_u32 v14, v5, 4, v14")
    a("v_and_b32 v15, 1, v6")
    a("s_mov_b32 s46, 147456")
    a("v_mul_lo_u32 v15, v15, s46")
    a("v_add_u32 v15, v15, v14")
    a("v_lshrrev_b32 v7, 1, v6")
    a("v_lshl_add_u32 v15, v7, 7, v15")
    a("v_lshl_add_u32 v14, v6, 7, v14")
    a("s_lshl_b32 s71, s56, 6")
    a("s_add_u32 s71, s71, s43")
    a("s_mul_i32 s71, s71, 9216")
    a(f"s_add_u32 s71, s71, {WS_P}")

def bias_init(a):
    a("s_mul_i32 s46, s68, 192")
    a(f"s_add_u32 s46, s46, {L_B1}")
    a("v_lshl_add_u32 v11, v6, 5, s46")
    a("v_lshl_add_u32 v12, v6, 4, s46")
    a(f"ds_read_b128 {v(CI,4)}, v11 offset:{L_B1D - L_B1}")
    a(f"ds_read_b128 {v(CI+4,4)}, v11 offset:{L_B1D - L_B1 + 16}")
    a(f"ds_read_b128 {v(CI+8,4)}, v12 offset:128")

def to_gemm2(a):
    for r in (3, 4):
        a(f"v_add_u32 v{r}, {L_H - L_Y}, v{r}")
    for i in range(12): a(f"v_mov_b32 v{CI+i}, 0")

def call(a, name):
    a(f"s_call_b64 s[74:75], {name}")

def mlp(a):
    ws = WS_
    a.label("L_m_roleA")
    mlp_setup(a)
    a("s_setprio 3")
    a("s_barrier")
    stamp(a, 10); stamp_rt(a, 48)
    a("s_mov_b32 s68, s40")
    bias_init(a)
    a("s_mov_b32 s69, 3")
    call(a, "L_m_pass")
    stamp(a, 12)
    a("s_setprio 1")
    call(a, "L_m_gelu")
    stamp(a, 13)
    a("s_setprio 1")
    a("s_add_u32 s68, s40, 8")
    bias_init(a)
    a("s_mov_b32 s69, 0")
    call(a, "L_m_pass")
    a("s_setprio 0")
    stamp(a, 14)
    a("s_barrier")
    stamp(a, 11)
    call(a, "L_m_gelu")
    stamp(a, 15)
    a("s_waitcnt lgkmcnt(0)")
    a("s_barrier")
    a("s_setprio 2")
    to_gemm2(a)
    a("s_mov_b32 s69, 8")
    call(a, "L_m_pass")
    a("s_setprio 0")
    a("s_add_u32 s68, s40, 4")
    stamp(a, 16)
    reduce_setup(a)
    if EARLY0:
        call(a, "L_m_cvt")
        a("s_cmp_eq_u32 s40, 3")
        a("s_cbranch_scc1 L_r_no0")
        flag_poll(a, "r_poll0", 8, 13, 53, 1, sleep=4)
        call(a, "L_m_st")
        a("s_mov_b32 s48, s40")
        call(a, "L_r_item")
        a("s_branch L_r_did0")
        a.label("L_r_no0")
        call(a, "L_m_st")
        a("s_waitcnt vmcnt(0)")
        a.label("L_r_did0")
        stamp(a, 25)
        a("s_cmp_eq_u32 s40, 0")
        a("s_cbranch_scc1 L_m_done")
        a("s_add_u32 s48, s40, 2")
        a("s_mov_b32 s73, 1")
        call(a, "L_r_item")
        a("s_branch L_m_done")
    else:
        call(a, "L_m_cvt")
        call(a, "L_m_st")
        a("s_barrier")
        stamp(a, 24)
        a("s_waitcnt vmcnt(0)")
        flag_store(a, WS_FP1, 11)
        stamp(a, 25)
        a("s_cmp_eq_u32 s40, 3")
        a("s_cbranch_scc1 L_r_st1")
        flag_poll(a, "r_poll0", 8, 13, 53, 1, sleep=4)
        a("s_mov_b32 s48, s40")
        call(a, "L_r_item")
        a("s_cmp_eq_u32 s40, 0")
        a("s_cbranch_scc1 L_m_done")
    a.label("L_r_st1")
    a("s_add_u32 s48, s40, 2")
    a("s_add_u32 s53, s53, 16")
    flag_poll(a, "r_poll1", 8, 13, 53, 1, sleep=4)
    stamp(a, 17)
    call(a, "L_r_item")
    a("s_branch L_m_done")
    a.label("L_m_roleB")
    for k in range(3): a_loads(a, k)
    a("s_waitcnt vmcnt(9)")
    flag_store(a, WS_FY, 8)
    stamp(a, 26); stamp_rt(a, 40)
    a("s_lshl_b32 s46, s56, 8")
    a(f"s_add_u32 s53, s46, {WS_FY}")
    srd(a, XS_, 18, F * 2)
    a("s_lshl_b32 s46, s40, 6")
    a("v_add_u32 v8, s46, v1")
    a("v_lshlrev_b32 v11, 2, v8")
    a("s_mul_i32 s46, s43, 1152")
    a(f"buffer_load_dword v{GT}, v11, {s(XS_,4)}, s46 offen")
    a(f"buffer_load_dword v{GT+1}, v11, {s(XS_,4)}, s46 offen offset:1024")
    mlp_setup(a)
    a("v_lshlrev_b32 v11, 3, v8")
    a(f"v_add_u32 v11, {L_B1}, v11")
    a("s_waitcnt vmcnt(0)")
    a(f"v_lshlrev_b32 v{GT+2}, 16, v{GT}")
    a(f"v_and_b32 v{GT+3}, 0xffff0000, v{GT}")
    a(f"v_lshlrev_b32 v{GT+4}, 16, v{GT+1}")
    a(f"v_and_b32 v{GT+5}, 0xffff0000, v{GT+1}")
    a(f"ds_write_b64 v11, {v(GT+2,2)}")
    a("v_lshrrev_b32 v12, 2, v8")
    a("v_lshlrev_b32 v12, 5, v12")
    a("v_and_b32 v13, 3, v8")
    a("v_lshl_add_u32 v12, v13, 2, v12")
    a(f"v_add_u32 v12, {L_B1D}, v12")
    a(f"ds_write2_b32 v12, v{GT+2}, v{GT+3} offset0:0 offset1:4")
    a("v_add_u32 v12, 2048, v12")
    a("s_cmp_lg_u32 s40, 0")
    a("s_cbranch_scc1 L_m_nob2")
    a("s_mov_b64 exec, 0xffffffff")
    a(f"ds_write_b64 v11, {v(GT+4,2)} offset:2048")
    a(f"ds_write2_b32 v12, v{GT+4}, v{GT+5} offset0:0 offset1:4")
    a("s_mov_b64 exec, -1")
    a.label("L_m_nob2")
    for k in range(3, RDS - 1): a_loads(a, k)
    a("v_lshlrev_b32 v8, 2, v1")
    flag_poll(a, "m_ypoll", 8, GT, 53, 1)
    stamp_rt(a, 43)
    stamp(a, 10)
    a("s_mul_i32 s46, s56, 73728")
    a("s_lshl_b32 s47, s40, 10")
    a("s_add_u32 s46, s46, s47")
    a(f"s_add_u32 s46, s46, {WS_Y}")
    for st in range(18):
        a(f"s_add_u32 m0, s47, {L_Y + st*4096}")
        if st: a("s_add_u32 s46, s46, 4096")
        a(f"buffer_load_dwordx4 v2, {s(ws,4)}, s46 offen sc1 {YMOD} lds")
    a("s_waitcnt vmcnt(12) lgkmcnt(0)")
    a("s_barrier")
    if BLOAD:
        a("s_waitcnt vmcnt(6)")
        a("s_barrier")
        a("s_waitcnt vmcnt(0)")
        a("s_barrier")
    a("s_setprio 2")
    a("s_add_u32 s68, s40, 4")
    bias_init(a)
    a(f"s_mov_b32 s69, {0 if BLOAD else 3}")
    call(a, "L_m_pass")
    stamp(a, 12)
    a("s_setprio 0")
    call(a, "L_m_gelu")
    stamp(a, 13)
    to_gemm2(a)
    a("s_setprio 3")
    a("s_waitcnt lgkmcnt(0)")
    a("s_barrier")
    stamp(a, 11)
    a("s_mov_b32 s69, 2")
    call(a, "L_m_pass")
    a("s_setprio 0")
    a("s_mov_b32 s68, s40")
    stamp(a, 15)
    call(a, "L_m_cvt")
    call(a, "L_m_st")
    reduce_setup(a)
    a("s_waitcnt vmcnt(0)")
    flag_store(a, WS_FP1, 11)
    stamp(a, 25)
    a("s_setprio 1")
    a(f"s_mov_b32 s69, {8 if EARLY0 else 10}")
    call(a, "L_m_pass")
    a("s_setprio 3")
    a("s_add_u32 s68, s40, 8")
    stamp(a, 16); stamp_rt(a, 46)
    call(a, "L_m_cvt")
    call(a, "L_m_st")
    a("s_cmp_eq_u32 s40, 3")
    a("s_cbranch_scc1 L_m_done")
    a("s_add_u32 s48, s40, 6")
    a("s_mov_b32 s73, 1")
    a("s_waitcnt vmcnt(0)")
    stamp_rt(a, 42)
    call(a, "L_r_item")
    a.label("L_m_done")

def subroutines(a):
    ws = WS_
    a.raw(".p2align 6")
    a.label("L_m_pass")
    def b_read(ks, a=a):
        b = BR + (ks % 3) * 16
        for q in range(4):
            a(f"ds_read_b128 {v(b+4*q,4)}, v{3 + ks // 9} offset:{(ks % 9)*4096 + q*1024}")
    def step(ks, loads):
        left = 3*(RDS-2) if loads else 3 * (17 - ks)
        a(f"s_waitcnt vmcnt({left}) lgkmcnt({4 if ks < 17 else 0})")
        b = BR + (ks % 3) * 16
        A = AR + 12 * (ks % RDS)
        R = Lst(); L = Lst()
        if ks + 2 < 18: b_read(ks + 2, R)
        if loads: a_loads(L, (ks - 1) % RDS)
        fill = {}
        for i, x in enumerate(R): fill[(0, 2, 4, 6)[i]] = x
        for i, x in enumerate(L): fill[(1, 5, 8, 10)[i]] = x
        n = 0
        for t in range(3):
            for q in range(4):
                mfma16(a, acc(t, q), A + 4*t, b + 4*q, CI + 4*t if ks == 0 else acc(t, q))
                if n in fill: a(fill[n])
                n += 1
    for ks in range(2): b_read(ks)
    for ks in range(18):
        if ks in (4, 10):
            a(f"s_bitcmp1_b32 s69, {0 if ks == 4 else 1}")
            a(f"s_cbranch_scc0 L_m_nb{ks}")
            if ks == 4: a("s_waitcnt vmcnt(18)")
            a("s_barrier")
            a.label(f"L_m_nb{ks}")
            if ks == 10:
                a("s_bitcmp1_b32 s69, 3")
                a("s_cbranch_scc1 L_m_tail")
        step(ks, True)
    a("s_nop 7")
    a("s_setpc_b64 s[74:75]")
    a.label("L_m_tail")
    for ks in range(10, 18): step(ks, False)
    a("s_nop 7")
    a("s_setpc_b64 s[74:75]")
    a.label("L_m_gelu")
    a("s_mul_i32 s46, s68, 6")
    a("v_add_u32 v11, s46, v6")
    a("v_lshrrev_b32 v12, 2, v11")
    a("v_lshl_add_u32 v12, v12, 12, v9")
    a("v_and_b32 v11, 3, v11")
    a("v_lshl_add_u32 v11, v11, 8, v12")
    a(f"v_add_u32 v11, {L_H}, v11")
    a("s_add_u32 s46, s46, 4")
    a("v_add_u32 v12, s46, v7")
    a("v_lshrrev_b32 v13, 2, v12")
    a("v_lshl_add_u32 v13, v13, 12, v9")
    a("v_and_b32 v12, 3, v12")
    a("v_lshl_add_u32 v12, v12, 8, v13")
    a("v_and_b32 v13, 1, v6")
    a("v_lshl_add_u32 v12, v13, 3, v12")
    a(f"v_add_u32 v12, {L_H}, v12")
    for qq in range(2):
        for t in range(3):
            gelu(a, list(range(acc(t, 2*qq), acc(t, 2*qq) + 8)), GT, GT + 22)
        for q in (2*qq, 2*qq + 1):
            o = GT + 8 + (q & 1) * 6
            for r in range(4):
                a(f"v_cvt_pk_bf16_f32 v{o+r}, v{acc(0,q)+r}, v{acc(1,q)+r}")
            a(f"v_cvt_pk_bf16_f32 v{o+4}, v{acc(2,q)}, v{acc(2,q)+1}")
            a(f"v_cvt_pk_bf16_f32 v{o+5}, v{acc(2,q)+2}, v{acc(2,q)+3}")
            a(f"ds_write_b128 v11, {v(o,4)} offset:{q*1024}")
            a(f"ds_write_b64 v12, {v(o+4,2)} offset:{q*1024}")
    a("s_setpc_b64 s[74:75]")
    a.label("L_m_cvt")
    for q in range(4):
        o = GT + q * 4
        for r in range(4):
            a(f"v_cvt_pk_bf16_f32 v{o+r}, v{acc(0,q)+r}, v{acc(1,q)+r}")
        o2 = GT + 16 + (q >> 1) * 4 + (q & 1) * 2
        a(f"v_cvt_pk_bf16_f32 v{o2}, v{acc(2,q)}, v{acc(2,q)+1}")
        a(f"v_cvt_pk_bf16_f32 v{o2+1}, v{acc(2,q)+2}, v{acc(2,q)+3}")
    for b in (GT + 16, GT + 20):
        a(f"v_permlane16_swap_b32 v{b}, v{b+2}")
        a(f"v_permlane16_swap_b32 v{b+1}, v{b+3}")
    a("s_setpc_b64 s[74:75]")
    a.label("L_m_st")
    a("s_mul_i32 s46, s68, 768")
    a("s_add_u32 s46, s46, s71")
    for q in range(4):
        a(f"s_add_u32 s47, s46, {q*147456}")
        a(f"buffer_store_dwordx4 {v(GT+4*q,4)}, v14, {s(ws,4)}, s47 offen sc1")
        if not q & 1:
            a(f"buffer_store_dwordx4 {v(GT+16+(q>>1)*4,4)}, v15, {s(ws,4)}, s47 offen offset:512 sc1")
    a("s_nop 1")
    a("s_setpc_b64 s[74:75]")

def reduce_setup(a):
    srd(a, XS_, 22, D * 2)
    srd(a, 24, 6, S * D * 2)
    a("s_mov_b32 s76, 0xffff0000")
    a("s_lshl_b32 s46, s56, 8")
    a(f"s_add_u32 s53, s46, {WS_FP1}")
    a("v_lshlrev_b32 v8, 2, v1")
    a("v_and_b32 v8, 0xec, v8")
    a("s_mov_b32 s73, 0")

def reduce_item(a):
    ws = WS_
    a.label("L_r_item")
    R = ACC; Z = BR
    a("v_lshrrev_b32 v11, 3, v1")
    a("v_lshlrev_b32 v11, 4, v11")
    a("s_lshl_b32 s45, s48, 7")
    a(f"buffer_load_dwordx4 {v(R+32,4)}, v11, {s(XS_,4)}, s45 offen")
    a("s_mul_i32 s72, s57, 73728")
    a("s_lshl_b32 s47, s48, 10")
    a("s_add_u32 s72, s72, s47")
    a(f"s_add_u32 s72, s72, {WS_P}")
    a(f"s_add_u32 s47, s47, {L_HH}")
    a("v_add_u32 v12, s47, v2")
    a(f"ds_read_b128 {v(R+36,4)}, v12")
    a("s_mov_b32 s62, 0xff")
    a(f"s_mov_b32 s49, {POLL_MAX}")
    a.label("L_r_again")
    for i in range(8):
        a(f"s_bitcmp1_b32 s62, {i}")
        a(f"s_cbranch_scc0 L_r_sk{i}")
        a(f"s_add_u32 s46, s72, {i*9216}")
        a(f"buffer_load_dwordx4 {v(R+4*i,4)}, v2, {s(ws,4)}, s46 offen sc1")
        a.label(f"L_r_sk{i}")
    a("s_cmp_eq_u32 s73, 0")
    a("s_cbranch_scc1 L_r_have")
    a("s_waitcnt vmcnt(0)")
    a("s_mov_b32 s62, 0")
    for i in range(8):
        a(f"v_max3_u32 v13, v{R+4*i}, v{R+4*i+1}, v{R+4*i+2}")
        a(f"v_max_u32 v13, v13, v{R+4*i+3}")
        a("v_cmp_eq_u32 vcc, -1, v13")
        a("s_nop 1")
        a("s_cmp_lg_u64 vcc, 0")
        a(f"s_cselect_b32 s46, {1 << i}, 0")
        a("s_or_b32 s62, s62, s46")
    a("s_cbranch_scc0 L_r_have")
    a(f"s_sleep {RSLEEP}")
    a("s_sub_u32 s49, s49, 1")
    a("s_cbranch_scc0 L_r_again")
    a.label("L_r_have")
    stamp_rt(a, 45)
    a("v_mad_u32_u24 v11, v5, s44, v11")
    a("s_mul_i32 s46, s57, 9216")
    a("s_add_u32 s46, s46, s45")
    a("s_waitcnt lgkmcnt(0)")
    for r in range(4):
        a(f"v_lshlrev_b32 v{Z+2*r}, 16, v{R+36+r}")
        a(f"v_and_b32 v{Z+1+2*r}, s76, v{R+36+r}")
    for k, i in enumerate([8] + list(range(8))):
        a(f"s_waitcnt vmcnt({8-k})")
        for r in range(4):
            a(f"v_lshlrev_b32 v{Z+12}, 16, v{R+4*i+r}")
            a(f"v_and_b32 v{Z+13}, s76, v{R+4*i+r}")
            a(f"v_add_f32 v{Z+2*r}, v{Z+2*r}, v{Z+12}")
            a(f"v_add_f32 v{Z+1+2*r}, v{Z+1+2*r}, v{Z+13}")
    for r in range(4):
        a(f"v_cvt_pk_bf16_f32 v{Z+8+r}, v{Z+2*r}, v{Z+1+2*r}")
    a(f"buffer_store_dwordx4 {v(Z+8,4)}, v11, s[24:27], s46 offen {OUTMOD}")
    a("s_nop 1")
    a("s_setpc_b64 s[74:75]")

def k_main(name):
    a = Asm()
    kernel_head(a, name)
    a("s_cmp_ge_u32 s2, 256")
    a("s_cbranch_scc1 L_end")
    stamp_first(a)
    prologue(a)
    stamp_init(a, 0)
    attention(a)
    mlp(a)
    stamp_dump(a, 2)
    a.label("L_end")
    a("s_endpgm")
    subroutines(a)
    reduce_item(a)
    return a.finish(), descriptor(name, 256, 80)
```

```python
from common import *
from k_pack import *
import math

QSCALE = math.log2(math.e) / math.sqrt(DH)
LDS_QKV = 163840
LX = 0; LW = 73728; LE = LW + 17 * 5120
assert LE + 1280 + 512 <= LDS_QKV
MAIN_CODE_KB = [0]
QDBG = int(os.environ.get("QDBG", "0"))

def k_qkv(name):
    a = Asm()
    kernel_head(a, name)
    XF = 16
    AF = 28
    ACC = 64
    GRAM = 76; CS = 80; ONES = 100; G17 = 104; WOR = 104; T = 120
    a("s_cmp_ge_u32 s2, 256")
    a("s_cbranch_scc1 L_q_end")
    stamp_first(a)
    a(f"s_load_dwordx8 s[4:11], s[0:1], {KA['x']}")
    a(f"s_load_dwordx2 s[12:13], s[0:1], {KA['ws']}")
    a(f"s_load_dwordx2 s[14:15], s[0:1], {KA['wo']}")
    a("v_and_b32 v1, 63, v0")
    a("v_lshrrev_b32 v7, 6, v0")
    a("v_readfirstlane_b32 s3, v7")
    stamp_init(a, 127)
    a("s_and_b32 s40, s2, 31")
    a("s_lshr_b32 s41, s2, 5")
    a("s_movk_i32 s44, 1152")
    a("s_lshl_b32 s42, s40, 6")
    a("s_and_b32 s43, s3, 3")
    a("v_lshlrev_b32 v6, 4, v1")
    a("v_lshrrev_b32 v10, 4, v1")
    a("v_and_b32 v11, 15, v1")
    a("s_cmp_ge_u32 s3, 12")
    a("s_cbranch_scc1 L_q_aux")
    a("s_cmp_ge_u32 s3, 4")
    a("s_cbranch_scc1 L_q_compute")
    a("v_lshrrev_b32 v8, 3, v1")
    a("v_and_b32 v9, 7, v1")
    a("v_xor_b32 v12, v9, v8")
    a("v_lshlrev_b32 v12, 4, v12")
    a("v_mad_u32_u24 v12, v8, s44, v12")
    a("v_and_b32 v13, 2, v8")
    a("v_xor_b32 v13, v9, v13")
    a("v_lshlrev_b32 v13, 4, v13")
    a("v_mad_u32_u24 v13, v8, s44, v13")
    a("v_xor_b32 v14, 64, v13")
    a(f"v_add_u32 v14, {8*1152}, v14")
    a("s_lshr_b32 s45, s40, 3")
    a("s_add_u32 s60, s45, s41")
    a("s_lshl_b32 s45, s43, 4")
    a("s_add_u32 s46, s42, s45")
    a("s_mul_i32 s46, s46, 1152")
    a(f"s_mul_i32 s47, s43, {32*1152}")
    a("s_lshl_b32 s48, s41, 7")
    a("s_add_u32 s47, s47, s48")
    a("s_lshl_b32 s50, s43, 11")
    a("s_mul_i32 s51, s43, 5120")
    a(f"s_add_u32 s51, s51, {LW}")
    a("s_waitcnt lgkmcnt(0)")
    if PROF: ws_shift(a)
    srd(a, 16, 4, S * D * 2)
    srd(a, 20, 6, D * D * 2)
    first = [True]
    def round_issue(rho):
        if rho < 4:
            a(f"s_add_u32 s61, s60, {rho}")
            a("s_and_b32 s61, s61, 3")
        else:
            a("s_mov_b32 s61, 4")
        a("s_lshl_b32 s62, s61, 8")
        a("s_add_u32 s62, s62, s46")
        a(f"s_mul_i32 s63, s61, {128*1152}")
        a("s_add_u32 s63, s63, s47")
        a(f"s_add_u32 s64, s62, {8*1152}")
        def dx(h):
            kp = 2*rho + h
            a(f"s_add_u32 m0, s50, {LX + kp*8192 - h*128}")
            a(f"buffer_load_dwordx4 v12, s[16:19], s62 offen offset:{h*128} lds")
            a(f"s_add_u32 m0, s50, {LX + kp*8192 + 1024 - h*128}")
            a(f"buffer_load_dwordx4 v12, s[16:19], s64 offen offset:{h*128} lds")
        dx(0)
        if rho == 4:
            a("s_cmp_lg_u32 s43, 0")
            a("s_cbranch_scc1 L_q_g17")
        for p in range(4):
            a(f"s_add_u32 m0, s51, {rho*20480 + p*1024}")
            if p == 2: a(f"s_add_u32 s63, s63, {16*1152}")
            a(f"buffer_load_dwordx4 v{13 + (p & 1)}, s[20:23], s63 offen lds")
        if first[0]:
            first[0] = False
            a("s_cmp_lt_u32 s41, 6")
            a("s_cselect_b32 s24, s8, s10")
            a("s_cselect_b32 s25, s9, s11")
            a("s_cmp_lt_u32 s41, 4")
            a("s_cselect_b32 s24, s6, s24")
            a("s_cselect_b32 s25, s7, s25")
            csel(a, 26, D * D * 2, D * DH * 2)
            csel(a, 54, 1152, 36)
            a("s_lshl_b32 s55, s41, 5")
            a("s_add_u32 s56, s55, 1024")
            a("s_and_b32 s55, s55, 32")
            a("s_cmp_lt_u32 s41, 4")
            a("s_cselect_b32 s55, s56, s55")
            a("s_and_b32 s25, s25, 0xffff")
            a("s_mov_b32 s27, 0x00020000")
            a("s_lshl_b32 s56, s43, 5")
            a("s_mul_i32 s56, s56, s54")
            a("s_add_u32 s55, s55, s56")
            a("s_lshl_b32 s56, s54, 7")
            a("v_lshrrev_b32 v8, 1, v1")
            a("v_lshrrev_b32 v9, 2, v1")
            a("v_and_b32 v9, 4, v9")
            a("v_xor_b32 v8, v8, v9")
            a("v_and_b32 v9, 1, v1")
            a("v_lshlrev_b32 v9, 4, v9")
            a("v_mad_u32_u24 v15, v8, s54, v9")
        a("s_mul_i32 s65, s61, s56")
        a("s_add_u32 s65, s65, s55")
        a(f"s_add_u32 m0, s51, {rho*20480 + 4096}")
        a("buffer_load_dwordx4 v15, s[24:27], s65 offen lds")
        if rho < 4: dx(1)
        else:
            a("s_branch L_q_issued")
            a.label("L_q_g17")
            for p in range(4):
                if p == 2: a(f"s_add_u32 s63, s63, {16*1152}")
                a(f"buffer_load_dwordx4 {v(G17+4*p,4)}, v{13 + (p & 1)}, s[20:23], s63 offen")
            a("s_mul_i32 s65, s61, s56")
            a("s_add_u32 s65, s65, s55")
            a(f"buffer_load_dwordx4 {v(G17+16,4)}, v15, s[24:27], s65 offen")
            a.label("L_q_issued")
    round_issue(0); round_issue(1)
    stamp(a, 1)
    for rho in range(4):
        a(f"s_waitcnt vmcnt({9 if rho < 3 else 7})")
        a("s_barrier")
        if rho == 0: stamp(a, 4)
        if rho < 3: round_issue(rho + 2)
    a("s_waitcnt vmcnt(0)")
    a("s_cmp_lg_u32 s43, 1")
    a("s_cbranch_scc1 L_q_nog17")
    a(f"v_add_u32 v9, {LW}, v6")
    for p in range(5):
        a(f"ds_write_b128 v9, {v(G17+4*p,4)} offset:{p*1024}")
    a("s_waitcnt lgkmcnt(0)")
    a.label("L_q_nog17")
    a("s_barrier")
    stamp(a, 8)
    a("s_branch L_q_fin")
    a.label("L_q_aux")
    tr_addrs(a, "0")
    a("v_xor_b32 v7, 64, v2")
    a("v_xor_b32 v8, 64, v3")
    a("s_mul_i32 s45, s43, 5120")
    for r in (2, 3, 4, 5, 7, 8): a(f"v_add_u32 v{r}, s45, v{r}")
    for i in range(4): a(f"v_mov_b32 v{ONES+i}, 0x3f803f80")
    a("s_waitcnt lgkmcnt(0)")
    ws_shift(a)
    srd(a, 32, 12, WS_END)
    srd(a, 36, 14, D * D * 2)
    a("s_lshl_b32 s57, s43, 8")
    a("s_add_u32 s57, s57, s2")
    a("s_min_u32 s70, s57, 647")
    W = Lst()
    wo_job_loads(W, 70, 36, 71, 58, 1, 9, 12, 48)
    k0 = [i for i, x in enumerate(W) if x.startswith("buffer_load")][0]
    for x in W[:k0]: a(x)
    a("s_getpc_b64 s[66:67]")
    a.label("L_q_pc")
    a("s_lshr_b32 s68, s2, 3")
    a("s_lshl_b32 s68, s68, 2")
    a("s_add_u32 s68, s68, s43")
    a(f"s_min_u32 s68, s68, {MAIN_CODE_KB[0] - 1}")
    a("s_lshl_b32 s68, s68, 10")
    a("s_add_u32 s68, s68, main_kernel - L_q_pc")
    a("s_add_u32 s66, s66, s68")
    a("s_addc_u32 s67, s67, 0")
    a(f"s_load_dwordx2 s[16:17], s[0:1], {KA['w1']}")
    a(f"s_load_dwordx2 s[18:19], s[0:1], {KA['w2']}")
    a("s_waitcnt lgkmcnt(0)")
    a("s_bitcmp1_b32 s43, 0")
    a("s_cselect_b32 s20, s16, s18")
    a("s_cselect_b32 s21, s17, s19")
    a("s_and_b32 s21, s21, 0xffff")
    a(f"s_mov_b32 s22, {D*F*2}")
    a("s_mov_b32 s23, 0x00020000")
    a("s_mov_b32 s45, 0x14400")
    a("v_mul_lo_u32 v13, v1, s45")
    a("s_mul_i32 s45, s43, 320")
    a(f"s_add_u32 s45, s45, {LE}")
    a("v_lshl_add_u32 v12, v10, 4, s45")
    a("s_mov_b32 s60, 0x00010001")
    a("s_mov_b32 s61, 0x00010001")
    def cs_round(rho):
        off = rho * 20480 if rho < 3 else 0
        if rho == 3:
            for r in (2, 3, 4, 5, 7, 8): a(f"v_add_u32 v{r}, 61440, v{r}")
        if rho == 4:
            a("s_cmp_ge_u32 s43, 2")
            a("s_cbranch_scc1 L_q_cs_skip")
            a("s_cmp_eq_u32 s43, 0")
            csel(a, 45, 20480, (-(61440 + 5120)) & 0xffffffff)
            for r in (2, 3, 4, 5, 7, 8): a(f"v_add_u32 v{r}, s45, v{r}")
        for t, r in enumerate((2, 3, 7, 8)):
            a(f"ds_read_b64_tr_b16 {v(AF+4*t,2)}, v{r} offset:{off}")
            a(f"ds_read_b64_tr_b16 {v(AF+4*t+2,2)}, v{r} offset:{off + 512}")
        a(f"ds_read_b64_tr_b16 {v(AF+16,2)}, v4 offset:{off}")
        a(f"ds_read_b64_tr_b16 {v(AF+18,2)}, v5 offset:{off}")
        a("s_waitcnt lgkmcnt(0)")
        for t in range(5):
            mfma16(a, CS + 4*t, AF + 4*t, ONES, None if rho == 0 else CS + 4*t)
        if rho == 4: a.label("L_q_cs_skip")
    for rho in range(5):
        a("s_barrier")
        if rho == 3:
            for x in W[k0:]: a(x)
            a(f"global_load_dword v124, v6, s[66:67]")
            if os.environ.get("TOUCH", "0") == "1":
                a("buffer_load_dword v125, v13, s[20:23], 0 offen")
        cs_round(rho)
    a("s_nop 7")
    a("s_mov_b64 exec, s[60:61]")
    for t in range(5):
        a(f"ds_write_b128 v12, {v(CS+4*t,4)} offset:{t*64}")
    a("s_mov_b64 exec, -1")
    a("s_waitcnt lgkmcnt(0)")
    a("s_barrier")
    stamp(a, 9)
    a("s_cmp_ge_u32 s57, 648")
    a("s_cbranch_scc1 L_q_fin")
    a(f"s_waitcnt vmcnt({2 if os.environ.get('TOUCH', '0') == '1' else 1})")
    merge_store(a, 48, 56, 32, 6, 58)
    a("s_cmp_ge_u32 s57, 28")
    a("s_cbranch_scc1 L_q_fin")
    for i in range(4): a(f"v_mov_b32 v{116+i}, 0")
    a("s_lshl_b32 s45, s57, 10")
    a(f"s_add_u32 s45, s45, {WS_FLAGS}")
    a(f"buffer_store_dwordx4 v[116:119], v6, s[32:35], s45 offen")
    a("s_branch L_q_fin")
    a.label("L_q_compute")
    a("s_getpc_b64 s[66:67]")
    a.label("L_q_pc2")
    a(f"s_sub_u32 s66, s66, L_q_pc2 - {name}")
    a("s_subb_u32 s67, s67, 0")
    a("s_sub_u32 s59, s3, 4")
    a("s_lshl_b32 s45, s59, 10")
    a("v_add_u32 v2, s45, v6")
    a(f"global_load_dwordx4 {v(T,4)}, v2, s[66:67]")
    a("v_and_b32 v12, 7, v1")
    a("v_xor_b32 v12, v10, v12")
    a("v_lshlrev_b32 v12, 4, v12")
    a("v_lshl_add_u32 v7, v11, 7, v12")
    a("s_lshl_b32 s45, s43, 11")
    a("v_add_u32 v7, s45, v7")
    a("v_xor_b32 v8, 64, v7")
    a("s_lshr_b32 s45, s59, 2")
    a("s_lshl_b32 s45, s45, 1")
    tr_addrs(a, "s45")
    for i in range(4): a(f"v_mov_b32 v{ONES+i}, 0x3f803f80")
    a("s_lshl_b32 s45, s43, 4")
    a("s_add_u32 s42, s42, s45")
    a("v_add_u32 v9, s42, v11")
    a("s_lshl_b32 s46, s43, 7")
    a(f"s_add_u32 s46, s46, {LE + 1280}")
    a("v_lshl_add_u32 v13, v11, 3, s46")
    a(f"v_lshlrev_b32 v12, 4, v10")
    a(f"v_add_u32 v12, {LE}, v12")
    a("v_and_b32 v14, 3, v1")
    a("v_cmp_eq_u32 s[60:61], 1, v14")
    a("v_cmp_eq_u32 s[62:63], 2, v14")
    a("v_cmp_eq_u32 s[64:65], 3, v14")
    a("v_bfe_u32 v15, v1, 2, 2")
    a("v_cmp_eq_u32 s[68:69], v15, v10")
    a("v_and_b32 v14, 1, v10")
    a("v_lshlrev_b32 v14, 5, v14")
    a("v_lshrrev_b32 v15, 1, v10")
    a("v_lshl_add_u32 v14, v15, 4, v14")
    a(f"v_mad_u32_u24 v{T+4}, v9, s44, v14")
    a("s_waitcnt lgkmcnt(0)")
    ws_shift(a)
    srd(a, 32, 12, WS_END)
    a("s_cmp_ge_u32 s59, 4")
    a("s_cbranch_scc1 L_q_nh1")
    for nh in range(2):
        if nh: a.label("L_q_nh1")
        nt = 3 - nh
        nr = 7 if nh == 0 else 5
        wregs = (2, 3, 4, 5) if nh == 0 else (2, 3)
        def reads(sx):
            if QDBG & 1:
                if sx == 0:
                    for _ in range(5): a("s_barrier")
                    stamp(a, 4)
            elif sx % 4 == 0:
                a("s_barrier")
                if sx == 0: stamp(a, 4)
            if sx in (8, 16):
                a("v_add_u32 v7, 32768, v7"); a("v_add_u32 v8, 32768, v8")
                for r in wregs: a(f"v_add_u32 v{r}, 40960, v{r}")
            if sx == 17:
                for r in wregs: a(f"v_subrev_u32 v{r}, 81920, v{r}")
            xb = XF + (sx % 3) * 4; ab = AF + (sx % 3) * 12
            kp = (sx >> 1) % 4; G = (sx % 8) if sx < 17 else 0
            a(f"ds_read_b128 {v(xb,4)}, v{7 + (sx & 1)} offset:{kp*8192}")
            for t in range(2):
                a(f"ds_read_b64_tr_b16 {v(ab+4*t,2)}, v{2+t} offset:{G*5120}")
                a(f"ds_read_b64_tr_b16 {v(ab+4*t+2,2)}, v{2+t} offset:{G*5120 + 512}")
            if nh == 0:
                a(f"ds_read_b64_tr_b16 {v(ab+8,2)}, v4 offset:{G*5120}")
                a(f"ds_read_b64_tr_b16 {v(ab+10,2)}, v5 offset:{G*5120}")
        reads(0); reads(1)
        for sx in range(18):
            a(f"s_waitcnt lgkmcnt({nr if sx < 17 else 0})")
            xb = XF + (sx % 3) * 4; ab = AF + (sx % 3) * 12
            for t in range(nt):
                if not QDBG & 2: mfma16(a, ACC + 4*t, ab + 4*t, xb, None if sx == 0 else ACC + 4*t)
            if nh == 1 and not QDBG & 2:
                mfma16(a, ACC + 8, ONES, xb, None if sx == 0 else ACC + 8)
                mfma16(a, GRAM, xb, xb, None if sx == 0 else GRAM)
            if sx + 2 < 18: reads(sx + 2)
        stamp(a, 7)
        if nh == 1:
            a(f"v_cndmask_b32 v15, v{GRAM}, v{GRAM+1}, s[60:61]")
            a(f"v_cndmask_b32 v15, v15, v{GRAM+2}, s[62:63]")
            a(f"v_cndmask_b32 v15, v15, v{GRAM+3}, s[64:65]")
            a(f"v_mul_f32 v14, {fbits(1.0/D)}, v{ACC+8}")
            a(f"v_mul_f32 v15, {fbits(1.0/D)}, v15")
            a("v_fma_f32 v15, -v14, v14, v15")
            a("v_max_f32 v15, 0, v15")
            a(f"v_add_f32 v15, {fbits(1e-5)}, v15")
            a("v_rsq_f32 v15, v15")
            a("s_mov_b64 exec, s[68:69]")
            a("ds_write_b64 v13, v[14:15]")
            a("s_mov_b64 exec, -1")
            a("s_waitcnt lgkmcnt(0)")
        a("s_barrier")
        stamp(a, 9)
        tiles = (0, 1, 4) if nh == 0 else (2, 3)
        a("ds_read_b64 v[14:15], v13")
        for t, tl in enumerate(tiles):
            for w in range(4):
                a(f"ds_read_b128 {v(16 + t*16 + w*4, 4)}, v12 offset:{w*320 + tl*64}")
        a("s_lshl_b32 s46, s41, 7")
        a(f"s_add_u32 s46, s46, {WS_Q + nh*64}")
        a(f"s_waitcnt lgkmcnt({4*nt})")
        a("v_mov_b32 v13, v15")
        a(f"v_mul_f32 v15, {fbits(QSCALE)}, v15")
        for t in range(nt):
            a(f"s_waitcnt lgkmcnt({4*(nt-1-t)})")
            b = 16 + t*16
            for i in range(4):
                a(f"v_add_f32 v{b+i}, v{b+i}, v{b+4+i}")
                a(f"v_add_f32 v{b+8+i}, v{b+8+i}, v{b+12+i}")
            for i in range(4):
                a(f"v_add_f32 v{b+i}, v{b+i}, v{b+8+i}")
            for i in range(4):
                a(f"v_fma_f32 v{ACC+4*t+i}, -v14, v{b+i}, v{ACC+4*t+i}")
            if t < 2:
                for i in range(4):
                    a(f"v_mul_f32 v{ACC+4*t+i}, v{ACC+4*t+i}, v15")
                a(f"v_cvt_pk_bf16_f32 v{CS+2*t}, v{ACC+4*t}, v{ACC+4*t+1}")
                a(f"v_cvt_pk_bf16_f32 v{CS+2*t+1}, v{ACC+4*t+2}, v{ACC+4*t+3}")
            if t == 1:
                a(f"v_permlane16_swap_b32 v{CS}, v{CS+2}")
                a(f"v_permlane16_swap_b32 v{CS+1}, v{CS+3}")
                a(f"buffer_store_dwordx4 {v(CS,4)}, v{T+4}, s[32:35], s46 offen")
        if nh == 0:
            special(a, ACC + 8, CS + 4)
    a.label("L_q_fin")
    for _ in range(int(os.environ.get("QPAD", "0"))): a("s_sleep 32")
    stamp_dump(a, 1)
    a.label("L_q_end")
    a("s_endpgm")
    return a.finish(), descriptor(name, 128, 80)

def tr_addrs(a, t0):
    a("v_bfe_u32 v16, v1, 2, 2")
    a("v_lshl_add_u32 v17, v10, 3, v16")
    a("v_lshrrev_b32 v18, 1, v16")
    a("v_and_b32 v19, 1, v10")
    a("v_lshl_add_u32 v18, v19, 1, v18")
    a(f"v_xor_b32 v18, {t0}, v18")
    a("v_lshlrev_b32 v18, 5, v18")
    a("v_lshl_add_u32 v2, v17, 7, v18")
    a("v_and_b32 v18, 3, v1")
    a("v_lshl_add_u32 v2, v18, 3, v2")
    a(f"v_add_u32 v2, {LW}, v2")
    a("v_xor_b32 v3, 32, v2")
    a("v_lshlrev_b32 v19, 2, v19")
    a("v_xor_b32 v17, v17, v19")
    a("v_lshlrev_b32 v4, 5, v17")
    a("v_lshl_add_u32 v4, v18, 3, v4")
    a(f"v_add_u32 v4, {LW + 4096}, v4")
    a("v_xor_b32 v5, 128, v4")

def special(a, A, Pk):
    a("s_cmp_lt_u32 s41, 4")
    a("s_cselect_b64 vcc, -1, 0")
    a("v_cndmask_b32 v13, v13, v15, vcc")
    for i in range(4): a(f"v_mul_f32 v{A+i}, v{A+i}, v13")
    a(f"v_cvt_pk_bf16_f32 v{Pk}, v{A}, v{A+1}")
    a(f"v_cvt_pk_bf16_f32 v{Pk+1}, v{A+2}, v{A+3}")
    a("s_cbranch_scc0 L_q_kv")
    a("v_lshlrev_b32 v2, 3, v10")
    a("v_mad_u32_u24 v2, v9, s44, v2")
    a("s_lshl_b32 s46, s41, 5")
    a(f"s_add_u32 s46, s46, {WS_Q + 1024}")
    a(f"buffer_store_dwordx2 {v(Pk,2)}, v2, s[32:35], s46 offen")
    a("s_branch L_q_fin")
    a.label("L_q_kv")
    a("s_lshr_b32 s45, s42, 7")
    a(f"s_mul_i32 s45, s45, {KV_BLK}")
    a(f"s_add_u32 s45, s45, {WS_KV}")
    a("s_bfe_u32 s46, s42, 0x20005")
    a("v_and_b32 v2, 31, v9")
    a("s_cmp_ge_u32 s41, 6")
    a("s_cbranch_scc1 L_q_v")
    sigma_v(a, 3, 2, 4, 5)
    a(f"v_mul_f32 v14, v{A}, v{A}")
    a(f"v_fmac_f32 v14, v{A+1}, v{A+1}")
    a("s_lshr_b32 s49, s42, 2")
    a(f"s_add_u32 s49, s49, {WS_KMAX}")
    a("s_cmp_eq_u32 s41, 5")
    a("s_cbranch_scc1 L_q_k1")
    a("v_lshrrev_b32 v4, 1, v10")
    a("v_lshl_add_u32 v4, v4, 5, v3")
    a("v_lshlrev_b32 v4, 4, v4")
    a("v_and_b32 v5, 1, v10")
    a("v_lshl_add_u32 v4, v5, 3, v4")
    a("s_lshl_b32 s47, s46, 10")
    a("s_add_u32 s47, s47, s45")
    a(f"buffer_store_dwordx2 {v(Pk,2)}, v4, s[32:35], s47 offen")
    a(f"v_fmac_f32 v14, v{A+2}, v{A+2}")
    a(f"v_fmac_f32 v14, v{A+3}, v{A+3}")
    a("v_mov_b32 v15, v14")
    a("v_permlane32_swap_b32 v14, v15")
    a("v_add_f32 v14, v14, v15")
    a("v_mov_b32 v15, v14")
    a("v_permlane16_swap_b32 v14, v15")
    a("v_add_f32 v14, v14, v15")
    a("s_branch L_q_kmax")
    a.label("L_q_k1")
    a("v_lshlrev_b32 v3, 4, v3")
    a("s_lshl_b32 s48, s46, 2")
    a("s_add_u32 s48, s48, s45")
    a("s_add_u32 s48, s48, 4096")
    a("s_add_u32 s49, s49, 512")
    a("s_mov_b64 exec, 0xffff")
    a(f"buffer_store_dword v{Pk}, v3, s[32:35], s48 offen")
    a("s_mov_b64 exec, -1")
    a.label("L_q_kmax")
    a("s_nop 1")
    for rr in (8, 4, 2, 1):
        a(f"v_max_f32_dpp v14, v14, v14 row_ror:{rr} row_mask:0xf bank_mask:0xf")
    a("v_mov_b32 v2, 0")
    a("s_mov_b64 exec, 1")
    a("buffer_store_dword v14, v2, s[32:35], s49 offen")
    a("s_branch L_q_fin")
    a.label("L_q_v")
    a("v_lshrrev_b32 v5, 3, v2")
    a("v_mul_u32_u24 v5, 304, v5")
    a("v_and_b32 v4, 7, v2")
    a("v_lshl_add_u32 v5, v4, 1, v5")
    a("s_mul_i32 s47, s46, 1216")
    a("s_add_u32 s47, s47, s45")
    a("s_add_u32 s47, s47, 4608")
    a("s_cmp_eq_u32 s41, 7")
    a("s_cbranch_scc1 L_q_v1")
    a("v_lshl_add_u32 v4, v10, 6, v5")
    a(f"buffer_store_short v{Pk}, v4, s[32:35], s47 offen")
    a(f"buffer_store_short_d16_hi v{Pk}, v4, s[32:35], s47 offen offset:16")
    a(f"buffer_store_short v{Pk+1}, v4, s[32:35], s47 offen offset:32")
    a(f"buffer_store_short_d16_hi v{Pk+1}, v4, s[32:35], s47 offen offset:48")
    a("s_branch L_q_fin")
    a.label("L_q_v1")
    a("v_mov_b32 v4, 0x3f80")
    a("s_mov_b64 exec, 0xffff")
    a(f"buffer_store_short v{Pk}, v5, s[32:35], s47 offen offset:256")
    a(f"buffer_store_short_d16_hi v{Pk}, v5, s[32:35], s47 offen offset:272")
    a(f"buffer_store_short v4, v5, s[32:35], s47 offen offset:288")
    a("s_branch L_q_fin")
```

```python
import os
from asmlib import *
from layout import *

def srd(a, d, base, nbytes):
    a(f"s_mov_b32 s{d}, s{base}")
    a(f"s_and_b32 s{d+1}, s{base+1}, 0xffff")
    a(f"s_mov_b32 s{d+2}, {nbytes}")
    a(f"s_mov_b32 s{d+3}, 0x00020000")

def sigma_v(a, dst, src, t1, t2):
    a(f"v_and_b32 v{t1}, 4, v{src}")
    a(f"v_and_b32 v{t2}, 8, v{src}")
    a(f"v_and_b32 v{dst}, 0x13, v{src}")
    a(f"v_lshl_or_b32 v{dst}, v{t1}, 1, v{dst}")
    a(f"v_lshrrev_b32 v{t2}, 1, v{t2}")
    a(f"v_or_b32 v{dst}, v{dst}, v{t2}")

def sdiv(a, q, r, x, c, t):
    magic = -(-(1 << 32) // c)
    a(f"s_mov_b32 s{t}, {magic}")
    a(f"s_mul_hi_u32 s{q}, s{x}, s{t}")
    a(f"s_mul_i32 s{t}, s{q}, {c}")
    a(f"s_sub_u32 s{r}, s{x}, s{t}")

def kernel_head(a, name):
    a.raw(".p2align 8")
    a.raw(f".globl {name}")
    a.raw(f".type {name},@function")
    a.label(name)

def descriptor(name, nv, ns=102):
    acc = (min(nv, 256) + 3) // 4 * 4
    return f""".p2align 6
.amdhsa_kernel {name}
  .amdhsa_next_free_vgpr {nv}
  .amdhsa_next_free_sgpr {102 if os.environ.get("PROF", "0") == "1" or os.environ.get("DIAG") else ns}
  .amdhsa_accum_offset {acc}
  .amdhsa_group_segment_fixed_size 0
  .amdhsa_kernarg_size 104
  .amdhsa_user_sgpr_count 2
  .amdhsa_user_sgpr_kernarg_segment_ptr 1
  .amdhsa_system_sgpr_workgroup_id_x 1
.end_amdhsa_kernel
"""

def mfma32(a, d, A, B, C):
    c = "0" if C is None else v(C, 16)
    a(f"v_mfma_f32_32x32x16_bf16 {v(d,16)}, {v(A,4)}, {v(B,4)}, {c}")
def mfma16(a, d, A, B, C):
    c = "0" if C is None else v(C, 4)
    a(f"v_mfma_f32_16x16x32_bf16 {v(d,4)}, {v(A,4)}, {v(B,4)}, {c}")

def fbits(x):
    import struct
    return "0x%08x" % struct.unpack("<I", struct.pack("<f", x))[0]

def csel(a, d, x, y):
    a(f"s_mov_b32 s{d}, {y}")
    a(f"s_cmov_b32 s{d}, {x}")

def interleave(main, fill):
    out = []
    n, m = len(main), len(fill)
    j = 0
    for i, x in enumerate(main):
        out.append(x)
        want = (i + 1) * m // n
        while j < want:
            out.append(fill[j]); j += 1
    out += fill[j:]
    return out

class Lst(list):
    def __call__(self, text):
        for ln in text.split("\n"):
            if ln.strip(): self.append(ln.strip())

import os
PROF = os.environ.get("PROF", "0") == "1"
WS_PROF = 64 << 20
SV = 0
def stamp(a, i):
    if not PROF: return
    a("s_memtime s[98:99]")
    a("s_waitcnt lgkmcnt(0)")
    a(f"v_writelane_b32 v{STAMPV[0]}, s98, {i}")
def stamp_rt(a, i):
    if not PROF: return
    a("s_memrealtime s[98:99]")
    a("s_waitcnt lgkmcnt(0)")
    a(f"v_writelane_b32 v{STAMPV[0]}, s98, {i}")
STAMPV = [0]
def stamp_first(a):
    if not PROF: return
    a("s_memrealtime s[94:95]")
    a("s_memtime s[96:97]")
def stamp_init(a, vreg):
    STAMPV[0] = vreg
    if not PROF: return
    a("s_waitcnt lgkmcnt(0)")
    a(f"v_mov_b32 v{vreg}, 0")
    a(f"v_writelane_b32 v{vreg}, s96, 0")
    a(f"v_writelane_b32 v{vreg}, s94, 62")
def stamp_dump(a, kidx, vlane=1, wsp=12):
    if not PROF: return
    a("s_mov_b64 exec, -1")
    a("s_waitcnt vmcnt(0)")
    stamp(a, 61); stamp_rt(a, 63)
    a(f"s_sub_u32 s88, s{wsp}, {WSOFF}")
    a(f"s_subb_u32 s89, s{wsp+1}, 0")
    a(f"s_and_b32 s89, s89, 0xffff")
    a(f"s_mov_b32 s90, {WS_PROF + (8 << 20)}")
    a("s_mov_b32 s91, 0x00020000")
    a(f"s_add_u32 s92, s2, {kidx*256}")
    a("s_lshl_b32 s92, s92, 4")
    a("s_add_u32 s92, s92, s3")
    a("s_lshl_b32 s92, s92, 8")
    a(f"s_add_u32 s92, s92, {WS_PROF}")
    a(f"v_lshlrev_b32 v{vlane}, 2, v{vlane}")
    a(f"buffer_store_dword v{STAMPV[0]}, v{vlane}, s[88:91], s92 offen")
    a("s_waitcnt vmcnt(0)")

WSOFF = int(os.environ.get("WSOFF", "0")) << 20
def ws_shift(a):
    if WSOFF:
        a(f"s_add_u32 s12, s12, {WSOFF}")
        a("s_addc_u32 s13, s13, 0")

DIAG = os.environ.get("DIAG", "")
def mark(a, name):
    if not DIAG: return
    x, y = DIAG.split(",")
    for r, n in ((82, x), (84, y)):
        if n == name:
            a(f"s_memrealtime s[{r}:{r+1}]")
            a("s_waitcnt lgkmcnt(0)")
def diag_end(a):
    if not DIAG: return
    a("s_waitcnt vmcnt(0)")
    mark(a, "end")
    a("s_memrealtime s[86:87]")
    a("s_waitcnt lgkmcnt(0)")
    a("s_sub_u32 s84, s84, s82")
    a("s_min_u32 s84, s84, 20000")
    a.label("L_diag")
    a("s_memrealtime s[88:89]")
    a("s_waitcnt lgkmcnt(0)")
    a("s_sub_u32 s88, s88, s86")
    a("s_cmp_lt_u32 s88, s84")
    a("s_cbranch_scc1 L_diag")
```

```python
from common import *
from k_pack import *
import math

MAPPING = os.environ.get("MAPPING", "B")
VZERO = os.environ.get("VZERO", "1") == "1"
WMOD = os.environ.get("WMOD", "sc1")
PKGELU = os.environ.get("PKGELU", "0") == "1"
PACE = int(os.environ.get("PACE", "1"))
DBG = int(os.environ.get("DBG", "0"))
YMOD = os.environ.get("YMOD", "")
GATEA = os.environ.get("GATEA", "0") == "1"
PK_T = tuple(int(x) for x in os.environ.get("PK_T", "3,8").split(","))
RSLEEP = int(os.environ.get("RSLEEP", "4"))
TOUCH = os.environ.get("TOUCH", "0") == "1"
BLOAD = os.environ.get("BLOAD", "1") == "1"
EARLY0 = os.environ.get("SENT1", "0") == "1"
OUTMOD = os.environ.get("OUTMOD", "")
SENT1 = os.environ.get("SENT1", "0") == "1"
NOGELU = os.environ.get("NOGELU", "0") == "1"
LDS_MAIN = 163840
L_OS = KV_BYTES
L_CP = L_OS + 8 * 608
L_ST = L_CP + 6144
L_CNT = L_ST + 512
L_Y = 0; L_H = 73728; L_B1 = 147456; L_B1D = L_B1 + 2304; L_HH = L_B1 + 4608
assert L_HH + 9216 <= L_ST and L_CNT + 16 <= LDS_MAIN
WS_, XS_ = 32, 36
KA_, KR_, VA_ = 2, 3, 4
Q2POS = {2: 10, 0: 12, 3: 14, 1: 16}; QX = (12, 17)
Q1 = 20; SB = (24, 40); P = 56; O = 64; KB = (80, 84); KRB = (88, 92); VB = (96, 104)
TPI = 16
CI = 16; AR = 28; ACC = 136; BR = 184; GT = 232
RDS = 9
WSR = 64
C0 = -2.0 * 0.7978845608028654 * math.log2(math.e)
C1 = C0 * 0.044715
POLL_MAX = 1 << 20

def koff(t): return (t >> 2) * KV_BLK + (t & 3) * 1024
def kroff(blk): return blk * KV_BLK
def voff(t, mf): return (t >> 2) * KV_BLK + (t & 3) * 1216 + mf * 608

def tile(a, t, bg=None, nbg=0):
    Sc = SB[t & 1]; Sn = SB[(t + 1) & 1]
    def B(k):
        while bg and k > 0:
            x = bg.pop(0); a(x)
            if not x.startswith("s_"): k -= 1
    ex = lambda i: a(f"v_exp_f32 v{Sc+i}, v{Sc+i}")
    cv = lambda i: a(f"v_cvt_pk_bf16_f32 v{P+i}, v{Sc+2*i}, v{Sc+2*i+1}")
    a(f"s_waitcnt lgkmcnt({2 if (t & 3) == 2 else 1})")
    mfma32(a, Sn, KB[(t + 1) & 1], Q1, None)
    a(f"ds_read_b128 {v(VB[(t+1) & 1],4)}, v{VA_} offset:{voff(t+1,0)}")
    for i in range(0, 4): ex(i)
    mfma32(a, O, VB[(t + 1) & 1] + 4, P + 4, O)
    a(f"ds_read_b128 {v(VB[(t+1) & 1]+4,4)}, v{VA_} offset:{voff(t+1,1)}")
    cv(0); cv(1)
    for i in range(4, 8): ex(i)
    mfma32(a, Sn, KRB[((t + 1) >> 2) & 1], Q2POS[(t + 1) & 3], Sn)
    a(f"ds_read_b128 {v(KB[(t+1) & 1],4)}, v{KA_} offset:{koff(t+3)}")
    cv(2); cv(3)
    for i in range(8, 12): ex(i)
    mfma32(a, O, VB[t & 1], P, O)
    if (t & 3) == 1:
        a(f"ds_read_b128 {v(KRB[((t>>2)+1) & 1],4)}, v{KR_} offset:{kroff((t>>2)+1)}")
    cv(4); cv(5)
    for i in range(12, 16): ex(i)
    cv(6); cv(7)

def pipe_start(a):
    a(f"ds_read_b128 {v(KB[0],4)}, v{KA_} offset:{koff(0)}")
    a(f"ds_read_b128 {v(KRB[0],4)}, v{KR_} offset:{kroff(0)}")
    a(f"ds_read_b128 {v(KB[1],4)}, v{KA_} offset:{koff(1)}")
    a(f"ds_read_b128 {v(VB[0],4)}, v{VA_} offset:{voff(0,0)}")
    a(f"ds_read_b128 {v(VB[0]+4,4)}, v{VA_} offset:{voff(0,1)}")
    a("s_waitcnt lgkmcnt(3)")
    mfma32(a, SB[0], KB[0], Q1, None)
    mfma32(a, SB[0], KRB[0], Q2POS[0], SB[0])
    a(f"ds_read_b128 {v(KB[0],4)}, v{KA_} offset:{koff(2)}")
    a("s_nop 10")

def wo0_loads(a, sx, vl):
    b = 112 + (sx % 4) * 36
    for t in range(9):
        if t == 4 or t == 8: a("s_add_u32 s61, s61, 4096")
        a(f"buffer_load_dwordx4 {v(b+4*t,4)}, v{vl}, {s(WS_,4)}, s61 offen offset:{(t%4)*1024}")
    a(f"s_add_u32 s61, s61, {36*1024 - 8192}")

def lds_poll(a, tag, vaddr, vtmp, thr):
    a(f"s_mov_b32 s49, {POLL_MAX}")
    a.label(f"L_{tag}")
    a(f"ds_read_b32 v{vtmp}, v{vaddr}")
    a("s_waitcnt lgkmcnt(0)")
    a(f"v_readfirstlane_b32 s47, v{vtmp}")
    a("s_sub_u32 s49, s49, 1")
    a(f"s_cbranch_scc1 L_{tag}_ok")
    a(f"s_cmp_ge_u32 s47, {thr}")
    a(f"s_cbranch_scc1 L_{tag}_ok")
    a("s_sleep 2")
    a(f"s_branch L_{tag}")
    a.label(f"L_{tag}_ok")

def flag_poll(a, tag, vaddr, vtmp, s_off, width, sleep=1):
    a(f"s_mov_b32 s49, {POLL_MAX}")
    a.label(f"L_{tag}")
    if width == 1:
        a(f"buffer_load_dword v{vtmp}, v{vaddr}, {s(WS_,4)}, s{s_off} offen sc1")
    else:
        a(f"buffer_load_dwordx2 {v(vtmp,2)}, v{vaddr}, {s(WS_,4)}, s{s_off} offen sc1")
    a("s_waitcnt vmcnt(0)")
    if width == 2: a(f"v_min_u32 v{vtmp}, v{vtmp}, v{vtmp+1}")
    a(f"v_cmp_eq_u32 vcc, 0, v{vtmp}")
    a("s_sub_u32 s49, s49, 1")
    a(f"s_cbranch_scc1 L_{tag}_ok")
    a("s_nop 1")
    a("s_cmp_eq_u64 vcc, 0")
    a(f"s_cbranch_scc1 L_{tag}_ok")
    a(f"s_sleep {sleep}")
    a(f"s_branch L_{tag}")
    a.label(f"L_{tag}_ok")

def flag_store(a, base, vt):
    a("s_lshl_b32 s46, s57, 3")
    a("s_add_u32 s46, s46, s3")
    a("s_lshl_b32 s46, s46, 2")
    a(f"s_add_u32 s46, s46, {base}")
    a(f"v_mov_b32 v{vt}, 0")
    a(f"v_mov_b32 v{vt+1}, 1")
    a("s_mov_b64 exec, 1")
    a(f"buffer_store_dword v{vt+1}, v{vt}, {s(WS_,4)}, s46 offen sc1")
    a("s_mov_b64 exec, -1")

def a_loads(a, step_slot):
    for t in range(3):
        a(f"buffer_load_dwordx4 {v(AR + step_slot*12 + 4*t, 4)}, v2, {s(WSR,4)}, s70 offen offset:{t*1024} {WMOD}")
    a("s_add_u32 s70, s70, 3072")

def prologue(a):
    a(f"s_load_dwordx2 s[4:5], s[0:1], {KA['x']}")
    a(f"s_load_dwordx8 s[16:23], s[0:1], {KA['w1']}")
    a(f"s_load_dwordx2 s[6:7], s[0:1], {KA['out']}")
    a(f"s_load_dwordx2 s[12:13], s[0:1], {KA['ws']}")
    a("v_lshrrev_b32 v7, 6, v0")
    a("v_and_b32 v1, 63, v0")
    a("v_readfirstlane_b32 s3, v7")
    nb = {"A": 3, "B": 2, "C": 1, "D": 0}[MAPPING]
    a(f"s_and_b32 s43, s2, {(1 << nb) - 1}")
    a(f"s_lshl_b32 s43, s43, {3 - nb}")
    a(f"s_bfe_u32 s45, s2, {hex(((3 - nb) << 16) | 3)}")
    a("s_add_u32 s43, s43, s45")
    a(f"s_lshr_b32 s56, s2, {6 - nb}")
    a(f"s_lshl_b32 s56, s56, {3 - nb}")
    a(f"s_bfe_u32 s45, s2, {hex(((3 - nb) << 16) | nb)}")
    a("s_add_u32 s56, s56, s45")
    a("s_lshl_b32 s57, s56, 3")
    a("s_add_u32 s57, s57, s43")
    a("s_lshl_b32 s42, s57, 3")
    a("s_and_b32 s40, s3, 3")
    a("s_lshr_b32 s41, s3, 2")
    a("s_movk_i32 s44, 1152")
    a("v_and_b32 v5, 15, v1")
    a("v_mul_u32_u24 v5, 36, v5")
    a("v_bfe_u32 v6, v1, 4, 1")
    a("v_mad_u32_u24 v5, v6, s44, v5")
    a("v_lshrrev_b32 v7, 5, v1")
    a("v_lshl_add_u32 v6, v7, 4, v5")
    a("s_lshl_b32 s45, s40, 1")
    a("s_add_u32 s45, s45, s42")
    a("s_mul_i32 s45, s45, 1152")
    a("s_mul_i32 s46, s41, 576")
    a("s_add_u32 s45, s45, s46")
    a(f"s_add_u32 s45, s45, {WS_Q}")
    a("v_lshlrev_b32 v8, 3, v1")
    a("v_lshlrev_b32 v9, 4, v1")
    a("s_lshl_b32 s47, s3, 10")
    a("s_waitcnt lgkmcnt(0)")
    ws_shift(a)
    srd(a, WS_, 12, WS_END)

def attention(a):
    ws = WS_
    a(f"buffer_load_dwordx4 {v(Q1,4)}, v6, {s(ws,4)}, s45 offen")
    a(f"buffer_load_dword v{QX[0]}, v5, {s(ws,4)}, s45 offen offset:32")
    a(f"s_mov_b32 s46, {WS_KMAX}")
    a(f"buffer_load_dwordx4 v[24:27], v9, {s(ws,4)}, s46 offen")
    for i in range(4):
        a(f"s_add_u32 m0, s47, {i*8192}")
        a(f"s_add_u32 s46, s47, {WS_KV + i*8192}")
        a(f"buffer_load_dwordx4 v9, {s(ws,4)}, s46 offen lds")
    srd(a, XS_, 4, S * D * 2)
    a("s_cmp_lg_u32 s41, 0")
    a("s_cbranch_scc0 L_a_nodma")
    a("s_lshl_b32 s47, s40, 10")
    for i in range(29):
        if i == 6:
            a("s_waitcnt vmcnt(3)")
            a("s_barrier")
        a(f"s_add_u32 m0, s47, {32768 + i*4096}")
        a(f"s_add_u32 s46, s47, {WS_KV + 32768 + i*4096}")
        a(f"buffer_load_dwordx4 v9, {s(ws,4)}, s46 offen lds")
    a("s_setprio 3")
    a("s_branch L_a_dmadone")
    a.label("L_a_nodma")
    a("s_setprio 2")
    a.label("L_a_dmadone")
    a(f"v_mov_b32 v{KA_}, v9")
    a(f"v_add_u32 v{KR_}, 4096, v9")
    a(f"v_mov_b32 v8, {4608 + 288}")
    a("v_cmp_gt_u32 s[50:51], 32, v1")
    a(f"v_cndmask_b32 v{KR_}, v8, v{KR_}, s[50:51]")
    a("v_and_b32 v5, 31, v1")
    sigma_v(a, 6, 5, 8, 9)
    if VZERO:
        a("v_mov_b32 v8, 0x8000")
    else:
        a("v_add_u32 v8, -20, v5")
        a("v_cmp_gt_u32 vcc, 8, v8")
        a("v_cndmask_b32 v8, 4, 0, vcc")
    a("v_cmp_lt_u32 vcc, 18, v5")
    a("v_cndmask_b32 v6, v6, v8, vcc")
    a("v_lshlrev_b32 v6, 4, v6")
    a("s_movk_i32 s46, 304")
    a(f"v_mad_u32_u24 v{VA_}, v7, s46, v6")
    a(f"v_add_u32 v{VA_}, 4608, v{VA_}")
    for r in (10, 11, 13, 14, 15, 16, 18, 19): a(f"v_mov_b32 v{r}, 0")
    for r in range(O, O + 16): a(f"v_mov_b32 v{r}, 0")
    for r in range(P + 4, P + 8): a(f"v_mov_b32 v{r}, 0")
    for r in range(VB[1] + 4, VB[1] + 8): a(f"v_mov_b32 v{r}, 0")
    stamp(a, 1)
    a("s_cmp_lg_u32 s41, 0")
    a("s_cbranch_scc1 L_a_qready")
    a(f"v_mov_b32 v8, {L_CNT}")
    a("ds_write_b32 v8, v10")
    a("s_waitcnt vmcnt(4)")
    a.label("L_a_qready")
    a(f"v_dot2_f32_bf16 v5, v{Q1}, v{Q1}, 0")
    for i in range(1, 4):
        a(f"v_dot2_f32_bf16 v5, v{Q1+i}, v{Q1+i}, v5")
    a("v_max_f32 v24, v24, v25")
    a("v_max3_f32 v24, v24, v26, v27")
    for rr in (8, 4, 2, 1):
        a(f"v_max_f32_dpp v24, v24, v24 row_ror:{rr} row_mask:0xf bank_mask:0xf")
    a("v_mov_b32 v25, v24")
    a("v_mov_b32 v6, v5")
    a("v_permlane16_swap_b32 v24, v25")
    a("v_permlane32_swap_b32 v5, v6")
    a("v_max_f32 v24, v24, v25")
    a("v_add_f32 v5, v5, v6")
    a("v_mov_b32 v25, v24")
    a(f"v_dot2_f32_bf16 v5, v{QX[0]}, v{QX[0]}, v5")
    a("v_permlane32_swap_b32 v24, v25")
    a("v_add_f32 v24, v24, v25")
    a("v_mul_f32 v5, v5, v24")
    a("v_sqrt_f32 v5, v5")
    a(f"v_mul_f32 v5, {fbits(-1.02)}, v5")
    a("v_cvt_pk_bf16_f32 v5, v5, 0")
    a(f"v_cndmask_b32 v{QX[0]}, v5, v{QX[0]}, s[50:51]")
    a(f"v_mov_b32 v{QX[1]}, v{QX[0]}")
    a("s_mov_b32 s60, 0")
    a("s_mov_b32 s48, 0")
    a("v_lshlrev_b32 v9, 4, v1")
    a("s_cmp_lg_u32 s41, 0")
    a("s_cbranch_scc1 L_a_young_pre")
    a(f"s_mov_b32 s59, {16 // TPI}")
    a("s_waitcnt vmcnt(0) lgkmcnt(0)")
    a("s_barrier")
    a.label("L_a_start")
    stamp(a, 3)
    pipe_start(a)
    a.raw(".p2align 6")
    a.label("L_a_loop")
    for t in range(TPI): tile(a, t)
    a.label("L_a_loop_end")
    step = (TPI // 4) * KV_BLK
    a(f"v_add_u32 v{KA_}, {step}, v{KA_}")
    a(f"v_add_u32 v{KR_}, {step}, v{KR_}")
    a(f"v_add_u32 v{VA_}, {step}, v{VA_}")
    a("s_add_u32 s48, s48, 1")
    a("s_cmp_eq_u32 s48, s59")
    a("s_cbranch_scc1 L_a_inter")
    a(f"s_cmp_lt_u32 s48, {64 // TPI}")
    a("s_cbranch_scc1 L_a_loop")
    mfma32(a, O, VB[1] + 4, P + 4, O)
    a.label("L_a_norm")
    stamp(a, 4); mark(a, "L")
    a("s_waitcnt lgkmcnt(0)")
    a("s_nop 12")
    a(f"v_mov_b32 v5, v{O+10}")
    a(f"v_mov_b32 v6, v{O+10}")
    a("v_permlane32_swap_b32 v5, v6")
    a(f"v_mov_b32 v7, {fbits(2.0**-40)}")
    a("v_cmp_nge_f32 vcc, v5, v7")
    a("s_nop 3")
    a("s_cmp_lg_u64 vcc, 0")
    a("s_cselect_b32 s49, 1, 0")
    a("s_andn2_b32 s49, s49, s60")
    a("s_cbranch_scc1 L_a_fallback")
    a("v_rcp_f32 v5, v5")
    a("v_bfe_u32 v6, v1, 4, 1")
    a("s_lshl_b32 s46, s40, 1")
    a("v_add_u32 v6, s46, v6")
    a("v_mul_u32_u24 v6, 608, v6")
    a("v_and_b32 v7, 15, v1")
    a("v_lshl_add_u32 v8, v7, 2, v6")
    a("v_lshl_add_u32 v6, v7, 5, v6")
    a("v_lshrrev_b32 v7, 5, v1")
    a("v_lshl_add_u32 v6, v7, 4, v6")
    a(f"v_add_u32 v6, {L_OS}, v6")
    a(f"v_add_u32 v8, {L_OS + 512}, v8")
    for i in range(10):
        a(f"v_mul_f32 v{O+i}, v{O+i}, v5")
    for i in range(5):
        a(f"v_cvt_pk_bf16_f32 v{P+i}, v{O+2*i}, v{O+2*i+1}")
    a("s_cmp_eq_u32 s41, 0")
    a("s_cbranch_scc1 L_a_poll2_ok")
    a(f"v_mov_b32 v9, {L_CNT}")
    lds_poll(a, "a_poll2", 9, 7, 8)
    a(f"ds_write_b128 v6, {v(P,4)}")
    a("s_mov_b64 exec, 0xffffffff")
    a(f"ds_write_b32 v8, v{P+4}")
    a("s_mov_b64 exec, -1")
    a("v_and_b32 v5, 7, v1")
    a("v_mul_u32_u24 v4, 608, v5")
    a("v_lshrrev_b32 v6, 4, v1")
    a("v_lshl_add_u32 v4, v6, 4, v4")
    a(f"v_add_u32 v4, {L_OS}, v4")
    a("v_lshl_add_u32 v3, v6, 3, v5")
    a("v_lshlrev_b32 v3, 4, v3")
    a("s_mul_i32 s46, s40, 1536")
    a(f"s_add_u32 s46, s46, {L_CP}")
    a("v_add_u32 v3, s46, v3")
    a("v_lshlrev_b32 v2, 4, v1")
    a("s_mul_i32 s70, s3, 165888")
    a(f"s_mul_i32 s47, s43, {SLICE}")
    a("s_add_u32 s70, s70, s47")
    a(f"s_add_u32 s70, s70, {WS_W}")
    a(f"s_mov_b32 s{WSR}, s12")
    a(f"s_and_b32 s{WSR+1}, s13, 0xffff")
    a(f"s_add_u32 s{WSR+2}, s70, 165888")
    a(f"s_mov_b32 s{WSR+3}, 0x00020000")
    a("s_mov_b32 s54, 0x00ff00ff")
    a("s_mov_b32 s55, 0x00ff00ff")
    a("s_cmp_lg_u32 s41, 0")
    a("s_cbranch_scc1 L_a_young_tail")

    WA = 16
    WB = 112
    a(f"v_mov_b32 v8, {L_CNT}")
    a("v_mov_b32 v9, 1")
    a("s_waitcnt lgkmcnt(0)")
    a("s_mov_b64 exec, 1")
    a("ds_add_u32 v8, v9")
    a("s_mov_b64 exec, -1")
    a("s_mul_i32 s61, s40, 9216")
    a(f"s_add_u32 s61, s61, {WS_WO}")
    for sx in range(4): wo0_loads(a, sx, 2)
    a("v_mul_u32_u24 v10, 1152, v5")
    a("v_lshl_add_u32 v11, v6, 3, v10")
    a("v_lshl_add_u32 v10, v6, 4, v10")
    a("s_mul_i32 s46, s42, 1152")
    a("s_mul_i32 s47, s40, 288")
    a("s_add_u32 s52, s46, s47")
    for i in range(4):
        a(f"buffer_load_dwordx4 {v(92+4*i,4)}, v10, {s(XS_,4)}, s52 offen offset:{i*64}")
    a(f"buffer_load_dwordx2 v[108:109], v11, {s(XS_,4)}, s52 offen offset:256")
    lds_poll(a, "a_poll", 8, 9, 4)
    stamp(a, 5)
    for sx in range(9):
        a(f"ds_read_b128 {v(56+4*sx,4)}, v4 offset:{sx*64}")
    a("v_mov_b32 v9, 1")
    a("s_waitcnt lgkmcnt(0)")
    a("s_mov_b64 exec, 1")
    a("ds_add_u32 v8, v9")
    a("s_mov_b64 exec, -1")
    a("s_setprio 0")
    for sx in range(9):
        a(f"s_waitcnt vmcnt({min(3, 8 - sx)*9 + (5 if sx < 4 else 0)})")
        b = WB + (sx % 4) * 36
        for t in range(9):
            mfma16(a, WA + 4*t, b + 4*t, 56 + 4*sx, None if sx == 0 else WA + 4*t)
        if sx + 4 < 9: wo0_loads(a, sx + 4, 2)
    a("s_setprio 2")
    a("s_mov_b32 s46, 0x00003f80")
    a("s_mov_b32 s47, 0x3f800000")
    for k in list(range(12, 18)) + list(range(12)):
        a(f"v_dot2_f32_bf16 v{WA+2*k}, v{92+k}, s46, v{WA+2*k}")
        a(f"v_dot2_f32_bf16 v{WA+2*k+1}, v{92+k}, s47, v{WA+2*k+1}")
    stamp(a, 23)
    a("s_mov_b64 exec, s[54:55]")
    for t in range(3):
        a(f"ds_write_b128 v3, {v(WA+24+4*t,4)} offset:{t*512}")
    a("s_mov_b64 exec, -1")
    a("s_waitcnt lgkmcnt(0)")
    a("s_mul_i32 s46, s40, 9216")
    a(f"s_add_u32 s46, s46, {WS_WO + 9*36*1024}")
    for sx in range(9):
        for t in range(6):
            if t == 4: a("s_add_u32 s46, s46, 4096")
            a(f"buffer_load_dwordx4 {v(40+(sx*6+t)*4,4)}, v2, {s(ws,4)}, s46 offen offset:{(t%4)*1024}")
        a(f"s_add_u32 s46, s46, {36*1024 - 4096}")
    a("v_lshlrev_b32 v8, 3, v1")
    a("s_lshl_b32 s46, s43, 9")
    a(f"s_add_u32 s46, s46, {WS_FPACK}")
    flag_poll(a, "a_pkpoll", 8, 10, 46, 2, sleep=8)
    stamp(a, 6)
    a("s_barrier")
    stamp(a, 7)
    a(f"ds_read_b128 v[8:11], v4 offset:0")
    for sx in range(9):
        if sx + 1 < 9:
            a(f"ds_read_b128 {v(8+((sx+1)&1)*4,4)}, v4 offset:{(sx+1)*64}")
        a(f"s_waitcnt lgkmcnt({1 if sx+1 < 9 else 0})")
        for t in range(6):
            mfma16(a, WA + 4*t, 40 + (sx*6+t)*4, 8 + (sx&1)*4, WA + 4*t)
    ln_tail(a, WA, 6, 0)
    a("s_branch L_m_roleB")

    a.label("L_a_young_tail")
    a("s_waitcnt vmcnt(0) lgkmcnt(0)")
    stamp(a, 6)
    a("s_barrier")
    stamp(a, 7)
    for t in range(3):
        a(f"ds_read_b128 {v(WA+4*t,4)}, v3 offset:{t*512}")
    for sx in range(9):
        a(f"ds_read_b128 {v(112+4*sx,4)}, v4 offset:{sx*64}")
    for sx in range(9):
        a(f"s_waitcnt lgkmcnt({8-sx})")
        for t in range(3):
            mfma16(a, WA + 4*t, 148 + (sx*3+t)*4, 112 + 4*sx, WA + 4*t)
    ln_tail(a, WA, 3, 6)
    for k in range(3): a_loads(a, k)
    a("s_waitcnt vmcnt(9)")
    flag_store(a, WS_FY, 8)
    stamp(a, 26); stamp_rt(a, 40)
    for k in range(3, RDS - 1): a_loads(a, k)
    a("s_branch L_m_roleA")

    a.label("L_a_inter")
    a("s_barrier")
    a("s_branch L_a_loop")

    a.label("L_a_young_pre")
    a("s_lshl_b32 s58, s56, 2")
    a("s_add_u32 s58, s58, s40")
    a("s_min_u32 s59, s58, 119")
    sja, selA, selB = w_pack_setup(a, 59, 43, 16, 20, 24, 72, 61, 62, 63, 1, 5, 6, 7)
    a("s_mov_b32 s59, 99")
    a("s_mov_b32 s52, s63")
    a("s_waitcnt vmcnt(8)")
    w_pack_loads(a, 2, 24, 61, 62, sja, 5, 6, 112)
    a("s_waitcnt vmcnt(32)")
    stamp(a, 2)
    a("s_barrier")
    a("s_waitcnt vmcnt(26)")
    w_pack_loads(a, 2, 24, 61, 62, sja, 5, 6, 144)
    if TOUCH:
        a("s_mov_b32 s46, 0x24000")
        a("s_lshl_b32 s47, s40, 6")
        a("v_add_u32 v7, s47, v1")
        a("v_mul_lo_u32 v7, v7, s46")
        a(f"buffer_load_dword v252, v7, {s(ws,4)}, 0 offen")
        srd(a, 28, 6, S * D * 2)
        a("v_lshlrev_b32 v7, 16, v1")
        a("buffer_load_dword v253, v7, s[28:31], 0 offen")
        a("v_mov_b32 v7, 0")
        a("global_load_dword v254, v7, s[18:19]")
        a("global_load_dword v255, v7, s[22:23]")
    stamp(a, 20)
    pipe_start(a)
    for t in range(TPI):
        tile(a, t)
        if t == PK_T[0]:
            for st in range(4):
                a(f"s_waitcnt vmcnt({(3-st)*16 + st*3 + (4 if TOUCH else 0)})")
                w_pack_stores(a, 112 + st*16, 176 + (st & 1)*12, selA, selB, ws, 9, 63)
            for i in range(4): a(f"v_mov_b32 v{200+i}, -1")
            a("s_mul_i32 s46, s57, 73728")
            a("s_mul_i32 s47, s40, 18432")
            a("s_add_u32 s46, s46, s47")
            if SENT1:
                a(f"s_add_u32 s46, s46, {WS_P + 3072}")
                for i in range(12):
                    if i and i % 3 == 0: a(f"s_add_u32 s46, s46, {6144 if i == 6 else 3072}")
                    a(f"buffer_store_dwordx4 v[200:203], v9, {s(ws,4)}, s46 offen offset:{(i%3)*1024} sc1")
            else:
                a(f"s_add_u32 s46, s46, {WS_P + 6144}")
                for i in range(6):
                    if i == 3: a("s_add_u32 s46, s46, 9216")
                    a(f"buffer_store_dwordx4 v[200:203], v9, {s(ws,4)}, s46 offen offset:{(i%3)*1024} sc1")
            stamp(a, 21)
        if t == PK_T[1]:
            a("s_waitcnt vmcnt(0)")
            a("v_mov_b32 v5, 0")
            a("v_mov_b32 v6, 1")
            a("s_lshl_b32 s46, s43, 7")
            a("s_add_u32 s46, s46, s58")
            a("s_lshl_b32 s46, s46, 2")
            a(f"s_add_u32 s46, s46, {WS_FPACK}")
            a("s_mov_b64 exec, 1")
            a(f"buffer_store_dword v6, v5, {s(ws,4)}, s46 offen sc1")
            a("s_mov_b64 exec, -1")
            for i in range(12):
                a(f"buffer_load_dwordx4 v[112:115], v9, {s(ws,4)}, s52 offen offset:{(i%4)*1024} sc1")
                if i % 4 == 3: a("s_add_u32 s52, s52, 4096")
            a("s_mul_i32 s46, s40, 9216")
            a(f"s_add_u32 s46, s46, {WS_WO + (9*36 + 6)*1024}")
            for sx in range(9):
                for tt in range(3):
                    a(f"buffer_load_dwordx4 {v(148 + (sx*3+tt)*4, 4)}, v9, {s(ws,4)}, s46 offen offset:{tt*1024}")
                a(f"s_add_u32 s46, s46, {36*1024}")
            stamp(a, 22)
            a("s_setprio 1")
    a("s_branch L_a_loop_end")
    fallback(a)

def ln_tail(a, WA, nt, t0):
    ws = WS_
    n = nt * 4
    T = 44 if nt == 6 else 148
    stamp(a, 8)
    a(f"v_add_f32 v8, v{WA}, v{WA+1}")
    a(f"v_mul_f32 v9, v{WA}, v{WA}")
    a(f"v_fmac_f32 v9, v{WA+1}, v{WA+1}")
    for i in range(2, n):
        a(f"v_add_f32 v8, v8, v{WA+i}")
        a(f"v_fmac_f32 v9, v{WA+i}, v{WA+i}")
    for sw in ("v_permlane32_swap_b32", "v_permlane16_swap_b32"):
        a("v_mov_b32 v10, v8")
        a("v_mov_b32 v11, v9")
        a(f"{sw} v8, v10")
        a(f"{sw} v9, v11")
        a("v_add_f32 v8, v8, v10")
        a("v_add_f32 v9, v9, v11")
    a("v_lshlrev_b32 v10, 6, v5")
    a(f"v_add_u32 v10, {L_ST}, v10")
    a("s_lshl_b32 s46, s3, 3")
    a("v_add_u32 v11, s46, v10")
    a("s_mov_b64 exec, 0xff")
    a("ds_write_b64 v11, v[8:9]")
    a("s_mov_b64 exec, -1")
    for k in range(n // 2):
        a(f"v_cvt_pk_bf16_f32 v{T+k}, v{WA+2*k}, v{WA+2*k+1}")
    a("s_mul_i32 s46, s40, 18")
    a(f"s_add_u32 s46, s46, {2*t0}")
    a("v_add_u32 v12, s46, v6")
    a("v_lshlrev_b32 v13, 4, v5")
    a("v_lshl_add_u32 v14, v12, 7, v13")
    a(f"v_add_u32 v14, {L_HH}, v14")
    a("s_waitcnt lgkmcnt(0)")
    a("s_barrier")
    stamp(a, 9); stamp_rt(a, 47); mark(a, "D")
    U = T + 12
    for i in range(4):
        a(f"ds_read_b128 {v(U+4*i,4)}, v10 offset:{i*16}")
    a("v_lshrrev_b32 v15, 2, v12")
    a("v_lshl_add_u32 v15, v15, 12, v13")
    a("v_and_b32 v12, 3, v12")
    a("v_lshl_add_u32 v12, v12, 8, v15")
    if nt == 3:
        a("v_lshrrev_b32 v15, 1, v6")
        a("s_add_u32 s46, s46, 4")
        a("v_add_u32 v15, s46, v15")
        a("v_and_b32 v7, 1, v6")
        a("v_lshl_add_u32 v13, v7, 3, v13")
        a("v_lshl_add_u32 v7, v15, 7, v13")
        a(f"v_add_u32 v7, {L_HH}, v7")
        a("v_lshrrev_b32 v8, 2, v15")
        a("v_lshl_add_u32 v13, v8, 12, v13")
        a("v_and_b32 v15, 3, v15")
        a("v_lshl_add_u32 v13, v15, 8, v13")
    a("s_mov_b64 exec, s[54:55]")
    for i in range(nt // 2):
        a(f"ds_write_b128 v14, {v(T+4*i,4)} offset:{i*512}")
    if nt == 3: a(f"ds_write_b64 v7, {v(T+4,2)}")
    a("s_mov_b64 exec, -1")
    a("s_mul_i32 s46, s56, 73728")
    a("s_lshr_b32 s47, s43, 1")
    a("s_lshl_b32 s47, s47, 10")
    a("s_add_u32 s46, s46, s47")
    a("s_and_b32 s47, s43, 1")
    a("s_lshl_b32 s47, s47, 7")
    a("s_add_u32 s46, s46, s47")
    a(f"s_add_u32 s46, s46, {WS_Y}")
    a(f"s_waitcnt lgkmcnt({nt//2 + (nt & 1)})")
    for i in range(1, 8):
        a(f"v_add_f32 v{U}, v{U}, v{U+2*i}")
        a(f"v_add_f32 v{U+1}, v{U+1}, v{U+2*i+1}")
    a(f"v_mul_f32 v8, {fbits(1.0/D)}, v{U}")
    a(f"v_mul_f32 v9, {fbits(1.0/D)}, v{U+1}")
    a("v_fma_f32 v9, -v8, v8, v9")
    a("v_max_f32 v9, 0, v9")
    a(f"v_add_f32 v10, {fbits(1e-5)}, v9")
    a("v_rcp_f32 v11, v10")
    a("v_rsq_f32 v10, v10")
    a(f"v_fmaak_f32 v11, v9, v11, {fbits(1e-5)}")
    a("v_rsq_f32 v11, v11")
    a("v_mul_f32 v10, v10, v11")
    a("v_mul_f32 v8, v8, v10")
    a("s_mov_b64 exec, s[54:55]")
    for i in range(nt // 2):
        for k in range(8):
            a(f"v_fma_f32 v{WA+8*i+k}, v{WA+8*i+k}, v10, -v8")
        for k in range(4):
            a(f"v_cvt_pk_bf16_f32 v{U+4*i+k}, v{WA+8*i+2*k}, v{WA+8*i+2*k+1}")
        a(f"buffer_store_dwordx4 {v(U+4*i,4)}, v12, {s(ws,4)}, s46 offen sc1")
        if i + 1 < nt // 2: a("v_add_u32 v12, 4096, v12")
    if nt == 3:
        for k in range(4):
            a(f"v_fma_f32 v{WA+8+k}, v{WA+8+k}, v10, -v8")
        for k in range(2):
            a(f"v_cvt_pk_bf16_f32 v{U+4+k}, v{WA+8+2*k}, v{WA+8+2*k+1}")
        a(f"buffer_store_dwordx2 {v(U+4,2)}, v13, {s(ws,4)}, s46 offen sc1")
    a("s_mov_b64 exec, -1")

def fallback(a):
    a.label("L_a_fallback")
    a("s_mov_b32 s60, 1")
    tot = 16 * KV_BLK
    a(f"v_cndmask_b32 v{QX[0]}, 0, v{QX[0]}, s[50:51]")
    a(f"v_mov_b32 v{QX[1]}, v{QX[0]}")
    a("v_mov_b32 v5, 0xff800000")
    for ps in range(2):
        for r in (KA_, KR_, VA_):
            a(f"v_subrev_u32 v{r}, {tot}, v{r}")
        a("s_mov_b32 s48, 0")
        a.label(f"L_a_fb{ps}")
        a(f"ds_read_b128 {v(KRB[0],4)}, v{KR_}")
        for t in range(4):
            a(f"ds_read_b128 {v(KB[0],4)}, v{KA_} offset:{koff(t)}")
            if ps == 1:
                a(f"ds_read_b128 {v(VB[0],4)}, v{VA_} offset:{voff(t,0)}")
                a(f"ds_read_b128 {v(VB[0]+4,4)}, v{VA_} offset:{voff(t,1)}")
            a("s_waitcnt lgkmcnt(0)")
            mfma32(a, SB[0], KB[0], Q1, None)
            mfma32(a, SB[0], KRB[0], Q2POS[t], SB[0])
            S0 = SB[0]
            if ps == 0:
                for i in range(8):
                    a(f"v_max3_f32 v5, v{S0+2*i}, v{S0+2*i+1}, v5")
            else:
                for i in range(16): a(f"v_sub_f32 v{S0+i}, v{S0+i}, v5")
                for i in range(16): a(f"v_exp_f32 v{S0+i}, v{S0+i}")
                for i in range(8): a(f"v_cvt_pk_bf16_f32 v{P+i}, v{S0+2*i}, v{S0+2*i+1}")
                mfma32(a, O, VB[0], P, O)
                mfma32(a, O, VB[0] + 4, P + 4, O)
                a("s_nop 7")
        for r in (KA_, KR_, VA_):
            a(f"v_add_u32 v{r}, {KV_BLK}, v{r}")
        a("s_add_u32 s48, s48, 1")
        a("s_cmp_lt_u32 s48, 16")
        a(f"s_cbranch_scc1 L_a_fb{ps}")
        if ps == 0:
            a("v_mov_b32 v6, v5")
            a("v_permlane32_swap_b32 v5, v6")
            a("v_max_f32 v5, v5, v6")
            for r in range(O, O + 16): a(f"v_mov_b32 v{r}, 0")
    a("s_branch L_a_norm")

def gelu(a, regs, tmp, vc1):
    if NOGELU: return
    for k in range(0, len(regs), 8):
        g = regs[k:k+8:2]
        T = [tmp + 2*i for i in range(len(g))]
        if PKGELU:
            for x, t in zip(g, T): a(f"v_pk_mul_f32 {v(t,2)}, {v(x,2)}, {v(x,2)}")
            for x, t in zip(g, T): a(f"v_pk_fma_f32 {v(t,2)}, {v(t,2)}, {v(vc1,2)}, s[78:79]")
            for x, t in zip(g, T): a(f"v_pk_mul_f32 {v(t,2)}, {v(x,2)}, {v(t,2)}")
            for x, t in zip(g, T): a(f"v_exp_f32 v{t}, v{t}"); a(f"v_exp_f32 v{t+1}, v{t+1}")
            for x, t in zip(g, T): a(f"v_pk_add_f32 {v(t,2)}, {v(t,2)}, 1.0 op_sel_hi:[1,0]")
            for x, t in zip(g, T): a(f"v_rcp_f32 v{t}, v{t}"); a(f"v_rcp_f32 v{t+1}, v{t+1}")
            for x, t in zip(g, T): a(f"v_pk_mul_f32 {v(x,2)}, {v(x,2)}, {v(t,2)}")
        else:
            g = regs[k:k+8]; T = [tmp + i for i in range(len(g))]
            for x, t in zip(g, T): a(f"v_mul_f32 v{t}, v{x}, v{x}")
            for x, t in zip(g, T): a(f"v_fmaak_f32 v{t}, v{vc1}, v{t}, {fbits(C0)}")
            for x, t in zip(g, T): a(f"v_mul_f32 v{t}, v{x}, v{t}")
            for x, t in zip(g, T): a(f"v_exp_f32 v{t}, v{t}")
            for x, t in zip(g, T): a(f"v_add_f32 v{t}, 1.0, v{t}")
            for x, t in zip(g, T): a(f"v_rcp_f32 v{t}, v{t}")
            for x, t in zip(g, T): a(f"v_mul_f32 v{x}, v{x}, v{t}")

def acc(t, q): return ACC + (t * 4 + q) * 4

def mlp_setup(a):
    a(f"v_add_u32 v3, {L_Y}, v2")
    a(f"v_add_u32 v4, {L_Y + 36864}, v2")
    a("v_and_b32 v9, 15, v1")
    a("v_lshlrev_b32 v9, 4, v9")
    a(f"v_mov_b32 v{GT+22}, {fbits(C1)}")
    a(f"v_mov_b32 v{GT+23}, {fbits(C1)}")
    a(f"s_mov_b32 s78, {fbits(C0)}")
    a(f"s_mov_b32 s79, {fbits(C0)}")
    a("v_bfe_u32 v14, v1, 3, 1")
    a("s_mov_b32 s46, 73728")
    a("v_mul_lo_u32 v14, v14, s46")
    a("v_lshl_add_u32 v14, v5, 4, v14")
    a("v_and_b32 v15, 1, v6")
    a("s_mov_b32 s46, 147456")
    a("v_mul_lo_u32 v15, v15, s46")
    a("v_add_u32 v15, v15, v14")
    a("v_lshrrev_b32 v7, 1, v6")
    a("v_lshl_add_u32 v15, v7, 7, v15")
    a("v_lshl_add_u32 v14, v6, 7, v14")
    a("s_lshl_b32 s71, s56, 6")
    a("s_add_u32 s71, s71, s43")
    a("s_mul_i32 s71, s71, 9216")
    a(f"s_add_u32 s71, s71, {WS_P}")

def bias_init(a):
    a("s_mul_i32 s46, s68, 192")
    a(f"s_add_u32 s46, s46, {L_B1}")
    a("v_lshl_add_u32 v11, v6, 5, s46")
    a("v_lshl_add_u32 v12, v6, 4, s46")
    a(f"ds_read_b128 {v(CI,4)}, v11 offset:{L_B1D - L_B1}")
    a(f"ds_read_b128 {v(CI+4,4)}, v11 offset:{L_B1D - L_B1 + 16}")
    a(f"ds_read_b128 {v(CI+8,4)}, v12 offset:128")

def to_gemm2(a):
    for r in (3, 4):
        a(f"v_add_u32 v{r}, {L_H - L_Y}, v{r}")
    for i in range(12): a(f"v_mov_b32 v{CI+i}, 0")

def call(a, name):
    a(f"s_call_b64 s[74:75], {name}")

def mlp(a):
    ws = WS_
    a.label("L_m_roleA")
    mlp_setup(a)
    a("s_setprio 3")
    a("s_barrier")
    mark(a, "G1")
    stamp(a, 10); stamp_rt(a, 48)
    a("s_mov_b32 s68, s40")
    bias_init(a)
    a("s_mov_b32 s69, 3")
    call(a, "L_m_pass")
    stamp(a, 12)
    a("s_setprio 1")
    call(a, "L_m_gelu")
    stamp(a, 13)
    a("s_setprio 1")
    a("s_add_u32 s68, s40, 8")
    bias_init(a)
    a("s_mov_b32 s69, 0")
    call(a, "L_m_pass")
    a("s_setprio 0")
    stamp(a, 14)
    a("s_barrier")
    stamp(a, 11)
    call(a, "L_m_gelu")
    stamp(a, 15)
    a("s_waitcnt lgkmcnt(0)")
    a("s_barrier")
    a("s_setprio 2")
    to_gemm2(a)
    a("s_mov_b32 s69, 8")
    call(a, "L_m_pass")
    a("s_setprio 0")
    a("s_add_u32 s68, s40, 4")
    stamp(a, 16); mark(a, "M")
    reduce_setup(a)
    if EARLY0:
        call(a, "L_m_cvt")
        a("s_cmp_eq_u32 s40, 3")
        a("s_cbranch_scc1 L_r_no0")
        flag_poll(a, "r_poll0", 8, 13, 53, 1, sleep=4)
        call(a, "L_m_st")
        a("s_mov_b32 s48, s40")
        call(a, "L_r_item")
        a("s_branch L_r_did0")
        a.label("L_r_no0")
        call(a, "L_m_st")
        a("s_waitcnt vmcnt(0)")
        a.label("L_r_did0")
        stamp(a, 25)
        a("s_cmp_eq_u32 s40, 0")
        a("s_cbranch_scc1 L_m_done")
        a("s_add_u32 s48, s40, 2")
        a("s_mov_b32 s73, 1")
        call(a, "L_r_item")
        a("s_branch L_m_done")
    else:
        call(a, "L_m_cvt")
        call(a, "L_m_st")
        a("s_barrier")
        stamp(a, 24)
        a("s_waitcnt vmcnt(0)")
        flag_store(a, WS_FP1, 11)
        stamp(a, 25)
        a("s_cmp_eq_u32 s40, 3")
        a("s_cbranch_scc1 L_r_st1")
        flag_poll(a, "r_poll0", 8, 13, 53, 1, sleep=4)
        a("s_mov_b32 s48, s40")
        call(a, "L_r_item")
        a("s_cmp_eq_u32 s40, 0")
        a("s_cbranch_scc1 L_m_done")
    a.label("L_r_st1")
    a("s_add_u32 s48, s40, 2")
    a("s_add_u32 s53, s53, 16")
    flag_poll(a, "r_poll1", 8, 13, 53, 1, sleep=4)
    stamp(a, 17)
    call(a, "L_r_item")
    a("s_branch L_m_done")
    a.label("L_m_roleB")
    for k in range(3): a_loads(a, k)
    a("s_waitcnt vmcnt(9)")
    flag_store(a, WS_FY, 8)
    stamp(a, 26); stamp_rt(a, 40)
    a("s_lshl_b32 s46, s56, 8")
    a(f"s_add_u32 s53, s46, {WS_FY}")
    srd(a, XS_, 18, F * 2)
    a("s_lshl_b32 s46, s40, 6")
    a("v_add_u32 v8, s46, v1")
    a("v_lshlrev_b32 v11, 2, v8")
    a("s_mul_i32 s46, s43, 1152")
    a(f"buffer_load_dword v{GT}, v11, {s(XS_,4)}, s46 offen")
    a(f"buffer_load_dword v{GT+1}, v11, {s(XS_,4)}, s46 offen offset:1024")
    mlp_setup(a)
    a("v_lshlrev_b32 v11, 3, v8")
    a(f"v_add_u32 v11, {L_B1}, v11")
    a("s_waitcnt vmcnt(0)")
    a(f"v_lshlrev_b32 v{GT+2}, 16, v{GT}")
    a(f"v_and_b32 v{GT+3}, 0xffff0000, v{GT}")
    a(f"v_lshlrev_b32 v{GT+4}, 16, v{GT+1}")
    a(f"v_and_b32 v{GT+5}, 0xffff0000, v{GT+1}")
    a(f"ds_write_b64 v11, {v(GT+2,2)}")
    a("v_lshrrev_b32 v12, 2, v8")
    a("v_lshlrev_b32 v12, 5, v12")
    a("v_and_b32 v13, 3, v8")
    a("v_lshl_add_u32 v12, v13, 2, v12")
    a(f"v_add_u32 v12, {L_B1D}, v12")
    a(f"ds_write2_b32 v12, v{GT+2}, v{GT+3} offset0:0 offset1:4")
    a("v_add_u32 v12, 2048, v12")
    a("s_cmp_lg_u32 s40, 0")
    a("s_cbranch_scc1 L_m_nob2")
    a("s_mov_b64 exec, 0xffffffff")
    a(f"ds_write_b64 v11, {v(GT+4,2)} offset:2048")
    a(f"ds_write2_b32 v12, v{GT+4}, v{GT+5} offset0:0 offset1:4")
    a("s_mov_b64 exec, -1")
    a.label("L_m_nob2")
    for k in range(3, RDS - 1): a_loads(a, k)
    a("v_lshlrev_b32 v8, 2, v1")
    flag_poll(a, "m_ypoll", 8, GT, 53, 1)
    stamp_rt(a, 43)
    stamp(a, 10)
    a("s_mul_i32 s46, s56, 73728")
    a("s_lshl_b32 s47, s40, 10")
    a("s_add_u32 s46, s46, s47")
    a(f"s_add_u32 s46, s46, {WS_Y}")
    for st in range(18):
        a(f"s_add_u32 m0, s47, {L_Y + st*4096}")
        if st: a("s_add_u32 s46, s46, 4096")
        a(f"buffer_load_dwordx4 v2, {s(ws,4)}, s46 offen sc1 {YMOD} lds")
    a("s_waitcnt vmcnt(12) lgkmcnt(0)")
    a("s_barrier")
    mark(a, "G1")
    if BLOAD:
        a("s_waitcnt vmcnt(6)")
        a("s_barrier")
        a("s_waitcnt vmcnt(0)")
        a("s_barrier")
    a("s_setprio 2")
    a("s_add_u32 s68, s40, 4")
    bias_init(a)
    a(f"s_mov_b32 s69, {0 if BLOAD else 3}")
    call(a, "L_m_pass")
    stamp(a, 12)
    a("s_setprio 0")
    call(a, "L_m_gelu")
    stamp(a, 13)
    to_gemm2(a)
    a("s_setprio 3")
    a("s_waitcnt lgkmcnt(0)")
    a("s_barrier")
    stamp(a, 11)
    a("s_mov_b32 s69, 2")
    call(a, "L_m_pass")
    a("s_setprio 0")
    a("s_mov_b32 s68, s40")
    stamp(a, 15)
    call(a, "L_m_cvt")
    call(a, "L_m_st")
    reduce_setup(a)
    a("s_waitcnt vmcnt(0)")
    flag_store(a, WS_FP1, 11)
    stamp(a, 25)
    a("s_setprio 1")
    a(f"s_mov_b32 s69, {8 if EARLY0 else 10}")
    call(a, "L_m_pass")
    a("s_setprio 3")
    a("s_add_u32 s68, s40, 8")
    stamp(a, 16); stamp_rt(a, 46); mark(a, "M")
    call(a, "L_m_cvt")
    call(a, "L_m_st")
    a("s_cmp_eq_u32 s40, 3")
    a("s_cbranch_scc1 L_m_done")
    a("s_add_u32 s48, s40, 6")
    a("s_mov_b32 s73, 1")
    a("s_waitcnt vmcnt(0)")
    stamp_rt(a, 42)
    call(a, "L_r_item")
    a.label("L_m_done")

def subroutines(a):
    ws = WS_
    a.raw(".p2align 6")
    a.label("L_m_pass")
    def b_read(ks, a=a):
        b = BR + (ks % 3) * 16
        for q in range(4):
            a(f"ds_read_b128 {v(b+4*q,4)}, v{3 + ks // 9} offset:{(ks % 9)*4096 + q*1024}")
    def step(ks, loads):
        left = 3*(RDS-2) if loads else 3 * (17 - ks)
        a(f"s_waitcnt vmcnt({left}) lgkmcnt({4 if ks < 17 else 0})")
        b = BR + (ks % 3) * 16
        A = AR + 12 * (ks % RDS)
        R = Lst(); L = Lst()
        if ks + 2 < 18: b_read(ks + 2, R)
        if loads: a_loads(L, (ks - 1) % RDS)
        fill = {}
        for i, x in enumerate(R): fill[(0, 2, 4, 6)[i]] = x
        for i, x in enumerate(L): fill[(1, 5, 8, 10)[i]] = x
        n = 0
        for t in range(3):
            for q in range(4):
                mfma16(a, acc(t, q), A + 4*t, b + 4*q, CI + 4*t if ks == 0 else acc(t, q))
                if n in fill: a(fill[n])
                n += 1
    for ks in range(2): b_read(ks)
    for ks in range(18):
        if ks in (4, 10):
            a(f"s_bitcmp1_b32 s69, {0 if ks == 4 else 1}")
            a(f"s_cbranch_scc0 L_m_nb{ks}")
            if ks == 4: a("s_waitcnt vmcnt(18)")
            a("s_barrier")
            a.label(f"L_m_nb{ks}")
            if ks == 10:
                a("s_bitcmp1_b32 s69, 3")
                a("s_cbranch_scc1 L_m_tail")
        step(ks, True)
    a("s_nop 7")
    a("s_setpc_b64 s[74:75]")
    a.label("L_m_tail")
    for ks in range(10, 18): step(ks, False)
    a("s_nop 7")
    a("s_setpc_b64 s[74:75]")
    a.label("L_m_gelu")
    a("s_mul_i32 s46, s68, 6")
    a("v_add_u32 v11, s46, v6")
    a("v_lshrrev_b32 v12, 2, v11")
    a("v_lshl_add_u32 v12, v12, 12, v9")
    a("v_and_b32 v11, 3, v11")
    a("v_lshl_add_u32 v11, v11, 8, v12")
    a(f"v_add_u32 v11, {L_H}, v11")
    a("s_add_u32 s46, s46, 4")
    a("v_add_u32 v12, s46, v7")
    a("v_lshrrev_b32 v13, 2, v12")
    a("v_lshl_add_u32 v13, v13, 12, v9")
    a("v_and_b32 v12, 3, v12")
    a("v_lshl_add_u32 v12, v12, 8, v13")
    a("v_and_b32 v13, 1, v6")
    a("v_lshl_add_u32 v12, v13, 3, v12")
    a(f"v_add_u32 v12, {L_H}, v12")
    for qq in range(2):
        for t in range(3):
            gelu(a, list(range(acc(t, 2*qq), acc(t, 2*qq) + 8)), GT, GT + 22)
        for q in (2*qq, 2*qq + 1):
            o = GT + 8 + (q & 1) * 6
            for r in range(4):
                a(f"v_cvt_pk_bf16_f32 v{o+r}, v{acc(0,q)+r}, v{acc(1,q)+r}")
            a(f"v_cvt_pk_bf16_f32 v{o+4}, v{acc(2,q)}, v{acc(2,q)+1}")
            a(f"v_cvt_pk_bf16_f32 v{o+5}, v{acc(2,q)+2}, v{acc(2,q)+3}")
            a(f"ds_write_b128 v11, {v(o,4)} offset:{q*1024}")
            a(f"ds_write_b64 v12, {v(o+4,2)} offset:{q*1024}")
    a("s_setpc_b64 s[74:75]")
    a.label("L_m_cvt")
    for q in range(4):
        o = GT + q * 4
        for r in range(4):
            a(f"v_cvt_pk_bf16_f32 v{o+r}, v{acc(0,q)+r}, v{acc(1,q)+r}")
        o2 = GT + 16 + (q >> 1) * 4 + (q & 1) * 2
        a(f"v_cvt_pk_bf16_f32 v{o2}, v{acc(2,q)}, v{acc(2,q)+1}")
        a(f"v_cvt_pk_bf16_f32 v{o2+1}, v{acc(2,q)+2}, v{acc(2,q)+3}")
    for b in (GT + 16, GT + 20):
        a(f"v_permlane16_swap_b32 v{b}, v{b+2}")
        a(f"v_permlane16_swap_b32 v{b+1}, v{b+3}")
    a("s_setpc_b64 s[74:75]")
    a.label("L_m_st")
    a("s_mul_i32 s46, s68, 768")
    a("s_add_u32 s46, s46, s71")
    for q in range(4):
        a(f"s_add_u32 s47, s46, {q*147456}")
        a(f"buffer_store_dwordx4 {v(GT+4*q,4)}, v14, {s(ws,4)}, s47 offen sc1")
        if not q & 1:
            a(f"buffer_store_dwordx4 {v(GT+16+(q>>1)*4,4)}, v15, {s(ws,4)}, s47 offen offset:512 sc1")
    a("s_nop 1")
    a("s_setpc_b64 s[74:75]")

def reduce_setup(a):
    srd(a, XS_, 22, D * 2)
    srd(a, 24, 6, S * D * 2)
    a("s_mov_b32 s76, 0xffff0000")
    a("s_lshl_b32 s46, s56, 8")
    a(f"s_add_u32 s53, s46, {WS_FP1}")
    a("v_lshlrev_b32 v8, 2, v1")
    a("v_and_b32 v8, 0xec, v8")
    a("s_mov_b32 s73, 0")

def reduce_item(a):
    ws = WS_
    a.label("L_r_item")
    R = ACC; Z = BR
    a("v_lshrrev_b32 v11, 3, v1")
    a("v_lshlrev_b32 v11, 4, v11")
    a("s_lshl_b32 s45, s48, 7")
    a(f"buffer_load_dwordx4 {v(R+32,4)}, v11, {s(XS_,4)}, s45 offen")
    a("s_mul_i32 s72, s57, 73728")
    a("s_lshl_b32 s47, s48, 10")
    a("s_add_u32 s72, s72, s47")
    a(f"s_add_u32 s72, s72, {WS_P}")
    a(f"s_add_u32 s47, s47, {L_HH}")
    a("v_add_u32 v12, s47, v2")
    a(f"ds_read_b128 {v(R+36,4)}, v12")
    a("s_mov_b32 s62, 0xff")
    a(f"s_mov_b32 s49, {POLL_MAX}")
    a.label("L_r_again")
    for i in range(8):
        a(f"s_bitcmp1_b32 s62, {i}")
        a(f"s_cbranch_scc0 L_r_sk{i}")
        a(f"s_add_u32 s46, s72, {i*9216}")
        a(f"buffer_load_dwordx4 {v(R+4*i,4)}, v2, {s(ws,4)}, s46 offen sc1")
        a.label(f"L_r_sk{i}")
    a("s_cmp_eq_u32 s73, 0")
    a("s_cbranch_scc1 L_r_have")
    a("s_waitcnt vmcnt(0)")
    a("s_mov_b32 s62, 0")
    for i in range(8):
        a(f"v_max3_u32 v13, v{R+4*i}, v{R+4*i+1}, v{R+4*i+2}")
        a(f"v_max_u32 v13, v13, v{R+4*i+3}")
        a("v_cmp_eq_u32 vcc, -1, v13")
        a("s_nop 1")
        a("s_cmp_lg_u64 vcc, 0")
        a(f"s_cselect_b32 s46, {1 << i}, 0")
        a("s_or_b32 s62, s62, s46")
    a("s_cbranch_scc0 L_r_have")
    a(f"s_sleep {RSLEEP}")
    a("s_sub_u32 s49, s49, 1")
    a("s_cbranch_scc0 L_r_again")
    a.label("L_r_have")
    stamp_rt(a, 45)
    a("v_mad_u32_u24 v11, v5, s44, v11")
    a("s_mul_i32 s46, s57, 9216")
    a("s_add_u32 s46, s46, s45")
    a("s_waitcnt lgkmcnt(0)")
    for r in range(4):
        a(f"v_lshlrev_b32 v{Z+2*r}, 16, v{R+36+r}")
        a(f"v_and_b32 v{Z+1+2*r}, s76, v{R+36+r}")
    for k, i in enumerate([8] + list(range(8))):
        a(f"s_waitcnt vmcnt({8-k})")
        for r in range(4):
            a(f"v_lshlrev_b32 v{Z+12}, 16, v{R+4*i+r}")
            a(f"v_and_b32 v{Z+13}, s76, v{R+4*i+r}")
            a(f"v_add_f32 v{Z+2*r}, v{Z+2*r}, v{Z+12}")
            a(f"v_add_f32 v{Z+1+2*r}, v{Z+1+2*r}, v{Z+13}")
    for r in range(4):
        a(f"v_cvt_pk_bf16_f32 v{Z+8+r}, v{Z+2*r}, v{Z+1+2*r}")
    a(f"buffer_store_dwordx4 {v(Z+8,4)}, v11, s[24:27], s46 offen {OUTMOD}")
    a("s_nop 1")
    a("s_setpc_b64 s[74:75]")

def k_main(name):
    a = Asm()
    kernel_head(a, name)
    a("s_cmp_ge_u32 s2, 256")
    a("s_cbranch_scc1 L_end")
    stamp_first(a)
    mark(a, "start")
    prologue(a)
    stamp_init(a, 0)
    attention(a)
    mlp(a)
    stamp_dump(a, 2)
    diag_end(a)
    a.label("L_end")
    a("s_endpgm")
    subroutines(a)
    reduce_item(a)
    return a.finish(), descriptor(name, 256, 80)
```

```python
import os
from asmlib import *
from layout import *

def srd(a, d, base, nbytes):
    a(f"s_mov_b32 s{d}, s{base}")
    a(f"s_and_b32 s{d+1}, s{base+1}, 0xffff")
    a(f"s_mov_b32 s{d+2}, {nbytes}")
    a(f"s_mov_b32 s{d+3}, 0x00020000")

def sigma_v(a, dst, src, t1, t2):
    a(f"v_and_b32 v{t1}, 4, v{src}")
    a(f"v_and_b32 v{t2}, 8, v{src}")
    a(f"v_and_b32 v{dst}, 0x13, v{src}")
    a(f"v_lshl_or_b32 v{dst}, v{t1}, 1, v{dst}")
    a(f"v_lshrrev_b32 v{t2}, 1, v{t2}")
    a(f"v_or_b32 v{dst}, v{dst}, v{t2}")

def sdiv(a, q, r, x, c, t):
    magic = -(-(1 << 32) // c)
    a(f"s_mov_b32 s{t}, {magic}")
    a(f"s_mul_hi_u32 s{q}, s{x}, s{t}")
    a(f"s_mul_i32 s{t}, s{q}, {c}")
    a(f"s_sub_u32 s{r}, s{x}, s{t}")

def kernel_head(a, name):
    a.raw(".p2align 8")
    a.raw(f".globl {name}")
    a.raw(f".type {name},@function")
    a.label(name)

def descriptor(name, nv, ns=102):
    acc = (min(nv, 256) + 3) // 4 * 4
    return f""".p2align 6
.amdhsa_kernel {name}
  .amdhsa_next_free_vgpr {nv}
  .amdhsa_next_free_sgpr {102 if os.environ.get("PROF", "0") == "1" or os.environ.get("DIAG") or os.environ.get("QDIAG") else ns}
  .amdhsa_accum_offset {acc}
  .amdhsa_group_segment_fixed_size 0
  .amdhsa_kernarg_size 104
  .amdhsa_user_sgpr_count 2
  .amdhsa_user_sgpr_kernarg_segment_ptr 1
  .amdhsa_system_sgpr_workgroup_id_x 1
.end_amdhsa_kernel
"""

def mfma32(a, d, A, B, C):
    c = "0" if C is None else v(C, 16)
    a(f"v_mfma_f32_32x32x16_bf16 {v(d,16)}, {v(A,4)}, {v(B,4)}, {c}")
def mfma16(a, d, A, B, C):
    c = "0" if C is None else v(C, 4)
    a(f"v_mfma_f32_16x16x32_bf16 {v(d,4)}, {v(A,4)}, {v(B,4)}, {c}")

def fbits(x):
    import struct
    return "0x%08x" % struct.unpack("<I", struct.pack("<f", x))[0]

def csel(a, d, x, y):
    a(f"s_mov_b32 s{d}, {y}")
    a(f"s_cmov_b32 s{d}, {x}")

def interleave(main, fill):
    out = []
    n, m = len(main), len(fill)
    j = 0
    for i, x in enumerate(main):
        out.append(x)
        want = (i + 1) * m // n
        while j < want:
            out.append(fill[j]); j += 1
    out += fill[j:]
    return out

class Lst(list):
    def __call__(self, text):
        for ln in text.split("\n"):
            if ln.strip(): self.append(ln.strip())

import os
PROF = os.environ.get("PROF", "0") == "1"
WS_PROF = 64 << 20
SV = 0
def stamp(a, i):
    if not PROF: return
    a("s_memtime s[98:99]")
    a("s_waitcnt lgkmcnt(0)")
    a(f"v_writelane_b32 v{STAMPV[0]}, s98, {i}")
def stamp_rt(a, i):
    if not PROF: return
    a("s_memrealtime s[98:99]")
    a("s_waitcnt lgkmcnt(0)")
    a(f"v_writelane_b32 v{STAMPV[0]}, s98, {i}")
STAMPV = [0]
def stamp_first(a):
    if not PROF: return
    a("s_memrealtime s[94:95]")
    a("s_memtime s[96:97]")
def stamp_init(a, vreg):
    STAMPV[0] = vreg
    if not PROF: return
    a("s_waitcnt lgkmcnt(0)")
    a(f"v_mov_b32 v{vreg}, 0")
    a(f"v_writelane_b32 v{vreg}, s96, 0")
    a(f"v_writelane_b32 v{vreg}, s94, 62")
def stamp_dump(a, kidx, vlane=1, wsp=12):
    if not PROF: return
    a("s_mov_b64 exec, -1")
    a("s_waitcnt vmcnt(0)")
    stamp(a, 61); stamp_rt(a, 63)
    a(f"s_sub_u32 s88, s{wsp}, {WSOFF}")
    a(f"s_subb_u32 s89, s{wsp+1}, 0")
    a(f"s_and_b32 s89, s89, 0xffff")
    a(f"s_mov_b32 s90, {WS_PROF + (8 << 20)}")
    a("s_mov_b32 s91, 0x00020000")
    a(f"s_add_u32 s92, s2, {kidx*256}")
    a("s_lshl_b32 s92, s92, 4")
    a("s_add_u32 s92, s92, s3")
    a("s_lshl_b32 s92, s92, 8")
    a(f"s_add_u32 s92, s92, {WS_PROF}")
    a(f"v_lshlrev_b32 v{vlane}, 2, v{vlane}")
    a(f"buffer_store_dword v{STAMPV[0]}, v{vlane}, s[88:91], s92 offen")
    a("s_waitcnt vmcnt(0)")

WSOFF = int(os.environ.get("WSOFF", "0")) << 20
def ws_shift(a):
    if WSOFF:
        a(f"s_add_u32 s12, s12, {WSOFF}")
        a("s_addc_u32 s13, s13, 0")

DIAG = os.environ.get("DIAG", "")
def mark(a, name):
    if not DIAG: return
    x, y = DIAG.split(",")
    for r, n in ((82, x), (84, y)):
        if n == name:
            a(f"s_memrealtime s[{r}:{r+1}]")
            a("s_waitcnt lgkmcnt(0)")
def diag_end(a):
    if not DIAG: return
    a("s_waitcnt vmcnt(0)")
    mark(a, "end")
    if os.environ.get("QDIAG") == "2":
        a("s_mov_b64 exec, -1")
        a("v_mov_b32 v2, 0")
        a(f"s_mov_b32 s45, {WS_KMAX + 2048}")
        a("buffer_load_dword v3, v2, s[32:35], s45 offen")
        a("s_waitcnt vmcnt(0)")
        a("v_readfirstlane_b32 s82, v3")
        a("s_nop 3")
    a("s_memrealtime s[86:87]")
    a("s_waitcnt lgkmcnt(0)")
    a("s_sub_u32 s84, s84, s82")
    a("s_min_u32 s84, s84, 20000")
    a.label("L_diag")
    a("s_memrealtime s[88:89]")
    a("s_waitcnt lgkmcnt(0)")
    a("s_sub_u32 s88, s88, s86")
    a("s_cmp_lt_u32 s88, s84")
    a("s_cbranch_scc1 L_diag")
```

```python
from common import *
from k_pack import *
import math

MAPPING = os.environ.get("MAPPING", "B")
VZERO = os.environ.get("VZERO", "1") == "1"
WMOD = os.environ.get("WMOD", "sc1")
PKGELU = os.environ.get("PKGELU", "0") == "1"
PACE = int(os.environ.get("PACE", "1"))
DBG = int(os.environ.get("DBG", "0"))
YMOD = os.environ.get("YMOD", "")
GATEA = os.environ.get("GATEA", "0") == "1"
PK_T = tuple(int(x) for x in os.environ.get("PK_T", "4,6,8").split(","))
RSLEEP = int(os.environ.get("RSLEEP", "4"))
TOUCH = os.environ.get("TOUCH", "0") == "1"
BLOAD = os.environ.get("BLOAD", "1") == "1"
EARLY0 = os.environ.get("SENT1", "0") == "1"
OUTMOD = os.environ.get("OUTMOD", "")
SENT1 = os.environ.get("SENT1", "0") == "1"
YSLEEP = int(os.environ.get("YSLEEP", "2"))
TAILK = int(os.environ.get("TAILK", "3"))
BPRE = int(os.environ.get("BPRE", "0"))
RELOAD = os.environ.get("RELOAD", "0") == "1"
GATEB = os.environ.get("GATEB", "0") == "1"
NOGELU = os.environ.get("NOGELU", "0") == "1"
LDS_MAIN = 163840
L_OS = KV_BYTES
L_CP = L_OS + 8 * 608
L_ST = L_CP + 6144
L_CNT = L_ST + 512
L_Y = 0; L_H = 73728; L_B1 = 147456; L_B1D = L_B1 + 2304; L_HH = L_B1 + 4608
assert L_HH + 9216 <= L_ST and L_CNT + 16 <= LDS_MAIN
WS_, XS_ = 32, 36
KA_, KR_, VA_ = 2, 3, 4
Q2POS = {2: 10, 0: 12, 3: 14, 1: 16}; QX = (12, 17)
Q1 = 20; SB = (24, 40); P = 56; O = 64; KB = (80, 84); KRB = (88, 92); VB = (96, 104)
TPI = 16
CI = 16; AR = 28; ACC = 136; BR = 184; GT = 232
RDS = 9
WSR = 64
C0 = -2.0 * 0.7978845608028654 * math.log2(math.e)
C1 = C0 * 0.044715
POLL_MAX = 1 << 20

def koff(t): return (t >> 2) * KV_BLK + (t & 3) * 1024
def kroff(blk): return blk * KV_BLK
def voff(t, mf): return (t >> 2) * KV_BLK + (t & 3) * 1216 + mf * 608

def tile(a, t, bg=None, nbg=0):
    Sc = SB[t & 1]; Sn = SB[(t + 1) & 1]
    def B(k):
        while bg and k > 0:
            x = bg.pop(0); a(x)
            if not x.startswith("s_"): k -= 1
    ex = lambda i: a(f"v_exp_f32 v{Sc+i}, v{Sc+i}")
    cv = lambda i: a(f"v_cvt_pk_bf16_f32 v{P+i}, v{Sc+2*i}, v{Sc+2*i+1}")
    a(f"s_waitcnt lgkmcnt({2 if (t & 3) == 2 else 1})")
    mfma32(a, Sn, KB[(t + 1) & 1], Q1, None)
    a(f"ds_read_b128 {v(VB[(t+1) & 1],4)}, v{VA_} offset:{voff(t+1,0)}")
    for i in range(0, 4): ex(i)
    mfma32(a, O, VB[(t + 1) & 1] + 4, P + 4, O)
    a(f"ds_read_b128 {v(VB[(t+1) & 1]+4,4)}, v{VA_} offset:{voff(t+1,1)}")
    cv(0); cv(1)
    for i in range(4, 8): ex(i)
    mfma32(a, Sn, KRB[((t + 1) >> 2) & 1], Q2POS[(t + 1) & 3], Sn)
    a(f"ds_read_b128 {v(KB[(t+1) & 1],4)}, v{KA_} offset:{koff(t+3)}")
    cv(2); cv(3)
    for i in range(8, 12): ex(i)
    mfma32(a, O, VB[t & 1], P, O)
    if (t & 3) == 1:
        a(f"ds_read_b128 {v(KRB[((t>>2)+1) & 1],4)}, v{KR_} offset:{kroff((t>>2)+1)}")
    cv(4); cv(5)
    for i in range(12, 16): ex(i)
    cv(6); cv(7)

def pipe_start(a):
    a(f"ds_read_b128 {v(KB[0],4)}, v{KA_} offset:{koff(0)}")
    a(f"ds_read_b128 {v(KRB[0],4)}, v{KR_} offset:{kroff(0)}")
    a(f"ds_read_b128 {v(KB[1],4)}, v{KA_} offset:{koff(1)}")
    a(f"ds_read_b128 {v(VB[0],4)}, v{VA_} offset:{voff(0,0)}")
    a(f"ds_read_b128 {v(VB[0]+4,4)}, v{VA_} offset:{voff(0,1)}")
    a("s_waitcnt lgkmcnt(3)")
    mfma32(a, SB[0], KB[0], Q1, None)
    mfma32(a, SB[0], KRB[0], Q2POS[0], SB[0])
    a(f"ds_read_b128 {v(KB[0],4)}, v{KA_} offset:{koff(2)}")
    a("s_nop 10")

def wo0_loads(a, sx, vl):
    b = 112 + (sx % 4) * 36
    for t in range(9):
        if t == 4 or t == 8: a("s_add_u32 s61, s61, 4096")
        a(f"buffer_load_dwordx4 {v(b+4*t,4)}, v{vl}, {s(WS_,4)}, s61 offen offset:{(t%4)*1024}")
    a(f"s_add_u32 s61, s61, {36*1024 - 8192}")

def lds_poll(a, tag, vaddr, vtmp, thr):
    a(f"s_mov_b32 s49, {POLL_MAX}")
    a.label(f"L_{tag}")
    a(f"ds_read_b32 v{vtmp}, v{vaddr}")
    a("s_waitcnt lgkmcnt(0)")
    a(f"v_readfirstlane_b32 s47, v{vtmp}")
    a("s_sub_u32 s49, s49, 1")
    a(f"s_cbranch_scc1 L_{tag}_ok")
    a(f"s_cmp_ge_u32 s47, {thr}")
    a(f"s_cbranch_scc1 L_{tag}_ok")
    a("s_sleep 2")
    a(f"s_branch L_{tag}")
    a.label(f"L_{tag}_ok")

def flag_poll(a, tag, vaddr, vtmp, s_off, width, sleep=1):
    a(f"s_mov_b32 s49, {POLL_MAX}")
    a.label(f"L_{tag}")
    if width == 1:
        a(f"buffer_load_dword v{vtmp}, v{vaddr}, {s(WS_,4)}, s{s_off} offen sc1")
    else:
        a(f"buffer_load_dwordx2 {v(vtmp,2)}, v{vaddr}, {s(WS_,4)}, s{s_off} offen sc1")
    a("s_waitcnt vmcnt(0)")
    if width == 2: a(f"v_min_u32 v{vtmp}, v{vtmp}, v{vtmp+1}")
    a(f"v_cmp_eq_u32 vcc, 0, v{vtmp}")
    a("s_sub_u32 s49, s49, 1")
    a(f"s_cbranch_scc1 L_{tag}_ok")
    a("s_nop 1")
    a("s_cmp_eq_u64 vcc, 0")
    a(f"s_cbranch_scc1 L_{tag}_ok")
    a(f"s_sleep {sleep}")
    a(f"s_branch L_{tag}")
    a.label(f"L_{tag}_ok")

def flag_store(a, base, vt):
    a("s_lshl_b32 s46, s57, 3")
    a("s_add_u32 s46, s46, s3")
    a("s_lshl_b32 s46, s46, 2")
    a(f"s_add_u32 s46, s46, {base}")
    a(f"v_mov_b32 v{vt}, 0")
    a(f"v_mov_b32 v{vt+1}, 1")
    a("s_mov_b64 exec, 1")
    a(f"buffer_store_dword v{vt+1}, v{vt}, {s(WS_,4)}, s46 offen sc1")
    a("s_mov_b64 exec, -1")

def a_loads(a, step_slot):
    for t in range(3):
        a(f"buffer_load_dwordx4 {v(AR + step_slot*12 + 4*t, 4)}, v2, {s(WSR,4)}, s70 offen offset:{t*1024} {WMOD}")
    a("s_add_u32 s70, s70, 3072")

def prologue(a):
    a(f"s_load_dwordx2 s[4:5], s[0:1], {KA['x']}")
    a(f"s_load_dwordx8 s[16:23], s[0:1], {KA['w1']}")
    a(f"s_load_dwordx2 s[6:7], s[0:1], {KA['out']}")
    a(f"s_load_dwordx2 s[12:13], s[0:1], {KA['ws']}")
    a("v_lshrrev_b32 v7, 6, v0")
    a("v_and_b32 v1, 63, v0")
    a("v_readfirstlane_b32 s3, v7")
    nb = {"A": 3, "B": 2, "C": 1, "D": 0}[MAPPING]
    a(f"s_and_b32 s43, s2, {(1 << nb) - 1}")
    a(f"s_lshl_b32 s43, s43, {3 - nb}")
    a(f"s_bfe_u32 s45, s2, {hex(((3 - nb) << 16) | 3)}")
    a("s_add_u32 s43, s43, s45")
    a(f"s_lshr_b32 s56, s2, {6 - nb}")
    a(f"s_lshl_b32 s56, s56, {3 - nb}")
    a(f"s_bfe_u32 s45, s2, {hex(((3 - nb) << 16) | nb)}")
    a("s_add_u32 s56, s56, s45")
    a("s_lshl_b32 s57, s56, 3")
    a("s_add_u32 s57, s57, s43")
    a("s_lshl_b32 s42, s57, 3")
    a("s_and_b32 s40, s3, 3")
    a("s_lshr_b32 s41, s3, 2")
    a("s_movk_i32 s44, 1152")
    a("v_and_b32 v5, 15, v1")
    a("v_mul_u32_u24 v5, 36, v5")
    a("v_bfe_u32 v6, v1, 4, 1")
    a("v_mad_u32_u24 v5, v6, s44, v5")
    a("v_lshrrev_b32 v7, 5, v1")
    a("v_lshl_add_u32 v6, v7, 4, v5")
    a("s_lshl_b32 s45, s40, 1")
    a("s_add_u32 s45, s45, s42")
    a("s_mul_i32 s45, s45, 1152")
    a("s_mul_i32 s46, s41, 576")
    a("s_add_u32 s45, s45, s46")
    a(f"s_add_u32 s45, s45, {WS_Q}")
    a("v_lshlrev_b32 v8, 3, v1")
    a("v_lshlrev_b32 v9, 4, v1")
    a("s_lshl_b32 s47, s3, 10")
    a("s_waitcnt lgkmcnt(0)")
    ws_shift(a)
    srd(a, WS_, 12, WS_END)

def attention(a):
    ws = WS_
    a(f"buffer_load_dwordx4 {v(Q1,4)}, v6, {s(ws,4)}, s45 offen")
    a(f"buffer_load_dword v{QX[0]}, v5, {s(ws,4)}, s45 offen offset:32")
    a(f"s_mov_b32 s46, {WS_KMAX}")
    a(f"buffer_load_dwordx4 v[24:27], v9, {s(ws,4)}, s46 offen")
    for i in range(4):
        a(f"s_add_u32 m0, s47, {i*8192}")
        a(f"s_add_u32 s46, s47, {WS_KV + i*8192}")
        a(f"buffer_load_dwordx4 v9, {s(ws,4)}, s46 offen lds")
    srd(a, XS_, 4, S * D * 2)
    a("s_cmp_lg_u32 s41, 0")
    a("s_cbranch_scc0 L_a_nodma")
    a("s_lshl_b32 s47, s40, 10")
    for i in range(29):
        if i == 6:
            a("s_waitcnt vmcnt(3)")
            a("s_barrier")
        a(f"s_add_u32 m0, s47, {32768 + i*4096}")
        a(f"s_add_u32 s46, s47, {WS_KV + 32768 + i*4096}")
        a(f"buffer_load_dwordx4 v9, {s(ws,4)}, s46 offen lds")
    a("s_setprio 3")
    a("s_branch L_a_dmadone")
    a.label("L_a_nodma")
    a("s_setprio 2")
    a.label("L_a_dmadone")
    a(f"v_mov_b32 v{KA_}, v9")
    a(f"v_add_u32 v{KR_}, 4096, v9")
    a(f"v_mov_b32 v8, {4608 + 288}")
    a("v_cmp_gt_u32 s[50:51], 32, v1")
    a(f"v_cndmask_b32 v{KR_}, v8, v{KR_}, s[50:51]")
    a("v_and_b32 v5, 31, v1")
    sigma_v(a, 6, 5, 8, 9)
    if VZERO:
        a("v_mov_b32 v8, 0x8000")
    else:
        a("v_add_u32 v8, -20, v5")
        a("v_cmp_gt_u32 vcc, 8, v8")
        a("v_cndmask_b32 v8, 4, 0, vcc")
    a("v_cmp_lt_u32 vcc, 18, v5")
    a("v_cndmask_b32 v6, v6, v8, vcc")
    a("v_lshlrev_b32 v6, 4, v6")
    a("s_movk_i32 s46, 304")
    a(f"v_mad_u32_u24 v{VA_}, v7, s46, v6")
    a(f"v_add_u32 v{VA_}, 4608, v{VA_}")
    for r in (10, 11, 13, 14, 15, 16, 18, 19): a(f"v_mov_b32 v{r}, 0")
    for r in range(O, O + 16): a(f"v_mov_b32 v{r}, 0")
    for r in range(P + 4, P + 8): a(f"v_mov_b32 v{r}, 0")
    for r in range(VB[1] + 4, VB[1] + 8): a(f"v_mov_b32 v{r}, 0")
    stamp(a, 1)
    a("s_cmp_lg_u32 s41, 0")
    a("s_cbranch_scc1 L_a_qready")
    a(f"v_mov_b32 v8, {L_CNT}")
    a("ds_write_b32 v8, v10")
    a("s_waitcnt vmcnt(4)")
    a.label("L_a_qready")
    a(f"v_dot2_f32_bf16 v5, v{Q1}, v{Q1}, 0")
    for i in range(1, 4):
        a(f"v_dot2_f32_bf16 v5, v{Q1+i}, v{Q1+i}, v5")
    a("v_max_f32 v24, v24, v25")
    a("v_max3_f32 v24, v24, v26, v27")
    for rr in (8, 4, 2, 1):
        a(f"v_max_f32_dpp v24, v24, v24 row_ror:{rr} row_mask:0xf bank_mask:0xf")
    a("v_mov_b32 v25, v24")
    a("v_mov_b32 v6, v5")
    a("v_permlane16_swap_b32 v24, v25")
    a("v_permlane32_swap_b32 v5, v6")
    a("v_max_f32 v24, v24, v25")
    a("v_add_f32 v5, v5, v6")
    a("v_mov_b32 v25, v24")
    a(f"v_dot2_f32_bf16 v5, v{QX[0]}, v{QX[0]}, v5")
    a("v_permlane32_swap_b32 v24, v25")
    a("v_add_f32 v24, v24, v25")
    a("v_mul_f32 v5, v5, v24")
    a("v_sqrt_f32 v5, v5")
    a(f"v_mul_f32 v5, {fbits(-1.02)}, v5")
    a("v_cvt_pk_bf16_f32 v5, v5, 0")
    a(f"v_cndmask_b32 v{QX[0]}, v5, v{QX[0]}, s[50:51]")
    a(f"v_mov_b32 v{QX[1]}, v{QX[0]}")
    a("s_mov_b32 s60, 0")
    a("s_mov_b32 s48, 0")
    a("v_lshlrev_b32 v9, 4, v1")
    a("s_cmp_lg_u32 s41, 0")
    a("s_cbranch_scc1 L_a_young_pre")
    a(f"s_mov_b32 s59, {16 // TPI}")
    a("s_waitcnt vmcnt(0) lgkmcnt(0)")
    a("s_barrier")
    a.label("L_a_start")
    stamp(a, 3)
    pipe_start(a)
    a.raw(".p2align 6")
    a.label("L_a_loop")
    for t in range(TPI): tile(a, t)
    a.label("L_a_loop_end")
    step = (TPI // 4) * KV_BLK
    a(f"v_add_u32 v{KA_}, {step}, v{KA_}")
    a(f"v_add_u32 v{KR_}, {step}, v{KR_}")
    a(f"v_add_u32 v{VA_}, {step}, v{VA_}")
    a("s_add_u32 s48, s48, 1")
    a("s_cmp_eq_u32 s48, s59")
    a("s_cbranch_scc1 L_a_inter")
    a(f"s_cmp_lt_u32 s48, {64 // TPI}")
    a("s_cbranch_scc1 L_a_loop")
    mfma32(a, O, VB[1] + 4, P + 4, O)
    a.label("L_a_norm")
    stamp(a, 4); mark(a, "L")
    a("s_waitcnt lgkmcnt(0)")
    a("s_nop 12")
    a(f"v_mov_b32 v5, v{O+10}")
    a(f"v_mov_b32 v6, v{O+10}")
    a("v_permlane32_swap_b32 v5, v6")
    a(f"v_mov_b32 v7, {fbits(2.0**-40)}")
    a("v_cmp_nge_f32 vcc, v5, v7")
    a("s_nop 3")
    a("s_cmp_lg_u64 vcc, 0")
    a("s_cselect_b32 s49, 1, 0")
    a("s_andn2_b32 s49, s49, s60")
    a("s_cbranch_scc1 L_a_fallback")
    a("v_rcp_f32 v5, v5")
    a("v_bfe_u32 v6, v1, 4, 1")
    a("s_lshl_b32 s46, s40, 1")
    a("v_add_u32 v6, s46, v6")
    a("v_mul_u32_u24 v6, 608, v6")
    a("v_and_b32 v7, 15, v1")
    a("v_lshl_add_u32 v8, v7, 2, v6")
    a("v_lshl_add_u32 v6, v7, 5, v6")
    a("v_lshrrev_b32 v7, 5, v1")
    a("v_lshl_add_u32 v6, v7, 4, v6")
    a(f"v_add_u32 v6, {L_OS}, v6")
    a(f"v_add_u32 v8, {L_OS + 512}, v8")
    for i in range(10):
        a(f"v_mul_f32 v{O+i}, v{O+i}, v5")
    for i in range(5):
        a(f"v_cvt_pk_bf16_f32 v{P+i}, v{O+2*i}, v{O+2*i+1}")
    a("s_cmp_eq_u32 s41, 0")
    a("s_cbranch_scc1 L_a_poll2_ok")
    a(f"v_mov_b32 v9, {L_CNT}")
    lds_poll(a, "a_poll2", 9, 7, 8)
    a(f"ds_write_b128 v6, {v(P,4)}")
    a("s_mov_b64 exec, 0xffffffff")
    a(f"ds_write_b32 v8, v{P+4}")
    a("s_mov_b64 exec, -1")
    a("v_and_b32 v5, 7, v1")
    a("v_mul_u32_u24 v4, 608, v5")
    a("v_lshrrev_b32 v6, 4, v1")
    a("v_lshl_add_u32 v4, v6, 4, v4")
    a(f"v_add_u32 v4, {L_OS}, v4")
    a("v_lshl_add_u32 v3, v6, 3, v5")
    a("v_lshlrev_b32 v3, 4, v3")
    a("s_mul_i32 s46, s40, 1536")
    a(f"s_add_u32 s46, s46, {L_CP}")
    a("v_add_u32 v3, s46, v3")
    a("v_lshlrev_b32 v2, 4, v1")
    a("s_mul_i32 s70, s3, 165888")
    a(f"s_mul_i32 s47, s43, {SLICE}")
    a("s_add_u32 s70, s70, s47")
    a(f"s_add_u32 s70, s70, {WS_W}")
    a(f"s_mov_b32 s{WSR}, s12")
    a(f"s_and_b32 s{WSR+1}, s13, 0xffff")
    a(f"s_add_u32 s{WSR+2}, s70, 165888")
    a(f"s_mov_b32 s{WSR+3}, 0x00020000")
    a("s_mov_b32 s54, 0x00ff00ff")
    a("s_mov_b32 s55, 0x00ff00ff")
    a("s_cmp_lg_u32 s41, 0")
    a("s_cbranch_scc1 L_a_young_tail")

    WA = 16
    WB = 112
    a(f"v_mov_b32 v8, {L_CNT}")
    a("v_mov_b32 v9, 1")
    a("s_waitcnt lgkmcnt(0)")
    a("s_mov_b64 exec, 1")
    a("ds_add_u32 v8, v9")
    a("s_mov_b64 exec, -1")
    a("s_mul_i32 s61, s40, 9216")
    a(f"s_add_u32 s61, s61, {WS_WO}")
    for sx in range(4): wo0_loads(a, sx, 2)
    a("v_mul_u32_u24 v10, 1152, v5")
    a("v_lshl_add_u32 v11, v6, 3, v10")
    a("v_lshl_add_u32 v10, v6, 4, v10")
    a("s_mul_i32 s46, s42, 1152")
    a("s_mul_i32 s47, s40, 288")
    a("s_add_u32 s52, s46, s47")
    for i in range(4):
        a(f"buffer_load_dwordx4 {v(92+4*i,4)}, v10, {s(XS_,4)}, s52 offen offset:{i*64}")
    a(f"buffer_load_dwordx2 v[108:109], v11, {s(XS_,4)}, s52 offen offset:256")
    lds_poll(a, "a_poll", 8, 9, 4)
    stamp(a, 5)
    for sx in range(9):
        a(f"ds_read_b128 {v(56+4*sx,4)}, v4 offset:{sx*64}")
    a("v_mov_b32 v9, 1")
    a("s_waitcnt lgkmcnt(0)")
    a("s_mov_b64 exec, 1")
    a("ds_add_u32 v8, v9")
    a("s_mov_b64 exec, -1")
    a("s_setprio 0")
    for sx in range(9):
        a(f"s_waitcnt vmcnt({min(3, 8 - sx)*9 + (5 if sx < 4 else 0)})")
        b = WB + (sx % 4) * 36
        for t in range(9):
            mfma16(a, WA + 4*t, b + 4*t, 56 + 4*sx, None if sx == 0 else WA + 4*t)
        if sx + 4 < 9: wo0_loads(a, sx + 4, 2)
    a("s_setprio 2")
    a("s_mov_b32 s46, 0x00003f80")
    a("s_mov_b32 s47, 0x3f800000")
    for k in list(range(12, 18)) + list(range(12)):
        a(f"v_dot2_f32_bf16 v{WA+2*k}, v{92+k}, s46, v{WA+2*k}")
        a(f"v_dot2_f32_bf16 v{WA+2*k+1}, v{92+k}, s47, v{WA+2*k+1}")
    stamp(a, 23)
    a("s_mov_b64 exec, s[54:55]")
    for t in range(3):
        a(f"ds_write_b128 v3, {v(WA+24+4*t,4)} offset:{t*512}")
    a("s_mov_b64 exec, -1")
    a("s_waitcnt lgkmcnt(0)")
    a("s_mul_i32 s46, s40, 9216")
    a(f"s_add_u32 s46, s46, {WS_WO + 9*36*1024}")
    for sx in range(9):
        for t in range(6):
            if t == 4: a("s_add_u32 s46, s46, 4096")
            a(f"buffer_load_dwordx4 {v(40+(sx*6+t)*4,4)}, v2, {s(ws,4)}, s46 offen offset:{(t%4)*1024}")
        a(f"s_add_u32 s46, s46, {36*1024 - 4096}")
    a("v_lshlrev_b32 v8, 3, v1")
    a("s_lshl_b32 s46, s43, 9")
    a(f"s_add_u32 s46, s46, {WS_FPACK}")
    flag_poll(a, "a_pkpoll", 8, 10, 46, 2, sleep=8)
    stamp(a, 6)
    a("s_barrier")
    stamp(a, 7)
    a(f"ds_read_b128 v[8:11], v4 offset:0")
    for sx in range(9):
        if sx + 1 < 9:
            a(f"ds_read_b128 {v(8+((sx+1)&1)*4,4)}, v4 offset:{(sx+1)*64}")
        a(f"s_waitcnt lgkmcnt({1 if sx+1 < 9 else 0})")
        for t in range(6):
            mfma16(a, WA + 4*t, 40 + (sx*6+t)*4, 8 + (sx&1)*4, WA + 4*t)
    ln_tail(a, WA, 6, 0)
    a("s_branch L_m_roleB")

    a.label("L_a_young_tail")
    a("s_waitcnt vmcnt(0) lgkmcnt(0)")
    stamp(a, 6)
    a("s_barrier")
    stamp(a, 7)
    for t in range(3):
        a(f"ds_read_b128 {v(WA+4*t,4)}, v3 offset:{t*512}")
    for sx in range(9):
        a(f"ds_read_b128 {v(104+4*sx,4)}, v4 offset:{sx*64}")
    L = Lst()
    for k in range(TAILK): a_loads(L, k)
    for sx in range(9):
        a(f"s_waitcnt lgkmcnt({8-sx})")
        for t in range(3):
            mfma16(a, WA + 4*t, 148 + (sx*3+t)*4, 104 + 4*sx, WA + 4*t)
            if t == 2 and L:
                a(L.pop(0))
                if L and L[0].startswith("s_"): a(L.pop(0))
    ln_tail(a, WA, 3, 6)
    stamp(a, 26); stamp_rt(a, 40)
    a("s_barrier")
    for k in range(TAILK, RDS - 1): a_loads(a, k)
    a("s_lshl_b32 s46, s40, 6")
    a("v_add_u32 v8, s46, v1")
    a("v_lshlrev_b32 v11, 3, v8")
    a(f"v_add_u32 v11, {L_B1}, v11")
    a(f"v_lshlrev_b32 v{GT+2}, 16, v140")
    a(f"v_and_b32 v{GT+3}, 0xffff0000, v140")
    a(f"v_lshlrev_b32 v{GT+4}, 16, v141")
    a(f"v_and_b32 v{GT+5}, 0xffff0000, v141")
    a(f"ds_write_b64 v11, {v(GT+2,2)}")
    a("v_lshrrev_b32 v12, 2, v8")
    a("v_lshlrev_b32 v12, 5, v12")
    a("v_and_b32 v13, 3, v8")
    a("v_lshl_add_u32 v12, v13, 2, v12")
    a(f"v_add_u32 v12, {L_B1D}, v12")
    a(f"ds_write2_b32 v12, v{GT+2}, v{GT+3} offset0:0 offset1:4")
    a("v_add_u32 v12, 2048, v12")
    a("s_cmp_lg_u32 s40, 0")
    a("s_cbranch_scc1 L_m_roleA")
    a("s_mov_b64 exec, 0xffffffff")
    a(f"ds_write_b64 v11, {v(GT+4,2)} offset:2048")
    a(f"ds_write2_b32 v12, v{GT+4}, v{GT+5} offset0:0 offset1:4")
    a("s_mov_b64 exec, -1")
    a("s_branch L_m_roleA")

    a.label("L_a_inter")
    a("s_barrier")
    a("s_branch L_a_loop")

    a.label("L_a_young_pre")
    a("s_lshl_b32 s58, s56, 2")
    a("s_add_u32 s58, s58, s40")
    a("s_min_u32 s59, s58, 119")
    sja, selA, selB = w_pack_setup(a, 59, 43, 16, 20, 24, 72, 61, 62, 63, 1, 5, 6, 7)
    a("s_mov_b32 s59, 99")
    a("s_mov_b32 s52, s63")
    a("s_waitcnt vmcnt(8)")
    w_pack_loads(a, 2, 24, 61, 62, sja, 5, 6, 112)
    a("s_waitcnt vmcnt(32)")
    stamp(a, 2)
    a("s_barrier")
    a("s_waitcnt vmcnt(26)")
    w_pack_loads(a, 2, 24, 61, 62, sja, 5, 6, 144)
    if TOUCH:
        a("s_mov_b32 s46, 0x24000")
        a("s_lshl_b32 s47, s40, 6")
        a("v_add_u32 v7, s47, v1")
        a("v_mul_lo_u32 v7, v7, s46")
        a(f"buffer_load_dword v252, v7, {s(ws,4)}, 0 offen")
        srd(a, 28, 6, S * D * 2)
        a("v_lshlrev_b32 v7, 16, v1")
        a("buffer_load_dword v253, v7, s[28:31], 0 offen")
        a("v_mov_b32 v7, 0")
        a("global_load_dword v254, v7, s[18:19]")
        a("global_load_dword v255, v7, s[22:23]")
    stamp(a, 20)
    pipe_start(a)
    for t in range(TPI):
        tile(a, t)
        if t == PK_T[0]:
            for st in range(4):
                a(f"s_waitcnt vmcnt({(3-st)*16 + st*3 + (4 if TOUCH else 0)})")
                w_pack_stores(a, 112 + st*16, 176 + (st & 1)*12, selA, selB, ws, 9, 63)
            for i in range(4): a(f"v_mov_b32 v{200+i}, -1")
            a("s_mul_i32 s46, s57, 73728")
            a("s_mul_i32 s47, s40, 18432")
            a("s_add_u32 s46, s46, s47")
            if SENT1:
                a(f"s_add_u32 s46, s46, {WS_P + 3072}")
                for i in range(12):
                    if i and i % 3 == 0: a(f"s_add_u32 s46, s46, {6144 if i == 6 else 3072}")
                    a(f"buffer_store_dwordx4 v[200:203], v9, {s(ws,4)}, s46 offen offset:{(i%3)*1024} sc1")
            else:
                a(f"s_add_u32 s46, s46, {WS_P + 6144}")
                for i in range(6):
                    if i == 3: a("s_add_u32 s46, s46, 9216")
                    a(f"buffer_store_dwordx4 v[200:203], v9, {s(ws,4)}, s46 offen offset:{(i%3)*1024} sc1")
            stamp(a, 21)
            a("s_setprio 1")
        if t == PK_T[2]:
            a("s_waitcnt vmcnt(29)")
            a("v_mov_b32 v5, 0")
            a("v_mov_b32 v6, 1")
            a("s_lshl_b32 s46, s43, 7")
            a("s_add_u32 s46, s46, s58")
            a("s_lshl_b32 s46, s46, 2")
            a(f"s_add_u32 s46, s46, {WS_FPACK}")
            a("s_mov_b64 exec, 1")
            a(f"buffer_store_dword v6, v5, {s(ws,4)}, s46 offen sc1")
            a("s_mov_b64 exec, -1")
            if RELOAD:
                for i in range(12):
                    a(f"buffer_load_dwordx4 v[112:115], v9, {s(ws,4)}, s52 offen offset:{(i%4)*1024} sc1")
                    if i % 4 == 3: a("s_add_u32 s52, s52, 4096")
            stamp(a, 27)
        if t == PK_T[1]:
            a("s_mul_i32 s46, s40, 9216")
            a(f"s_add_u32 s46, s46, {WS_WO + (9*36 + 6)*1024}")
            for sx in range(9):
                for tt in range(3):
                    a(f"buffer_load_dwordx4 {v(148 + (sx*3+tt)*4, 4)}, v9, {s(ws,4)}, s46 offen offset:{tt*1024}")
                a(f"s_add_u32 s46, s46, {36*1024}")
            srd(a, XS_, 18, F * 2)
            a("s_lshl_b32 s46, s40, 8")
            a("s_mul_i32 s47, s43, 1152")
            a("s_add_u32 s46, s46, s47")
            a("v_lshlrev_b32 v5, 2, v1")
            a(f"buffer_load_dword v140, v5, {s(XS_,4)}, s46 offen")
            a(f"buffer_load_dword v141, v5, {s(XS_,4)}, s46 offen offset:1024")
            stamp(a, 22)
    a("s_branch L_a_loop_end")
    fallback(a)

def ln_tail(a, WA, nt, t0):
    ws = WS_
    n = nt * 4
    T = 44 if nt == 6 else 148
    stamp(a, 8)
    a(f"v_add_f32 v8, v{WA}, v{WA+1}")
    a(f"v_mul_f32 v9, v{WA}, v{WA}")
    a(f"v_fmac_f32 v9, v{WA+1}, v{WA+1}")
    for i in range(2, n):
        a(f"v_add_f32 v8, v8, v{WA+i}")
        a(f"v_fmac_f32 v9, v{WA+i}, v{WA+i}")
    for sw in ("v_permlane32_swap_b32", "v_permlane16_swap_b32"):
        a("v_mov_b32 v10, v8")
        a("v_mov_b32 v11, v9")
        a(f"{sw} v8, v10")
        a(f"{sw} v9, v11")
        a("v_add_f32 v8, v8, v10")
        a("v_add_f32 v9, v9, v11")
    a("v_lshlrev_b32 v10, 6, v5")
    a(f"v_add_u32 v10, {L_ST}, v10")
    a("s_lshl_b32 s46, s3, 3")
    a("v_add_u32 v11, s46, v10")
    a("s_mov_b64 exec, 0xff")
    a("ds_write_b64 v11, v[8:9]")
    a("s_mov_b64 exec, -1")
    for k in range(n // 2):
        a(f"v_cvt_pk_bf16_f32 v{T+k}, v{WA+2*k}, v{WA+2*k+1}")
    a("s_mul_i32 s46, s40, 18")
    a(f"s_add_u32 s46, s46, {2*t0}")
    a("v_add_u32 v12, s46, v6")
    a("v_lshlrev_b32 v13, 4, v5")
    a("v_lshl_add_u32 v14, v12, 7, v13")
    a(f"v_add_u32 v14, {L_HH}, v14")
    a("s_waitcnt lgkmcnt(0)")
    a("s_barrier")
    stamp(a, 9); stamp_rt(a, 47); mark(a, "D")
    U = T + 12
    for i in range(4):
        a(f"ds_read_b128 {v(U+4*i,4)}, v10 offset:{i*16}")
    a("v_lshrrev_b32 v15, 2, v12")
    a("v_lshl_add_u32 v15, v15, 12, v13")
    a("v_and_b32 v12, 3, v12")
    a("v_lshl_add_u32 v12, v12, 8, v15")
    if nt == 3:
        a("v_lshrrev_b32 v15, 1, v6")
        a("s_add_u32 s46, s46, 4")
        a("v_add_u32 v15, s46, v15")
        a("v_and_b32 v7, 1, v6")
        a("v_lshl_add_u32 v13, v7, 3, v13")
        a("v_lshl_add_u32 v7, v15, 7, v13")
        a(f"v_add_u32 v7, {L_HH}, v7")
        a("v_lshrrev_b32 v8, 2, v15")
        a("v_lshl_add_u32 v13, v8, 12, v13")
        a("v_and_b32 v15, 3, v15")
        a("v_lshl_add_u32 v13, v15, 8, v13")
    a("s_mov_b64 exec, s[54:55]")
    for i in range(nt // 2):
        a(f"ds_write_b128 v14, {v(T+4*i,4)} offset:{i*512}")
    if nt == 3: a(f"ds_write_b64 v7, {v(T+4,2)}")
    a("s_mov_b64 exec, -1")
    a("s_mul_i32 s46, s56, 73728")
    a("s_lshr_b32 s47, s43, 1")
    a("s_lshl_b32 s47, s47, 10")
    a("s_add_u32 s46, s46, s47")
    a("s_and_b32 s47, s43, 1")
    a("s_lshl_b32 s47, s47, 7")
    a("s_add_u32 s46, s46, s47")
    a(f"s_add_u32 s46, s46, {WS_Y}")
    a(f"s_waitcnt lgkmcnt({nt//2 + (nt & 1)})")
    for i in range(1, 8):
        a(f"v_add_f32 v{U}, v{U}, v{U+2*i}")
        a(f"v_add_f32 v{U+1}, v{U+1}, v{U+2*i+1}")
    a(f"v_mul_f32 v8, {fbits(1.0/D)}, v{U}")
    a(f"v_mul_f32 v9, {fbits(1.0/D)}, v{U+1}")
    a("v_fma_f32 v9, -v8, v8, v9")
    a("v_max_f32 v9, 0, v9")
    a(f"v_add_f32 v10, {fbits(1e-5)}, v9")
    a("v_rcp_f32 v11, v10")
    a("v_rsq_f32 v10, v10")
    a(f"v_fmaak_f32 v11, v9, v11, {fbits(1e-5)}")
    a("v_rsq_f32 v11, v11")
    a("v_mul_f32 v10, v10, v11")
    a("v_mul_f32 v8, v8, v10")
    a("s_mov_b64 exec, s[54:55]")
    for i in range(nt // 2):
        for k in range(8):
            a(f"v_fma_f32 v{WA+8*i+k}, v{WA+8*i+k}, v10, -v8")
        for k in range(4):
            a(f"v_cvt_pk_bf16_f32 v{U+4*i+k}, v{WA+8*i+2*k}, v{WA+8*i+2*k+1}")
        a(f"buffer_store_dwordx4 {v(U+4*i,4)}, v12, {s(ws,4)}, s46 offen sc1")
        if i + 1 < nt // 2: a("v_add_u32 v12, 4096, v12")
    if nt == 3:
        for k in range(4):
            a(f"v_fma_f32 v{WA+8+k}, v{WA+8+k}, v10, -v8")
        for k in range(2):
            a(f"v_cvt_pk_bf16_f32 v{U+4+k}, v{WA+8+2*k}, v{WA+8+2*k+1}")
        a(f"buffer_store_dwordx2 {v(U+4,2)}, v13, {s(ws,4)}, s46 offen sc1")
    a("s_mov_b64 exec, -1")

def fallback(a):
    a.label("L_a_fallback")
    a("s_mov_b32 s60, 1")
    tot = 16 * KV_BLK
    a(f"v_cndmask_b32 v{QX[0]}, 0, v{QX[0]}, s[50:51]")
    a(f"v_mov_b32 v{QX[1]}, v{QX[0]}")
    a("v_mov_b32 v5, 0xff800000")
    for ps in range(2):
        for r in (KA_, KR_, VA_):
            a(f"v_subrev_u32 v{r}, {tot}, v{r}")
        a("s_mov_b32 s48, 0")
        a.label(f"L_a_fb{ps}")
        a(f"ds_read_b128 {v(KRB[0],4)}, v{KR_}")
        for t in range(4):
            a(f"ds_read_b128 {v(KB[0],4)}, v{KA_} offset:{koff(t)}")
            if ps == 1:
                a(f"ds_read_b128 {v(VB[0],4)}, v{VA_} offset:{voff(t,0)}")
                a(f"ds_read_b128 {v(VB[0]+4,4)}, v{VA_} offset:{voff(t,1)}")
            a("s_waitcnt lgkmcnt(0)")
            mfma32(a, SB[0], KB[0], Q1, None)
            mfma32(a, SB[0], KRB[0], Q2POS[t], SB[0])
            S0 = SB[0]
            if ps == 0:
                for i in range(8):
                    a(f"v_max3_f32 v5, v{S0+2*i}, v{S0+2*i+1}, v5")
            else:
                for i in range(16): a(f"v_sub_f32 v{S0+i}, v{S0+i}, v5")
                for i in range(16): a(f"v_exp_f32 v{S0+i}, v{S0+i}")
                for i in range(8): a(f"v_cvt_pk_bf16_f32 v{P+i}, v{S0+2*i}, v{S0+2*i+1}")
                mfma32(a, O, VB[0], P, O)
                mfma32(a, O, VB[0] + 4, P + 4, O)
                a("s_nop 7")
        for r in (KA_, KR_, VA_):
            a(f"v_add_u32 v{r}, {KV_BLK}, v{r}")
        a("s_add_u32 s48, s48, 1")
        a("s_cmp_lt_u32 s48, 16")
        a(f"s_cbranch_scc1 L_a_fb{ps}")
        if ps == 0:
            a("v_mov_b32 v6, v5")
            a("v_permlane32_swap_b32 v5, v6")
            a("v_max_f32 v5, v5, v6")
            for r in range(O, O + 16): a(f"v_mov_b32 v{r}, 0")
    a("s_branch L_a_norm")

def gelu(a, regs, tmp, vc1):
    if NOGELU: return
    for k in range(0, len(regs), 8):
        g = regs[k:k+8:2]
        T = [tmp + 2*i for i in range(len(g))]
        if PKGELU:
            for x, t in zip(g, T): a(f"v_pk_mul_f32 {v(t,2)}, {v(x,2)}, {v(x,2)}")
            for x, t in zip(g, T): a(f"v_pk_fma_f32 {v(t,2)}, {v(t,2)}, {v(vc1,2)}, s[78:79]")
            for x, t in zip(g, T): a(f"v_pk_mul_f32 {v(t,2)}, {v(x,2)}, {v(t,2)}")
            for x, t in zip(g, T): a(f"v_exp_f32 v{t}, v{t}"); a(f"v_exp_f32 v{t+1}, v{t+1}")
            for x, t in zip(g, T): a(f"v_pk_add_f32 {v(t,2)}, {v(t,2)}, 1.0 op_sel_hi:[1,0]")
            for x, t in zip(g, T): a(f"v_rcp_f32 v{t}, v{t}"); a(f"v_rcp_f32 v{t+1}, v{t+1}")
            for x, t in zip(g, T): a(f"v_pk_mul_f32 {v(x,2)}, {v(x,2)}, {v(t,2)}")
        else:
            g = regs[k:k+8]; T = [tmp + i for i in range(len(g))]
            for x, t in zip(g, T): a(f"v_mul_f32 v{t}, v{x}, v{x}")
            for x, t in zip(g, T): a(f"v_fmaak_f32 v{t}, v{vc1}, v{t}, {fbits(C0)}")
            for x, t in zip(g, T): a(f"v_mul_f32 v{t}, v{x}, v{t}")
            for x, t in zip(g, T): a(f"v_exp_f32 v{t}, v{t}")
            for x, t in zip(g, T): a(f"v_add_f32 v{t}, 1.0, v{t}")
            for x, t in zip(g, T): a(f"v_rcp_f32 v{t}, v{t}")
            for x, t in zip(g, T): a(f"v_mul_f32 v{x}, v{x}, v{t}")

def acc(t, q): return ACC + (t * 4 + q) * 4

def mlp_setup(a):
    a(f"v_add_u32 v3, {L_Y}, v2")
    a(f"v_add_u32 v4, {L_Y + 36864}, v2")
    a("v_and_b32 v9, 15, v1")
    a("v_lshlrev_b32 v9, 4, v9")
    a(f"v_mov_b32 v{GT+22}, {fbits(C1)}")
    a(f"v_mov_b32 v{GT+23}, {fbits(C1)}")
    a(f"s_mov_b32 s78, {fbits(C0)}")
    a(f"s_mov_b32 s79, {fbits(C0)}")
    a("v_bfe_u32 v14, v1, 3, 1")
    a("s_mov_b32 s46, 73728")
    a("v_mul_lo_u32 v14, v14, s46")
    a("v_lshl_add_u32 v14, v5, 4, v14")
    a("v_and_b32 v15, 1, v6")
    a("s_mov_b32 s46, 147456")
    a("v_mul_lo_u32 v15, v15, s46")
    a("v_add_u32 v15, v15, v14")
    a("v_lshrrev_b32 v7, 1, v6")
    a("v_lshl_add_u32 v15, v7, 7, v15")
    a("v_lshl_add_u32 v14, v6, 7, v14")
    a("s_lshl_b32 s71, s56, 6")
    a("s_add_u32 s71, s71, s43")
    a("s_mul_i32 s71, s71, 9216")
    a(f"s_add_u32 s71, s71, {WS_P}")

def bias_init(a):
    a("s_mul_i32 s46, s68, 192")
    a(f"s_add_u32 s46, s46, {L_B1}")
    a("v_lshl_add_u32 v11, v6, 5, s46")
    a("v_lshl_add_u32 v12, v6, 4, s46")
    a(f"ds_read_b128 {v(CI,4)}, v11 offset:{L_B1D - L_B1}")
    a(f"ds_read_b128 {v(CI+4,4)}, v11 offset:{L_B1D - L_B1 + 16}")
    a(f"ds_read_b128 {v(CI+8,4)}, v12 offset:128")

def to_gemm2(a):
    for r in (3, 4):
        a(f"v_add_u32 v{r}, {L_H - L_Y}, v{r}")
    for i in range(12): a(f"v_mov_b32 v{CI+i}, 0")

def call(a, name):
    a(f"s_call_b64 s[74:75], {name}")

def mlp(a):
    ws = WS_
    a.label("L_m_roleA")
    mlp_setup(a)
    a("s_setprio 3")
    a("s_waitcnt lgkmcnt(0)")
    a("s_barrier")
    mark(a, "G1")
    stamp(a, 10); stamp_rt(a, 48)
    a("s_mov_b32 s68, s40")
    bias_init(a)
    a("s_mov_b32 s69, 3")
    call(a, "L_m_pass")
    stamp(a, 12)
    a("s_setprio 1")
    call(a, "L_m_gelu")
    stamp(a, 13)
    a("s_setprio 1")
    a("s_add_u32 s68, s40, 8")
    bias_init(a)
    a("s_mov_b32 s69, 0")
    call(a, "L_m_pass")
    a("s_setprio 0")
    stamp(a, 14)
    a("s_barrier")
    stamp(a, 11)
    call(a, "L_m_gelu")
    stamp(a, 15)
    a("s_waitcnt lgkmcnt(0)")
    a("s_barrier")
    a("s_setprio 2")
    to_gemm2(a)
    a(f"s_mov_b32 s69, {10 if GATEB else 8}")
    call(a, "L_m_pass")
    a("s_setprio 0")
    a("s_add_u32 s68, s40, 4")
    stamp(a, 16); mark(a, "M")
    reduce_setup(a)
    call(a, "L_m_cvt")
    if GATEA: a("s_barrier")
    call(a, "L_m_st")
    if not GATEA: a("s_barrier")
    stamp(a, 24)
    if not SENT1:
        a("s_waitcnt vmcnt(0)")
        flag_store(a, WS_FP1, 11)
    stamp(a, 25)
    a("s_cmp_eq_u32 s40, 3")
    a("s_cbranch_scc1 L_r_st1")
    flag_poll(a, "r_poll0", 8, 13, 53, 1, sleep=4)
    a("s_mov_b32 s48, s40")
    call(a, "L_r_item")
    a("s_cmp_eq_u32 s40, 0")
    a("s_cbranch_scc1 L_m_done")
    a.label("L_r_st1")
    a("s_add_u32 s48, s40, 2")
    if SENT1:
        a("s_mov_b32 s73, 1")
        a("s_waitcnt vmcnt(1)")
    else:
        a("s_add_u32 s53, s53, 16")
        flag_poll(a, "r_poll1", 8, 13, 53, 1, sleep=4)
    stamp(a, 17)
    call(a, "L_r_item")
    a("s_branch L_m_done")
    a.label("L_m_roleB")
    stamp(a, 26); stamp_rt(a, 40)
    a("s_barrier")
    for k in range(BPRE): a_loads(a, k)
    mlp_setup(a)
    a("s_mul_i32 s53, s56, 73728")
    a("s_lshl_b32 s47, s40, 10")
    a("s_add_u32 s53, s53, s47")
    a(f"s_add_u32 s53, s53, {WS_Y}")
    a("v_add_u32 v11, s47, v3")
    a("v_add_u32 v12, s47, v4")
    YR = ACC
    def y_loads(stg):
        for st in range(6*stg, 6*stg + 6):
            a(f"s_add_u32 s46, s53, {st*4096}")
            a(f"buffer_load_dwordx4 {v(YR+4*st,4)}, v2, {s(ws,4)}, s46 offen sc1")
    a(f"s_waitcnt vmcnt({3*BPRE})")
    stamp(a, 10)
    for stg in range(3): y_loads(stg)
    for stg in range(3):
        a(f"s_mov_b32 s49, {POLL_MAX}")
        a(f"s_waitcnt vmcnt({12 - 6*stg})")
        a.label(f"L_y_chk{stg}")
        b = YR + 24*stg
        a(f"v_max3_u32 v13, v{b}, v{b+1}, v{b+2}")
        a(f"v_max3_u32 v8, v{b+3}, v{b+4}, v{b+5}")
        for i in range(6, 24, 4):
            a(f"v_max3_u32 v13, v13, v{b+i}, v{b+i+1}")
            if i + 3 < 24: a(f"v_max3_u32 v8, v8, v{b+i+2}, v{b+i+3}")
        a("v_max_u32 v13, v13, v8")
        a("v_cmp_eq_u32 vcc, -1, v13")
        a("s_sub_u32 s49, s49, 1")
        a(f"s_cbranch_scc1 L_y_ok{stg}")
        a("s_cmp_eq_u64 vcc, 0")
        a(f"s_cbranch_scc1 L_y_ok{stg}")
        a(f"s_sleep {YSLEEP}")
        y_loads(stg)
        a("s_waitcnt vmcnt(0)")
        a(f"s_branch L_y_chk{stg}")
        a.label(f"L_y_ok{stg}")
        for st in range(6*stg, 6*stg + 6):
            a(f"ds_write_b128 v{11 + st // 9}, {v(YR+4*st,4)} offset:{(st % 9)*4096}")
        if stg == 2:
            for k in range(BPRE, RDS - 1): a_loads(a, k)
        a("s_waitcnt lgkmcnt(0)")
        if stg == 0: stamp_rt(a, 43)
        a("s_barrier")
        if stg == 0: mark(a, "G1")
    a("s_setprio 2")
    a("s_add_u32 s68, s40, 4")
    bias_init(a)
    a("s_mov_b32 s69, 0")
    call(a, "L_m_pass")
    stamp(a, 12)
    a("s_setprio 0")
    call(a, "L_m_gelu")
    stamp(a, 13)
    to_gemm2(a)
    a("s_setprio 3")
    a("s_waitcnt lgkmcnt(0)")
    a("s_barrier")
    stamp(a, 11)
    a("s_mov_b32 s69, 2")
    call(a, "L_m_pass")
    a("s_setprio 0")
    a("s_mov_b32 s68, s40")
    stamp(a, 15)
    call(a, "L_m_cvt")
    if GATEB: a("s_barrier")
    call(a, "L_m_st")
    reduce_setup(a)
    if not GATEB:
        a("s_waitcnt vmcnt(0)")
        flag_store(a, WS_FP1, 11)
    stamp(a, 25)
    a("s_setprio 1")
    a("s_mov_b32 s69, 10")
    call(a, "L_m_pass")
    a("s_setprio 3")
    a("s_add_u32 s68, s40, 8")
    stamp(a, 16); stamp_rt(a, 46); mark(a, "M")
    call(a, "L_m_cvt")
    call(a, "L_m_st")
    a("s_cmp_eq_u32 s40, 3")
    a("s_cbranch_scc1 L_m_done")
    a("s_add_u32 s48, s40, 6")
    a("s_mov_b32 s73, 1")
    a("s_waitcnt vmcnt(0)")
    stamp_rt(a, 42)
    call(a, "L_r_item")
    a.label("L_m_done")

def subroutines(a):
    ws = WS_
    a.raw(".p2align 6")
    a.label("L_m_pass")
    def b_read(ks, a=a):
        b = BR + (ks % 3) * 16
        for q in range(4):
            a(f"ds_read_b128 {v(b+4*q,4)}, v{3 + ks // 9} offset:{(ks % 9)*4096 + q*1024}")
    def step(ks, loads):
        left = 3*(RDS-2) if loads else 3 * (17 - ks)
        a(f"s_waitcnt vmcnt({left}) lgkmcnt({4 if ks < 17 else 0})")
        b = BR + (ks % 3) * 16
        A = AR + 12 * (ks % RDS)
        R = Lst(); L = Lst()
        if ks + 2 < 18: b_read(ks + 2, R)
        if loads: a_loads(L, (ks - 1) % RDS)
        fill = {}
        for i, x in enumerate(R): fill[(0, 2, 4, 6)[i]] = x
        for i, x in enumerate(L): fill[(1, 5, 8, 10)[i]] = x
        n = 0
        for t in range(3):
            for q in range(4):
                mfma16(a, acc(t, q), A + 4*t, b + 4*q, CI + 4*t if ks == 0 else acc(t, q))
                if n in fill: a(fill[n])
                n += 1
    for ks in range(2): b_read(ks)
    for ks in range(18):
        if ks in (4, 10):
            a(f"s_bitcmp1_b32 s69, {0 if ks == 4 else 1}")
            a(f"s_cbranch_scc0 L_m_nb{ks}")
            a("s_barrier")
            a.label(f"L_m_nb{ks}")
            if ks == 10:
                a("s_bitcmp1_b32 s69, 3")
                a("s_cbranch_scc1 L_m_tail")
        step(ks, True)
    a("s_nop 7")
    a("s_setpc_b64 s[74:75]")
    a.label("L_m_tail")
    if GATEB:
        a("s_cmp_lg_u32 s41, 0")
        a("s_cbranch_scc1 L_m_nf")
        flag_store(a, WS_FP1, 11)
        a.label("L_m_nf")
    for ks in range(10, 18): step(ks, False)
    a("s_nop 7")
    a("s_setpc_b64 s[74:75]")
    a.label("L_m_gelu")
    a("s_mul_i32 s46, s68, 6")
    a("v_add_u32 v11, s46, v6")
    a("v_lshrrev_b32 v12, 2, v11")
    a("v_lshl_add_u32 v12, v12, 12, v9")
    a("v_and_b32 v11, 3, v11")
    a("v_lshl_add_u32 v11, v11, 8, v12")
    a(f"v_add_u32 v11, {L_H}, v11")
    a("s_add_u32 s46, s46, 4")
    a("v_add_u32 v12, s46, v7")
    a("v_lshrrev_b32 v13, 2, v12")
    a("v_lshl_add_u32 v13, v13, 12, v9")
    a("v_and_b32 v12, 3, v12")
    a("v_lshl_add_u32 v12, v12, 8, v13")
    a("v_and_b32 v13, 1, v6")
    a("v_lshl_add_u32 v12, v13, 3, v12")
    a(f"v_add_u32 v12, {L_H}, v12")
    for qq in range(2):
        for t in range(3):
            gelu(a, list(range(acc(t, 2*qq), acc(t, 2*qq) + 8)), GT, GT + 22)
        for q in (2*qq, 2*qq + 1):
            o = GT + 8 + (q & 1) * 6
            for r in range(4):
                a(f"v_cvt_pk_bf16_f32 v{o+r}, v{acc(0,q)+r}, v{acc(1,q)+r}")
            a(f"v_cvt_pk_bf16_f32 v{o+4}, v{acc(2,q)}, v{acc(2,q)+1}")
            a(f"v_cvt_pk_bf16_f32 v{o+5}, v{acc(2,q)+2}, v{acc(2,q)+3}")
            a(f"ds_write_b128 v11, {v(o,4)} offset:{q*1024}")
            a(f"ds_write_b64 v12, {v(o+4,2)} offset:{q*1024}")
    a("s_setpc_b64 s[74:75]")
    a.label("L_m_cvt")
    for q in range(4):
        o = GT + q * 4
        for r in range(4):
            a(f"v_cvt_pk_bf16_f32 v{o+r}, v{acc(0,q)+r}, v{acc(1,q)+r}")
        o2 = GT + 16 + (q >> 1) * 4 + (q & 1) * 2
        a(f"v_cvt_pk_bf16_f32 v{o2}, v{acc(2,q)}, v{acc(2,q)+1}")
        a(f"v_cvt_pk_bf16_f32 v{o2+1}, v{acc(2,q)+2}, v{acc(2,q)+3}")
    for b in (GT + 16, GT + 20):
        a(f"v_permlane16_swap_b32 v{b}, v{b+2}")
        a(f"v_permlane16_swap_b32 v{b+1}, v{b+3}")
    a("s_setpc_b64 s[74:75]")
    a.label("L_m_st")
    a("s_mul_i32 s46, s68, 768")
    a("s_add_u32 s46, s46, s71")
    for q in range(4):
        a(f"s_add_u32 s47, s46, {q*147456}")
        a(f"buffer_store_dwordx4 {v(GT+4*q,4)}, v14, {s(ws,4)}, s47 offen sc1")
        if not q & 1:
            a(f"buffer_store_dwordx4 {v(GT+16+(q>>1)*4,4)}, v15, {s(ws,4)}, s47 offen offset:512 sc1")
    a("s_nop 1")
    a("s_setpc_b64 s[74:75]")

def reduce_setup(a):
    srd(a, XS_, 22, D * 2)
    srd(a, 24, 6, S * D * 2)
    a("s_mov_b32 s76, 0xffff0000")
    a("s_lshl_b32 s46, s56, 8")
    a(f"s_add_u32 s53, s46, {WS_FP1}")
    a("v_lshlrev_b32 v8, 2, v1")
    a("v_and_b32 v8, 0xec, v8")
    a("s_mov_b32 s73, 0")

def reduce_item(a):
    ws = WS_
    a.label("L_r_item")
    R = ACC; Z = BR
    a("v_lshrrev_b32 v11, 3, v1")
    a("v_lshlrev_b32 v11, 4, v11")
    a("s_lshl_b32 s45, s48, 7")
    a(f"buffer_load_dwordx4 {v(R+32,4)}, v11, {s(XS_,4)}, s45 offen")
    a("s_mul_i32 s72, s57, 73728")
    a("s_lshl_b32 s47, s48, 10")
    a("s_add_u32 s72, s72, s47")
    a(f"s_add_u32 s72, s72, {WS_P}")
    a(f"s_add_u32 s47, s47, {L_HH}")
    a("v_add_u32 v12, s47, v2")
    a(f"ds_read_b128 {v(R+36,4)}, v12")
    a("s_mov_b32 s62, 0xff")
    a(f"s_mov_b32 s49, {POLL_MAX}")
    a.label("L_r_again")
    for i in range(8):
        a(f"s_bitcmp1_b32 s62, {i}")
        a(f"s_cbranch_scc0 L_r_sk{i}")
        a(f"s_add_u32 s46, s72, {i*9216}")
        a(f"buffer_load_dwordx4 {v(R+4*i,4)}, v2, {s(ws,4)}, s46 offen sc1")
        a.label(f"L_r_sk{i}")
    a("s_cmp_eq_u32 s73, 0")
    a("s_cbranch_scc1 L_r_have")
    a("s_waitcnt vmcnt(0)")
    a("s_mov_b32 s62, 0")
    for i in range(8):
        a(f"v_max3_u32 v13, v{R+4*i}, v{R+4*i+1}, v{R+4*i+2}")
        a(f"v_max_u32 v13, v13, v{R+4*i+3}")
        a("v_cmp_eq_u32 vcc, -1, v13")
        a("s_nop 1")
        a("s_cmp_lg_u64 vcc, 0")
        a(f"s_cselect_b32 s46, {1 << i}, 0")
        a("s_or_b32 s62, s62, s46")
    a("s_cbranch_scc0 L_r_have")
    a(f"s_sleep {RSLEEP}")
    a("s_sub_u32 s49, s49, 1")
    a("s_cbranch_scc0 L_r_again")
    a.label("L_r_have")
    stamp_rt(a, 45)
    a("v_mad_u32_u24 v11, v5, s44, v11")
    a("s_mul_i32 s46, s57, 9216")
    a("s_add_u32 s46, s46, s45")
    a("s_waitcnt lgkmcnt(0)")
    for r in range(4):
        a(f"v_lshlrev_b32 v{Z+2*r}, 16, v{R+36+r}")
        a(f"v_and_b32 v{Z+1+2*r}, s76, v{R+36+r}")
    for k, i in enumerate([8] + list(range(8))):
        a(f"s_waitcnt vmcnt({8-k})")
        for r in range(4):
            a(f"v_lshlrev_b32 v{Z+12}, 16, v{R+4*i+r}")
            a(f"v_and_b32 v{Z+13}, s76, v{R+4*i+r}")
            a(f"v_add_f32 v{Z+2*r}, v{Z+2*r}, v{Z+12}")
            a(f"v_add_f32 v{Z+1+2*r}, v{Z+1+2*r}, v{Z+13}")
    for r in range(4):
        a(f"v_cvt_pk_bf16_f32 v{Z+8+r}, v{Z+2*r}, v{Z+1+2*r}")
    a(f"buffer_store_dwordx4 {v(Z+8,4)}, v11, s[24:27], s46 offen {OUTMOD}")
    a("s_nop 1")
    a("s_setpc_b64 s[74:75]")

def k_main(name):
    a = Asm()
    kernel_head(a, name)
    a("s_cmp_ge_u32 s2, 256")
    a("s_cbranch_scc1 L_end")
    stamp_first(a)
    mark(a, "start")
    prologue(a)
    stamp_init(a, 0)
    attention(a)
    mlp(a)
    stamp_dump(a, 2)
    diag_end(a)
    a.label("L_end")
    a("s_endpgm")
    subroutines(a)
    reduce_item(a)
    return a.finish(), descriptor(name, 256, 80)
```

```python
from common import *
from k_pack import *
import math

QSCALE = math.log2(math.e) / math.sqrt(DH)
LDS_QKV = 163840
LX = 0; LW = 73728; LE = LW + 17 * 5120
assert LE + 1280 + 512 <= LDS_QKV
MAIN_CODE_KB = [0]
QDBG = int(os.environ.get("QDBG", "0"))

def k_qkv(name):
    a = Asm()
    kernel_head(a, name)
    XF = 16
    AF = 28
    ACC = 64
    GRAM = 76; CS = 80; ONES = 100; G17 = 104; WOR = 104; T = 120
    a("s_cmp_ge_u32 s2, 256")
    a("s_cbranch_scc1 L_q_end")
    stamp_first(a)
    if os.environ.get("QDIAG"):
        a("s_memrealtime s[82:83]")
    a(f"s_load_dwordx8 s[4:11], s[0:1], {KA['x']}")
    a(f"s_load_dwordx2 s[12:13], s[0:1], {KA['ws']}")
    a(f"s_load_dwordx2 s[14:15], s[0:1], {KA['wo']}")
    a("v_and_b32 v1, 63, v0")
    a("v_lshrrev_b32 v7, 6, v0")
    a("v_readfirstlane_b32 s3, v7")
    stamp_init(a, 127)
    a("s_and_b32 s40, s2, 31")
    a("s_lshr_b32 s41, s2, 5")
    a("s_movk_i32 s44, 1152")
    a("s_lshl_b32 s42, s40, 6")
    a("s_and_b32 s43, s3, 3")
    a("v_lshlrev_b32 v6, 4, v1")
    a("v_lshrrev_b32 v10, 4, v1")
    a("v_and_b32 v11, 15, v1")
    a("s_cmp_ge_u32 s3, 12")
    a("s_cbranch_scc1 L_q_aux")
    a("s_cmp_ge_u32 s3, 4")
    a("s_cbranch_scc1 L_q_compute")
    a("v_lshrrev_b32 v8, 3, v1")
    a("v_and_b32 v9, 7, v1")
    a("v_xor_b32 v12, v9, v8")
    a("v_lshlrev_b32 v12, 4, v12")
    a("v_mad_u32_u24 v12, v8, s44, v12")
    a("v_and_b32 v13, 2, v8")
    a("v_xor_b32 v13, v9, v13")
    a("v_lshlrev_b32 v13, 4, v13")
    a("v_mad_u32_u24 v13, v8, s44, v13")
    a("v_xor_b32 v14, 64, v13")
    a(f"v_add_u32 v14, {8*1152}, v14")
    a("s_lshr_b32 s45, s40, 3")
    a("s_add_u32 s60, s45, s41")
    a("s_lshl_b32 s45, s43, 4")
    a("s_add_u32 s46, s42, s45")
    a("s_mul_i32 s46, s46, 1152")
    a(f"s_mul_i32 s47, s43, {32*1152}")
    a("s_lshl_b32 s48, s41, 7")
    a("s_add_u32 s47, s47, s48")
    a("s_lshl_b32 s50, s43, 11")
    a("s_mul_i32 s51, s43, 5120")
    a(f"s_add_u32 s51, s51, {LW}")
    a("s_waitcnt lgkmcnt(0)")
    if PROF: ws_shift(a)
    srd(a, 16, 4, S * D * 2)
    srd(a, 20, 6, D * D * 2)
    first = [True]
    def round_issue(rho):
        if rho < 4:
            a(f"s_add_u32 s61, s60, {rho}")
            a("s_and_b32 s61, s61, 3")
        else:
            a("s_mov_b32 s61, 4")
        a("s_lshl_b32 s62, s61, 8")
        a("s_add_u32 s62, s62, s46")
        a(f"s_mul_i32 s63, s61, {128*1152}")
        a("s_add_u32 s63, s63, s47")
        a(f"s_add_u32 s64, s62, {8*1152}")
        def dx(h):
            kp = 2*rho + h
            a(f"s_add_u32 m0, s50, {LX + kp*8192 - h*128}")
            a(f"buffer_load_dwordx4 v12, s[16:19], s62 offen offset:{h*128} lds")
            a(f"s_add_u32 m0, s50, {LX + kp*8192 + 1024 - h*128}")
            a(f"buffer_load_dwordx4 v12, s[16:19], s64 offen offset:{h*128} lds")
        dx(0)
        if rho == 4:
            a("s_cmp_lg_u32 s43, 0")
            a("s_cbranch_scc1 L_q_g17")
        for p in range(4):
            a(f"s_add_u32 m0, s51, {rho*20480 + p*1024}")
            if p == 2: a(f"s_add_u32 s63, s63, {16*1152}")
            a(f"buffer_load_dwordx4 v{13 + (p & 1)}, s[20:23], s63 offen lds")
        if first[0]:
            first[0] = False
            a("s_cmp_lt_u32 s41, 6")
            a("s_cselect_b32 s24, s8, s10")
            a("s_cselect_b32 s25, s9, s11")
            a("s_cmp_lt_u32 s41, 4")
            a("s_cselect_b32 s24, s6, s24")
            a("s_cselect_b32 s25, s7, s25")
            csel(a, 26, D * D * 2, D * DH * 2)
            csel(a, 54, 1152, 36)
            a("s_lshl_b32 s55, s41, 5")
            a("s_add_u32 s56, s55, 1024")
            a("s_and_b32 s55, s55, 32")
            a("s_cmp_lt_u32 s41, 4")
            a("s_cselect_b32 s55, s56, s55")
            a("s_and_b32 s25, s25, 0xffff")
            a("s_mov_b32 s27, 0x00020000")
            a("s_lshl_b32 s56, s43, 5")
            a("s_mul_i32 s56, s56, s54")
            a("s_add_u32 s55, s55, s56")
            a("s_lshl_b32 s56, s54, 7")
            a("v_lshrrev_b32 v8, 1, v1")
            a("v_lshrrev_b32 v9, 2, v1")
            a("v_and_b32 v9, 4, v9")
            a("v_xor_b32 v8, v8, v9")
            a("v_and_b32 v9, 1, v1")
            a("v_lshlrev_b32 v9, 4, v9")
            a("v_mad_u32_u24 v15, v8, s54, v9")
        a("s_mul_i32 s65, s61, s56")
        a("s_add_u32 s65, s65, s55")
        a(f"s_add_u32 m0, s51, {rho*20480 + 4096}")
        a("buffer_load_dwordx4 v15, s[24:27], s65 offen lds")
        if rho < 4: dx(1)
        else:
            a("s_branch L_q_issued")
            a.label("L_q_g17")
            for p in range(4):
                if p == 2: a(f"s_add_u32 s63, s63, {16*1152}")
                a(f"buffer_load_dwordx4 {v(G17+4*p,4)}, v{13 + (p & 1)}, s[20:23], s63 offen")
            a("s_mul_i32 s65, s61, s56")
            a("s_add_u32 s65, s65, s55")
            a(f"buffer_load_dwordx4 {v(G17+16,4)}, v15, s[24:27], s65 offen")
            a.label("L_q_issued")
    round_issue(0); round_issue(1)
    stamp(a, 1)
    for rho in range(4):
        a(f"s_waitcnt vmcnt({9 if rho < 3 else 7})")
        a("s_barrier")
        if rho == 0: stamp(a, 4)
        if rho < 3: round_issue(rho + 2)
    a("s_waitcnt vmcnt(0)")
    a("s_cmp_lg_u32 s43, 1")
    a("s_cbranch_scc1 L_q_nog17")
    a(f"v_add_u32 v9, {LW}, v6")
    for p in range(5):
        a(f"ds_write_b128 v9, {v(G17+4*p,4)} offset:{p*1024}")
    a("s_waitcnt lgkmcnt(0)")
    a.label("L_q_nog17")
    a("s_barrier")
    stamp(a, 8)
    a("s_branch L_q_fin")
    a.label("L_q_aux")
    tr_addrs(a, "0")
    a("v_xor_b32 v7, 64, v2")
    a("v_xor_b32 v8, 64, v3")
    a("s_mul_i32 s45, s43, 5120")
    for r in (2, 3, 4, 5, 7, 8): a(f"v_add_u32 v{r}, s45, v{r}")
    for i in range(4): a(f"v_mov_b32 v{ONES+i}, 0x3f803f80")
    a("s_waitcnt lgkmcnt(0)")
    ws_shift(a)
    srd(a, 32, 12, WS_END)
    for i in range(4): a(f"v_mov_b32 v{116+i}, -1")
    a("s_mul_i32 s45, s2, 9216")
    a("s_lshl_b32 s46, s43, 11")
    a("s_add_u32 s45, s45, s46")
    a(f"s_add_u32 s45, s45, {WS_Y}")
    for i in range(3 if os.environ.get("YSENT", "1") == "1" else 0):
        a(f"buffer_store_dwordx4 v[116:119], v6, s[32:35], s45 offen offset:{i*1024} {os.environ.get('YSMOD', '')}")
    srd(a, 36, 14, D * D * 2)
    a("s_lshl_b32 s57, s43, 8")
    a("s_add_u32 s57, s57, s2")
    a("s_min_u32 s70, s57, 647")
    W = Lst()
    wo_job_loads(W, 70, 36, 71, 58, 1, 9, 12, 48)
    k0 = [i for i, x in enumerate(W) if x.startswith("buffer_load")][0]
    for x in W[:k0]: a(x)
    a("s_getpc_b64 s[66:67]")
    a.label("L_q_pc")
    a("s_lshr_b32 s68, s2, 3")
    a("s_lshl_b32 s68, s68, 2")
    a("s_add_u32 s68, s68, s43")
    a(f"s_min_u32 s68, s68, {MAIN_CODE_KB[0] - 1}")
    a("s_lshl_b32 s68, s68, 10")
    a("s_add_u32 s68, s68, main_kernel - L_q_pc")
    a("s_add_u32 s66, s66, s68")
    a("s_addc_u32 s67, s67, 0")
    a(f"s_load_dwordx2 s[16:17], s[0:1], {KA['w1']}")
    a(f"s_load_dwordx2 s[18:19], s[0:1], {KA['w2']}")
    a("s_waitcnt lgkmcnt(0)")
    a("s_bitcmp1_b32 s43, 0")
    a("s_cselect_b32 s20, s16, s18")
    a("s_cselect_b32 s21, s17, s19")
    a("s_and_b32 s21, s21, 0xffff")
    a(f"s_mov_b32 s22, {D*F*2}")
    a("s_mov_b32 s23, 0x00020000")
    a("s_mov_b32 s45, 0x14400")
    a("v_mul_lo_u32 v13, v1, s45")
    a("s_mul_i32 s45, s43, 320")
    a(f"s_add_u32 s45, s45, {LE}")
    a("v_lshl_add_u32 v12, v10, 4, s45")
    a("s_mov_b32 s60, 0x00010001")
    a("s_mov_b32 s61, 0x00010001")
    def cs_round(rho):
        off = rho * 20480 if rho < 3 else 0
        if rho == 3:
            for r in (2, 3, 4, 5, 7, 8): a(f"v_add_u32 v{r}, 61440, v{r}")
        if rho == 4:
            a("s_cmp_ge_u32 s43, 2")
            a("s_cbranch_scc1 L_q_cs_skip")
            a("s_cmp_eq_u32 s43, 0")
            csel(a, 45, 20480, (-(61440 + 5120)) & 0xffffffff)
            for r in (2, 3, 4, 5, 7, 8): a(f"v_add_u32 v{r}, s45, v{r}")
        for t, r in enumerate((2, 3, 7, 8)):
            a(f"ds_read_b64_tr_b16 {v(AF+4*t,2)}, v{r} offset:{off}")
            a(f"ds_read_b64_tr_b16 {v(AF+4*t+2,2)}, v{r} offset:{off + 512}")
        a(f"ds_read_b64_tr_b16 {v(AF+16,2)}, v4 offset:{off}")
        a(f"ds_read_b64_tr_b16 {v(AF+18,2)}, v5 offset:{off}")
        a("s_waitcnt lgkmcnt(0)")
        for t in range(5):
            mfma16(a, CS + 4*t, AF + 4*t, ONES, None if rho == 0 else CS + 4*t)
        if rho == 4: a.label("L_q_cs_skip")
    for rho in range(5):
        a("s_barrier")
        if rho == 3:
            for x in W[k0:]: a(x)
            a(f"global_load_dword v124, v6, s[66:67]")
            if os.environ.get("TOUCH", "0") == "1":
                a("buffer_load_dword v125, v13, s[20:23], 0 offen")
        cs_round(rho)
    a("s_nop 7")
    a("s_mov_b64 exec, s[60:61]")
    for t in range(5):
        a(f"ds_write_b128 v12, {v(CS+4*t,4)} offset:{t*64}")
    a("s_mov_b64 exec, -1")
    a("s_waitcnt lgkmcnt(0)")
    a("s_barrier")
    stamp(a, 9)
    a("s_cmp_ge_u32 s57, 648")
    a("s_cbranch_scc1 L_q_fin")
    a(f"s_waitcnt vmcnt({2 if os.environ.get('TOUCH', '0') == '1' else 1})")
    merge_store(a, 48, 56, 32, 6, 58)
    a("s_cmp_ge_u32 s57, 28")
    a("s_cbranch_scc1 L_q_fin")
    for i in range(4): a(f"v_mov_b32 v{116+i}, 0")
    a("s_lshl_b32 s45, s57, 10")
    a(f"s_add_u32 s45, s45, {WS_FLAGS}")
    a(f"buffer_store_dwordx4 v[116:119], v6, s[32:35], s45 offen")
    a("s_branch L_q_fin")
    a.label("L_q_compute")
    a("s_getpc_b64 s[66:67]")
    a.label("L_q_pc2")
    a(f"s_sub_u32 s66, s66, L_q_pc2 - {name}")
    a("s_subb_u32 s67, s67, 0")
    a("s_sub_u32 s59, s3, 4")
    a("s_lshl_b32 s45, s59, 10")
    a("v_add_u32 v2, s45, v6")
    a(f"global_load_dwordx4 {v(T,4)}, v2, s[66:67]")
    a("v_and_b32 v12, 7, v1")
    a("v_xor_b32 v12, v10, v12")
    a("v_lshlrev_b32 v12, 4, v12")
    a("v_lshl_add_u32 v7, v11, 7, v12")
    a("s_lshl_b32 s45, s43, 11")
    a("v_add_u32 v7, s45, v7")
    a("v_xor_b32 v8, 64, v7")
    a("s_lshr_b32 s45, s59, 2")
    a("s_lshl_b32 s45, s45, 1")
    tr_addrs(a, "s45")
    for i in range(4): a(f"v_mov_b32 v{ONES+i}, 0x3f803f80")
    a("s_lshl_b32 s45, s43, 4")
    a("s_add_u32 s42, s42, s45")
    a("v_add_u32 v9, s42, v11")
    a("s_lshl_b32 s46, s43, 7")
    a(f"s_add_u32 s46, s46, {LE + 1280}")
    a("v_lshl_add_u32 v13, v11, 3, s46")
    a(f"v_lshlrev_b32 v12, 4, v10")
    a(f"v_add_u32 v12, {LE}, v12")
    a("v_and_b32 v14, 3, v1")
    a("v_cmp_eq_u32 s[60:61], 1, v14")
    a("v_cmp_eq_u32 s[62:63], 2, v14")
    a("v_cmp_eq_u32 s[64:65], 3, v14")
    a("v_bfe_u32 v15, v1, 2, 2")
    a("v_cmp_eq_u32 s[68:69], v15, v10")
    a("v_and_b32 v14, 1, v10")
    a("v_lshlrev_b32 v14, 5, v14")
    a("v_lshrrev_b32 v15, 1, v10")
    a("v_lshl_add_u32 v14, v15, 4, v14")
    a(f"v_mad_u32_u24 v{T+4}, v9, s44, v14")
    a("s_waitcnt lgkmcnt(0)")
    ws_shift(a)
    srd(a, 32, 12, WS_END)
    a("s_cmp_ge_u32 s59, 4")
    a("s_cbranch_scc1 L_q_nh1")
    for nh in range(2):
        if nh: a.label("L_q_nh1")
        nt = 3 - nh
        nr = 7 if nh == 0 else 5
        wregs = (2, 3, 4, 5) if nh == 0 else (2, 3)
        def reads(sx):
            if QDBG & 1:
                if sx == 0:
                    for _ in range(5): a("s_barrier")
                    stamp(a, 4)
            elif sx % 4 == 0:
                a("s_barrier")
                if sx == 0: stamp(a, 4)
            if sx in (8, 16):
                a("v_add_u32 v7, 32768, v7"); a("v_add_u32 v8, 32768, v8")
                for r in wregs: a(f"v_add_u32 v{r}, 40960, v{r}")
            if sx == 17:
                for r in wregs: a(f"v_subrev_u32 v{r}, 81920, v{r}")
            xb = XF + (sx % 3) * 4; ab = AF + (sx % 3) * 12
            kp = (sx >> 1) % 4; G = (sx % 8) if sx < 17 else 0
            a(f"ds_read_b128 {v(xb,4)}, v{7 + (sx & 1)} offset:{kp*8192}")
            for t in range(2):
                a(f"ds_read_b64_tr_b16 {v(ab+4*t,2)}, v{2+t} offset:{G*5120}")
                a(f"ds_read_b64_tr_b16 {v(ab+4*t+2,2)}, v{2+t} offset:{G*5120 + 512}")
            if nh == 0:
                a(f"ds_read_b64_tr_b16 {v(ab+8,2)}, v4 offset:{G*5120}")
                a(f"ds_read_b64_tr_b16 {v(ab+10,2)}, v5 offset:{G*5120}")
        reads(0); reads(1)
        for sx in range(18):
            a(f"s_waitcnt lgkmcnt({nr if sx < 17 else 0})")
            xb = XF + (sx % 3) * 4; ab = AF + (sx % 3) * 12
            for t in range(nt):
                if not QDBG & 2: mfma16(a, ACC + 4*t, ab + 4*t, xb, None if sx == 0 else ACC + 4*t)
            if nh == 1 and not QDBG & 2:
                mfma16(a, ACC + 8, ONES, xb, None if sx == 0 else ACC + 8)
                mfma16(a, GRAM, xb, xb, None if sx == 0 else GRAM)
            if sx + 2 < 18: reads(sx + 2)
        stamp(a, 7)
        if nh == 1:
            a(f"v_cndmask_b32 v15, v{GRAM}, v{GRAM+1}, s[60:61]")
            a(f"v_cndmask_b32 v15, v15, v{GRAM+2}, s[62:63]")
            a(f"v_cndmask_b32 v15, v15, v{GRAM+3}, s[64:65]")
            a(f"v_mul_f32 v14, {fbits(1.0/D)}, v{ACC+8}")
            a(f"v_mul_f32 v15, {fbits(1.0/D)}, v15")
            a("v_fma_f32 v15, -v14, v14, v15")
            a("v_max_f32 v15, 0, v15")
            a(f"v_add_f32 v15, {fbits(1e-5)}, v15")
            a("v_rsq_f32 v15, v15")
            a("s_mov_b64 exec, s[68:69]")
            a("ds_write_b64 v13, v[14:15]")
            a("s_mov_b64 exec, -1")
            a("s_waitcnt lgkmcnt(0)")
        a("s_barrier")
        stamp(a, 9)
        tiles = (0, 1, 4) if nh == 0 else (2, 3)
        a("ds_read_b64 v[14:15], v13")
        for t, tl in enumerate(tiles):
            for w in range(4):
                a(f"ds_read_b128 {v(16 + t*16 + w*4, 4)}, v12 offset:{w*320 + tl*64}")
        a("s_lshl_b32 s46, s41, 7")
        a(f"s_add_u32 s46, s46, {WS_Q + nh*64}")
        a(f"s_waitcnt lgkmcnt({4*nt})")
        a("v_mov_b32 v13, v15")
        a(f"v_mul_f32 v15, {fbits(QSCALE)}, v15")
        for t in range(nt):
            a(f"s_waitcnt lgkmcnt({4*(nt-1-t)})")
            b = 16 + t*16
            for i in range(4):
                a(f"v_add_f32 v{b+i}, v{b+i}, v{b+4+i}")
                a(f"v_add_f32 v{b+8+i}, v{b+8+i}, v{b+12+i}")
            for i in range(4):
                a(f"v_add_f32 v{b+i}, v{b+i}, v{b+8+i}")
            for i in range(4):
                a(f"v_fma_f32 v{ACC+4*t+i}, -v14, v{b+i}, v{ACC+4*t+i}")
            if t < 2:
                for i in range(4):
                    a(f"v_mul_f32 v{ACC+4*t+i}, v{ACC+4*t+i}, v15")
                a(f"v_cvt_pk_bf16_f32 v{CS+2*t}, v{ACC+4*t}, v{ACC+4*t+1}")
                a(f"v_cvt_pk_bf16_f32 v{CS+2*t+1}, v{ACC+4*t+2}, v{ACC+4*t+3}")
            if t == 1:
                a(f"v_permlane16_swap_b32 v{CS}, v{CS+2}")
                a(f"v_permlane16_swap_b32 v{CS+1}, v{CS+3}")
                a(f"buffer_store_dwordx4 {v(CS,4)}, v{T+4}, s[32:35], s46 offen")
        if nh == 0:
            special(a, ACC + 8, CS + 4)
    a.label("L_q_fin")
    if os.environ.get("QDIAG") == "1":
        a("s_cmp_lt_u32 s3, 4")
        a("s_cbranch_scc1 L_q_end")
        a("s_waitcnt vmcnt(0)")
        a("s_memrealtime s[86:87]")
        a("s_waitcnt lgkmcnt(0)")
        a("s_sub_u32 s84, s86, s82")
        a("s_min_u32 s84, s84, 20000")
        a.label("L_qdiag")
        a("s_memrealtime s[88:89]")
        a("s_waitcnt lgkmcnt(0)")
        a("s_sub_u32 s88, s88, s86")
        a("s_cmp_lt_u32 s88, s84")
        a("s_cbranch_scc1 L_qdiag")
    if os.environ.get("QDIAG") == "2":
        a("s_cmp_lg_u32 s3, 12")
        a("s_cbranch_scc1 L_q_end")
        a("s_cmp_lg_u32 s2, 0")
        a("s_cbranch_scc1 L_q_end")
        a("s_mov_b64 exec, 1")
        a("v_mov_b32 v2, 0")
        a("v_mov_b32 v3, s82")
        a(f"s_mov_b32 s45, {WS_KMAX + 2048}")
        a("buffer_store_dword v3, v2, s[32:35], s45 offen")
    stamp_dump(a, 1)
    a.label("L_q_end")
    a("s_endpgm")
    return a.finish(), descriptor(name, 128, 80)

def tr_addrs(a, t0):
    a("v_bfe_u32 v16, v1, 2, 2")
    a("v_lshl_add_u32 v17, v10, 3, v16")
    a("v_lshrrev_b32 v18, 1, v16")
    a("v_and_b32 v19, 1, v10")
    a("v_lshl_add_u32 v18, v19, 1, v18")
    a(f"v_xor_b32 v18, {t0}, v18")
    a("v_lshlrev_b32 v18, 5, v18")
    a("v_lshl_add_u32 v2, v17, 7, v18")
    a("v_and_b32 v18, 3, v1")
    a("v_lshl_add_u32 v2, v18, 3, v2")
    a(f"v_add_u32 v2, {LW}, v2")
    a("v_xor_b32 v3, 32, v2")
    a("v_lshlrev_b32 v19, 2, v19")
    a("v_xor_b32 v17, v17, v19")
    a("v_lshlrev_b32 v4, 5, v17")
    a("v_lshl_add_u32 v4, v18, 3, v4")
    a(f"v_add_u32 v4, {LW + 4096}, v4")
    a("v_xor_b32 v5, 128, v4")

def special(a, A, Pk):
    a("s_cmp_lt_u32 s41, 4")
    a("s_cselect_b64 vcc, -1, 0")
    a("v_cndmask_b32 v13, v13, v15, vcc")
    for i in range(4): a(f"v_mul_f32 v{A+i}, v{A+i}, v13")
    a(f"v_cvt_pk_bf16_f32 v{Pk}, v{A}, v{A+1}")
    a(f"v_cvt_pk_bf16_f32 v{Pk+1}, v{A+2}, v{A+3}")
    a("s_cbranch_scc0 L_q_kv")
    a("v_lshlrev_b32 v2, 3, v10")
    a("v_mad_u32_u24 v2, v9, s44, v2")
    a("s_lshl_b32 s46, s41, 5")
    a(f"s_add_u32 s46, s46, {WS_Q + 1024}")
    a(f"buffer_store_dwordx2 {v(Pk,2)}, v2, s[32:35], s46 offen")
    a("s_branch L_q_fin")
    a.label("L_q_kv")
    a("s_lshr_b32 s45, s42, 7")
    a(f"s_mul_i32 s45, s45, {KV_BLK}")
    a(f"s_add_u32 s45, s45, {WS_KV}")
    a("s_bfe_u32 s46, s42, 0x20005")
    a("v_and_b32 v2, 31, v9")
    a("s_cmp_ge_u32 s41, 6")
    a("s_cbranch_scc1 L_q_v")
    sigma_v(a, 3, 2, 4, 5)
    a(f"v_mul_f32 v14, v{A}, v{A}")
    a(f"v_fmac_f32 v14, v{A+1}, v{A+1}")
    a("s_lshr_b32 s49, s42, 2")
    a(f"s_add_u32 s49, s49, {WS_KMAX}")
    a("s_cmp_eq_u32 s41, 5")
    a("s_cbranch_scc1 L_q_k1")
    a("v_lshrrev_b32 v4, 1, v10")
    a("v_lshl_add_u32 v4, v4, 5, v3")
    a("v_lshlrev_b32 v4, 4, v4")
    a("v_and_b32 v5, 1, v10")
    a("v_lshl_add_u32 v4, v5, 3, v4")
    a("s_lshl_b32 s47, s46, 10")
    a("s_add_u32 s47, s47, s45")
    a(f"buffer_store_dwordx2 {v(Pk,2)}, v4, s[32:35], s47 offen")
    a(f"v_fmac_f32 v14, v{A+2}, v{A+2}")
    a(f"v_fmac_f32 v14, v{A+3}, v{A+3}")
    a("v_mov_b32 v15, v14")
    a("v_permlane32_swap_b32 v14, v15")
    a("v_add_f32 v14, v14, v15")
    a("v_mov_b32 v15, v14")
    a("v_permlane16_swap_b32 v14, v15")
    a("v_add_f32 v14, v14, v15")
    a("s_branch L_q_kmax")
    a.label("L_q_k1")
    a("v_lshlrev_b32 v3, 4, v3")
    a("s_lshl_b32 s48, s46, 2")
    a("s_add_u32 s48, s48, s45")
    a("s_add_u32 s48, s48, 4096")
    a("s_add_u32 s49, s49, 512")
    a("s_mov_b64 exec, 0xffff")
    a(f"buffer_store_dword v{Pk}, v3, s[32:35], s48 offen")
    a("s_mov_b64 exec, -1")
    a.label("L_q_kmax")
    a("s_nop 1")
    for rr in (8, 4, 2, 1):
        a(f"v_max_f32_dpp v14, v14, v14 row_ror:{rr} row_mask:0xf bank_mask:0xf")
    a("v_mov_b32 v2, 0")
    a("s_mov_b64 exec, 1")
    a("buffer_store_dword v14, v2, s[32:35], s49 offen")
    a("s_branch L_q_fin")
    a.label("L_q_v")
    a("v_lshrrev_b32 v5, 3, v2")
    a("v_mul_u32_u24 v5, 304, v5")
    a("v_and_b32 v4, 7, v2")
    a("v_lshl_add_u32 v5, v4, 1, v5")
    a("s_mul_i32 s47, s46, 1216")
    a("s_add_u32 s47, s47, s45")
    a("s_add_u32 s47, s47, 4608")
    a("s_cmp_eq_u32 s41, 7")
    a("s_cbranch_scc1 L_q_v1")
    a("v_lshl_add_u32 v4, v10, 6, v5")
    a(f"buffer_store_short v{Pk}, v4, s[32:35], s47 offen")
    a(f"buffer_store_short_d16_hi v{Pk}, v4, s[32:35], s47 offen offset:16")
    a(f"buffer_store_short v{Pk+1}, v4, s[32:35], s47 offen offset:32")
    a(f"buffer_store_short_d16_hi v{Pk+1}, v4, s[32:35], s47 offen offset:48")
    a("s_branch L_q_fin")
    a.label("L_q_v1")
    a("v_mov_b32 v4, 0x3f80")
    a("s_mov_b64 exec, 0xffff")
    a(f"buffer_store_short v{Pk}, v5, s[32:35], s47 offen offset:256")
    a(f"buffer_store_short_d16_hi v{Pk}, v5, s[32:35], s47 offen offset:272")
    a(f"buffer_store_short v4, v5, s[32:35], s47 offen offset:288")
    a("s_branch L_q_fin")
```

```python
from common import *
from k_pack import *
import math

MAPPING = os.environ.get("MAPPING", "B")
VZERO = os.environ.get("VZERO", "1") == "1"
WMOD = os.environ.get("WMOD", "sc1")
PKGELU = os.environ.get("PKGELU", "0") == "1"
PACE = int(os.environ.get("PACE", "1"))
DBG = int(os.environ.get("DBG", "0"))
YMOD = os.environ.get("YMOD", "")
GATEA = os.environ.get("GATEA", "1") == "1"
PK_T = tuple(int(x) for x in os.environ.get("PK_T", "4,6,8").split(","))
RSLEEP = int(os.environ.get("RSLEEP", "4"))
TOUCH = os.environ.get("TOUCH", "0") == "1"
BLOAD = os.environ.get("BLOAD", "1") == "1"
EARLY0 = os.environ.get("SENT1", "0") == "1"
OUTMOD = os.environ.get("OUTMOD", "")
SENT1 = os.environ.get("SENT1", "0") == "1"
YSLEEP = int(os.environ.get("YSLEEP", "2"))
TAILK = int(os.environ.get("TAILK", "3"))
BPRE = int(os.environ.get("BPRE", "0"))
RELOAD = os.environ.get("RELOAD", "0") == "1"
GATEB = os.environ.get("GATEB", "1") == "1"
SENT2 = os.environ.get("SENT2", "1") == "1"
PKMOD = os.environ.get("PKMOD", "sc1")
NOGELU = os.environ.get("NOGELU", "0") == "1"
LDS_MAIN = 163840
L_OS = KV_BYTES
L_CP = L_OS + 8 * 608
L_ST = L_CP + 6144
L_CNT = L_ST + 512
L_Y = 0; L_H = 73728; L_B1 = 147456; L_B1D = L_B1 + 2304; L_HH = L_B1 + 4608
assert L_HH + 9216 <= L_ST and L_CNT + 16 <= LDS_MAIN
WS_, XS_ = 32, 36
KA_, KR_, VA_ = 2, 3, 4
Q2POS = {2: 10, 0: 12, 3: 14, 1: 16}; QX = (12, 17)
Q1 = 20; SB = (24, 40); P = 56; O = 64; KB = (80, 84); KRB = (88, 92); VB = (96, 104)
TPI = 16
CI = 16; AR = 28; ACC = 136; BR = 184; GT = 232
RDS = 9
WSR = 64
C0 = -2.0 * 0.7978845608028654 * math.log2(math.e)
C1 = C0 * 0.044715
POLL_MAX = 1 << 20

def koff(t): return (t >> 2) * KV_BLK + (t & 3) * 1024
def kroff(blk): return blk * KV_BLK
def voff(t, mf): return (t >> 2) * KV_BLK + (t & 3) * 1216 + mf * 608

def tile(a, t, bg=None, nbg=0):
    Sc = SB[t & 1]; Sn = SB[(t + 1) & 1]
    def B(k):
        while bg and k > 0:
            x = bg.pop(0); a(x)
            if not x.startswith("s_"): k -= 1
    ex = lambda i: a(f"v_exp_f32 v{Sc+i}, v{Sc+i}")
    cv = lambda i: a(f"v_cvt_pk_bf16_f32 v{P+i}, v{Sc+2*i}, v{Sc+2*i+1}")
    a(f"s_waitcnt lgkmcnt({2 if (t & 3) == 2 else 1})")
    mfma32(a, Sn, KB[(t + 1) & 1], Q1, None)
    a(f"ds_read_b128 {v(VB[(t+1) & 1],4)}, v{VA_} offset:{voff(t+1,0)}")
    for i in range(0, 4): ex(i)
    mfma32(a, O, VB[(t + 1) & 1] + 4, P + 4, O)
    a(f"ds_read_b128 {v(VB[(t+1) & 1]+4,4)}, v{VA_} offset:{voff(t+1,1)}")
    cv(0); cv(1)
    for i in range(4, 8): ex(i)
    mfma32(a, Sn, KRB[((t + 1) >> 2) & 1], Q2POS[(t + 1) & 3], Sn)
    a(f"ds_read_b128 {v(KB[(t+1) & 1],4)}, v{KA_} offset:{koff(t+3)}")
    cv(2); cv(3)
    for i in range(8, 12): ex(i)
    mfma32(a, O, VB[t & 1], P, O)
    if (t & 3) == 1:
        a(f"ds_read_b128 {v(KRB[((t>>2)+1) & 1],4)}, v{KR_} offset:{kroff((t>>2)+1)}")
    cv(4); cv(5)
    for i in range(12, 16): ex(i)
    cv(6); cv(7)

def pipe_start(a):
    a(f"ds_read_b128 {v(KB[0],4)}, v{KA_} offset:{koff(0)}")
    a(f"ds_read_b128 {v(KRB[0],4)}, v{KR_} offset:{kroff(0)}")
    a(f"ds_read_b128 {v(KB[1],4)}, v{KA_} offset:{koff(1)}")
    a(f"ds_read_b128 {v(VB[0],4)}, v{VA_} offset:{voff(0,0)}")
    a(f"ds_read_b128 {v(VB[0]+4,4)}, v{VA_} offset:{voff(0,1)}")
    a("s_waitcnt lgkmcnt(3)")
    mfma32(a, SB[0], KB[0], Q1, None)
    mfma32(a, SB[0], KRB[0], Q2POS[0], SB[0])
    a(f"ds_read_b128 {v(KB[0],4)}, v{KA_} offset:{koff(2)}")
    a("s_nop 10")

def wo0_loads(a, sx, vl):
    b = 112 + (sx % 4) * 36
    for t in range(9):
        if t == 4 or t == 8: a("s_add_u32 s61, s61, 4096")
        a(f"buffer_load_dwordx4 {v(b+4*t,4)}, v{vl}, {s(WS_,4)}, s61 offen offset:{(t%4)*1024}")
    a(f"s_add_u32 s61, s61, {36*1024 - 8192}")

def lds_poll(a, tag, vaddr, vtmp, thr):
    a(f"s_mov_b32 s49, {POLL_MAX}")
    a.label(f"L_{tag}")
    a(f"ds_read_b32 v{vtmp}, v{vaddr}")
    a("s_waitcnt lgkmcnt(0)")
    a(f"v_readfirstlane_b32 s47, v{vtmp}")
    a("s_sub_u32 s49, s49, 1")
    a(f"s_cbranch_scc1 L_{tag}_ok")
    a(f"s_cmp_ge_u32 s47, {thr}")
    a(f"s_cbranch_scc1 L_{tag}_ok")
    a("s_sleep 2")
    a(f"s_branch L_{tag}")
    a.label(f"L_{tag}_ok")

def flag_poll(a, tag, vaddr, vtmp, s_off, width, sleep=1):
    a(f"s_mov_b32 s49, {POLL_MAX}")
    a.label(f"L_{tag}")
    if width == 1:
        a(f"buffer_load_dword v{vtmp}, v{vaddr}, {s(WS_,4)}, s{s_off} offen sc1")
    else:
        a(f"buffer_load_dwordx2 {v(vtmp,2)}, v{vaddr}, {s(WS_,4)}, s{s_off} offen sc1")
    a("s_waitcnt vmcnt(0)")
    if width == 2: a(f"v_min_u32 v{vtmp}, v{vtmp}, v{vtmp+1}")
    a(f"v_cmp_eq_u32 vcc, 0, v{vtmp}")
    a("s_sub_u32 s49, s49, 1")
    a(f"s_cbranch_scc1 L_{tag}_ok")
    a("s_nop 1")
    a("s_cmp_eq_u64 vcc, 0")
    a(f"s_cbranch_scc1 L_{tag}_ok")
    a(f"s_sleep {sleep}")
    a(f"s_branch L_{tag}")
    a.label(f"L_{tag}_ok")

def flag_store(a, base, vt):
    a("s_lshl_b32 s46, s57, 3")
    a("s_add_u32 s46, s46, s3")
    a("s_lshl_b32 s46, s46, 2")
    a(f"s_add_u32 s46, s46, {base}")
    a(f"v_mov_b32 v{vt}, 0")
    a(f"v_mov_b32 v{vt+1}, 1")
    a("s_mov_b64 exec, 1")
    a(f"buffer_store_dword v{vt+1}, v{vt}, {s(WS_,4)}, s46 offen sc1")
    a("s_mov_b64 exec, -1")

def a_loads(a, step_slot):
    for t in range(3):
        a(f"buffer_load_dwordx4 {v(AR + step_slot*12 + 4*t, 4)}, v2, {s(WSR,4)}, s70 offen offset:{t*1024} {WMOD}")
    a("s_add_u32 s70, s70, 3072")

def prologue(a):
    a(f"s_load_dwordx2 s[4:5], s[0:1], {KA['x']}")
    a(f"s_load_dwordx8 s[16:23], s[0:1], {KA['w1']}")
    a(f"s_load_dwordx2 s[6:7], s[0:1], {KA['out']}")
    a(f"s_load_dwordx2 s[12:13], s[0:1], {KA['ws']}")
    a("v_lshrrev_b32 v7, 6, v0")
    a("v_and_b32 v1, 63, v0")
    a("v_readfirstlane_b32 s3, v7")
    nb = {"A": 3, "B": 2, "C": 1, "D": 0}[MAPPING]
    a(f"s_and_b32 s43, s2, {(1 << nb) - 1}")
    a(f"s_lshl_b32 s43, s43, {3 - nb}")
    a(f"s_bfe_u32 s45, s2, {hex(((3 - nb) << 16) | 3)}")
    a("s_add_u32 s43, s43, s45")
    a(f"s_lshr_b32 s56, s2, {6 - nb}")
    a(f"s_lshl_b32 s56, s56, {3 - nb}")
    a(f"s_bfe_u32 s45, s2, {hex(((3 - nb) << 16) | nb)}")
    a("s_add_u32 s56, s56, s45")
    a("s_lshl_b32 s57, s56, 3")
    a("s_add_u32 s57, s57, s43")
    a("s_lshl_b32 s42, s57, 3")
    a("s_and_b32 s40, s3, 3")
    a("s_lshr_b32 s41, s3, 2")
    a("s_movk_i32 s44, 1152")
    a("v_and_b32 v5, 15, v1")
    a("v_mul_u32_u24 v5, 36, v5")
    a("v_bfe_u32 v6, v1, 4, 1")
    a("v_mad_u32_u24 v5, v6, s44, v5")
    a("v_lshrrev_b32 v7, 5, v1")
    a("v_lshl_add_u32 v6, v7, 4, v5")
    a("s_lshl_b32 s45, s40, 1")
    a("s_add_u32 s45, s45, s42")
    a("s_mul_i32 s45, s45, 1152")
    a("s_mul_i32 s46, s41, 576")
    a("s_add_u32 s45, s45, s46")
    a(f"s_add_u32 s45, s45, {WS_Q}")
    a("v_lshlrev_b32 v8, 3, v1")
    a("v_lshlrev_b32 v9, 4, v1")
    a("s_lshl_b32 s47, s3, 10")
    a("s_waitcnt lgkmcnt(0)")
    ws_shift(a)
    srd(a, WS_, 12, WS_END)

def attention(a):
    ws = WS_
    a(f"buffer_load_dwordx4 {v(Q1,4)}, v6, {s(ws,4)}, s45 offen")
    a(f"buffer_load_dword v{QX[0]}, v5, {s(ws,4)}, s45 offen offset:32")
    a(f"s_mov_b32 s46, {WS_KMAX}")
    a(f"buffer_load_dwordx4 v[24:27], v9, {s(ws,4)}, s46 offen")
    for i in range(4):
        a(f"s_add_u32 m0, s47, {i*8192}")
        a(f"s_add_u32 s46, s47, {WS_KV + i*8192}")
        a(f"buffer_load_dwordx4 v9, {s(ws,4)}, s46 offen lds")
    srd(a, XS_, 4, S * D * 2)
    a("s_cmp_lg_u32 s41, 0")
    a("s_cbranch_scc0 L_a_nodma")
    a("s_lshl_b32 s47, s40, 10")
    for i in range(29):
        if i == 6:
            a("s_waitcnt vmcnt(3)")
            a("s_barrier")
        a(f"s_add_u32 m0, s47, {32768 + i*4096}")
        a(f"s_add_u32 s46, s47, {WS_KV + 32768 + i*4096}")
        a(f"buffer_load_dwordx4 v9, {s(ws,4)}, s46 offen lds")
    a("s_setprio 3")
    a("s_branch L_a_dmadone")
    a.label("L_a_nodma")
    a("s_setprio 2")
    a.label("L_a_dmadone")
    a(f"v_mov_b32 v{KA_}, v9")
    a(f"v_add_u32 v{KR_}, 4096, v9")
    a(f"v_mov_b32 v8, {4608 + 288}")
    a("v_cmp_gt_u32 s[50:51], 32, v1")
    a(f"v_cndmask_b32 v{KR_}, v8, v{KR_}, s[50:51]")
    a("v_and_b32 v5, 31, v1")
    sigma_v(a, 6, 5, 8, 9)
    if VZERO:
        a("v_mov_b32 v8, 0x8000")
    else:
        a("v_add_u32 v8, -20, v5")
        a("v_cmp_gt_u32 vcc, 8, v8")
        a("v_cndmask_b32 v8, 4, 0, vcc")
    a("v_cmp_lt_u32 vcc, 18, v5")
    a("v_cndmask_b32 v6, v6, v8, vcc")
    a("v_lshlrev_b32 v6, 4, v6")
    a("s_movk_i32 s46, 304")
    a(f"v_mad_u32_u24 v{VA_}, v7, s46, v6")
    a(f"v_add_u32 v{VA_}, 4608, v{VA_}")
    for r in (10, 11, 13, 14, 15, 16, 18, 19): a(f"v_mov_b32 v{r}, 0")
    for r in range(O, O + 16): a(f"v_mov_b32 v{r}, 0")
    for r in range(P + 4, P + 8): a(f"v_mov_b32 v{r}, 0")
    for r in range(VB[1] + 4, VB[1] + 8): a(f"v_mov_b32 v{r}, 0")
    stamp(a, 1)
    a("s_cmp_lg_u32 s41, 0")
    a("s_cbranch_scc1 L_a_qready")
    a(f"v_mov_b32 v8, {L_CNT}")
    a("ds_write_b32 v8, v10")
    a("s_waitcnt vmcnt(4)")
    a.label("L_a_qready")
    a(f"v_dot2_f32_bf16 v5, v{Q1}, v{Q1}, 0")
    for i in range(1, 4):
        a(f"v_dot2_f32_bf16 v5, v{Q1+i}, v{Q1+i}, v5")
    a("v_max_f32 v24, v24, v25")
    a("v_max3_f32 v24, v24, v26, v27")
    for rr in (8, 4, 2, 1):
        a(f"v_max_f32_dpp v24, v24, v24 row_ror:{rr} row_mask:0xf bank_mask:0xf")
    a("v_mov_b32 v25, v24")
    a("v_mov_b32 v6, v5")
    a("v_permlane16_swap_b32 v24, v25")
    a("v_permlane32_swap_b32 v5, v6")
    a("v_max_f32 v24, v24, v25")
    a("v_add_f32 v5, v5, v6")
    a("v_mov_b32 v25, v24")
    a(f"v_dot2_f32_bf16 v5, v{QX[0]}, v{QX[0]}, v5")
    a("v_permlane32_swap_b32 v24, v25")
    a("v_add_f32 v24, v24, v25")
    a("v_mul_f32 v5, v5, v24")
    a("v_sqrt_f32 v5, v5")
    a(f"v_mul_f32 v5, {fbits(-1.02)}, v5")
    a("v_cvt_pk_bf16_f32 v5, v5, 0")
    a(f"v_cndmask_b32 v{QX[0]}, v5, v{QX[0]}, s[50:51]")
    a(f"v_mov_b32 v{QX[1]}, v{QX[0]}")
    a("s_mov_b32 s60, 0")
    a("s_mov_b32 s48, 0")
    a("v_lshlrev_b32 v9, 4, v1")
    a("s_cmp_lg_u32 s41, 0")
    a("s_cbranch_scc1 L_a_young_pre")
    a(f"s_mov_b32 s59, {16 // TPI}")
    a("s_waitcnt vmcnt(0) lgkmcnt(0)")
    a("s_barrier")
    a.label("L_a_start")
    stamp(a, 3)
    pipe_start(a)
    a.raw(".p2align 6")
    a.label("L_a_loop")
    for t in range(TPI): tile(a, t)
    a.label("L_a_loop_end")
    step = (TPI // 4) * KV_BLK
    a(f"v_add_u32 v{KA_}, {step}, v{KA_}")
    a(f"v_add_u32 v{KR_}, {step}, v{KR_}")
    a(f"v_add_u32 v{VA_}, {step}, v{VA_}")
    a("s_add_u32 s48, s48, 1")
    a("s_cmp_eq_u32 s48, s59")
    a("s_cbranch_scc1 L_a_inter")
    a(f"s_cmp_lt_u32 s48, {64 // TPI}")
    a("s_cbranch_scc1 L_a_loop")
    mfma32(a, O, VB[1] + 4, P + 4, O)
    a.label("L_a_norm")
    stamp(a, 4); mark(a, "L")
    a("s_waitcnt lgkmcnt(0)")
    a("s_nop 12")
    a(f"v_mov_b32 v5, v{O+10}")
    a(f"v_mov_b32 v6, v{O+10}")
    a("v_permlane32_swap_b32 v5, v6")
    a(f"v_mov_b32 v7, {fbits(2.0**-40)}")
    a("v_cmp_nge_f32 vcc, v5, v7")
    a("s_nop 3")
    a("s_cmp_lg_u64 vcc, 0")
    a("s_cselect_b32 s49, 1, 0")
    a("s_andn2_b32 s49, s49, s60")
    a("s_cbranch_scc1 L_a_fallback")
    a("v_rcp_f32 v5, v5")
    a("v_bfe_u32 v6, v1, 4, 1")
    a("s_lshl_b32 s46, s40, 1")
    a("v_add_u32 v6, s46, v6")
    a("v_mul_u32_u24 v6, 608, v6")
    a("v_and_b32 v7, 15, v1")
    a("v_lshl_add_u32 v8, v7, 2, v6")
    a("v_lshl_add_u32 v6, v7, 5, v6")
    a("v_lshrrev_b32 v7, 5, v1")
    a("v_lshl_add_u32 v6, v7, 4, v6")
    a(f"v_add_u32 v6, {L_OS}, v6")
    a(f"v_add_u32 v8, {L_OS + 512}, v8")
    for i in range(10):
        a(f"v_mul_f32 v{O+i}, v{O+i}, v5")
    for i in range(5):
        a(f"v_cvt_pk_bf16_f32 v{P+i}, v{O+2*i}, v{O+2*i+1}")
    a("s_cmp_eq_u32 s41, 0")
    a("s_cbranch_scc1 L_a_poll2_ok")
    a(f"v_mov_b32 v9, {L_CNT}")
    lds_poll(a, "a_poll2", 9, 7, 8)
    a(f"ds_write_b128 v6, {v(P,4)}")
    a("s_mov_b64 exec, 0xffffffff")
    a(f"ds_write_b32 v8, v{P+4}")
    a("s_mov_b64 exec, -1")
    a("v_and_b32 v5, 7, v1")
    a("v_mul_u32_u24 v4, 608, v5")
    a("v_lshrrev_b32 v6, 4, v1")
    a("v_lshl_add_u32 v4, v6, 4, v4")
    a(f"v_add_u32 v4, {L_OS}, v4")
    a("v_lshl_add_u32 v3, v6, 3, v5")
    a("v_lshlrev_b32 v3, 4, v3")
    a("s_mul_i32 s46, s40, 1536")
    a(f"s_add_u32 s46, s46, {L_CP}")
    a("v_add_u32 v3, s46, v3")
    a("v_lshlrev_b32 v2, 4, v1")
    a("s_mul_i32 s70, s3, 165888")
    a(f"s_mul_i32 s47, s43, {SLICE}")
    a("s_add_u32 s70, s70, s47")
    a(f"s_add_u32 s70, s70, {WS_W}")
    a(f"s_mov_b32 s{WSR}, s12")
    a(f"s_and_b32 s{WSR+1}, s13, 0xffff")
    a(f"s_add_u32 s{WSR+2}, s70, 165888")
    a(f"s_mov_b32 s{WSR+3}, 0x00020000")
    a("s_mov_b32 s54, 0x00ff00ff")
    a("s_mov_b32 s55, 0x00ff00ff")
    a("s_cmp_lg_u32 s41, 0")
    a("s_cbranch_scc1 L_a_young_tail")

    WA = 16
    WB = 112
    a(f"v_mov_b32 v8, {L_CNT}")
    a("v_mov_b32 v9, 1")
    a("s_waitcnt lgkmcnt(0)")
    a("s_mov_b64 exec, 1")
    a("ds_add_u32 v8, v9")
    a("s_mov_b64 exec, -1")
    a("s_mul_i32 s61, s40, 9216")
    a(f"s_add_u32 s61, s61, {WS_WO}")
    for sx in range(4): wo0_loads(a, sx, 2)
    a("v_mul_u32_u24 v10, 1152, v5")
    a("v_lshl_add_u32 v11, v6, 3, v10")
    a("v_lshl_add_u32 v10, v6, 4, v10")
    a("s_mul_i32 s46, s42, 1152")
    a("s_mul_i32 s47, s40, 288")
    a("s_add_u32 s52, s46, s47")
    for i in range(4):
        a(f"buffer_load_dwordx4 {v(92+4*i,4)}, v10, {s(XS_,4)}, s52 offen offset:{i*64}")
    a(f"buffer_load_dwordx2 v[108:109], v11, {s(XS_,4)}, s52 offen offset:256")
    lds_poll(a, "a_poll", 8, 9, 4)
    stamp(a, 5)
    for sx in range(9):
        a(f"ds_read_b128 {v(56+4*sx,4)}, v4 offset:{sx*64}")
    a("v_mov_b32 v9, 1")
    a("s_waitcnt lgkmcnt(0)")
    a("s_mov_b64 exec, 1")
    a("ds_add_u32 v8, v9")
    a("s_mov_b64 exec, -1")
    a("s_setprio 0")
    for sx in range(9):
        a(f"s_waitcnt vmcnt({min(3, 8 - sx)*9 + (5 if sx < 4 else 0)})")
        b = WB + (sx % 4) * 36
        for t in range(9):
            mfma16(a, WA + 4*t, b + 4*t, 56 + 4*sx, None if sx == 0 else WA + 4*t)
        if sx + 4 < 9: wo0_loads(a, sx + 4, 2)
    a("s_setprio 2")
    a("s_mov_b32 s46, 0x00003f80")
    a("s_mov_b32 s47, 0x3f800000")
    for k in list(range(12, 18)) + list(range(12)):
        a(f"v_dot2_f32_bf16 v{WA+2*k}, v{92+k}, s46, v{WA+2*k}")
        a(f"v_dot2_f32_bf16 v{WA+2*k+1}, v{92+k}, s47, v{WA+2*k+1}")
    stamp(a, 23)
    a("s_mov_b64 exec, s[54:55]")
    for t in range(3):
        a(f"ds_write_b128 v3, {v(WA+24+4*t,4)} offset:{t*512}")
    a("s_mov_b64 exec, -1")
    a("s_waitcnt lgkmcnt(0)")
    a("s_mul_i32 s46, s40, 9216")
    a(f"s_add_u32 s46, s46, {WS_WO + 9*36*1024}")
    for sx in range(9):
        for t in range(6):
            if t == 4: a("s_add_u32 s46, s46, 4096")
            a(f"buffer_load_dwordx4 {v(40+(sx*6+t)*4,4)}, v2, {s(ws,4)}, s46 offen offset:{(t%4)*1024}")
        a(f"s_add_u32 s46, s46, {36*1024 - 4096}")
    a("v_lshlrev_b32 v8, 3, v1")
    a("s_lshl_b32 s46, s43, 9")
    a(f"s_add_u32 s46, s46, {WS_FPACK}")
    flag_poll(a, "a_pkpoll", 8, 10, 46, 2, sleep=8)
    stamp(a, 6)
    a("s_barrier")
    stamp(a, 7)
    a(f"ds_read_b128 v[8:11], v4 offset:0")
    for sx in range(9):
        if sx + 1 < 9:
            a(f"ds_read_b128 {v(8+((sx+1)&1)*4,4)}, v4 offset:{(sx+1)*64}")
        a(f"s_waitcnt lgkmcnt({1 if sx+1 < 9 else 0})")
        for t in range(6):
            mfma16(a, WA + 4*t, 40 + (sx*6+t)*4, 8 + (sx&1)*4, WA + 4*t)
    ln_tail(a, WA, 6, 0)
    a("s_branch L_m_roleB")

    a.label("L_a_young_tail")
    a("s_waitcnt vmcnt(0) lgkmcnt(0)")
    stamp(a, 6)
    a("s_barrier")
    stamp(a, 7)
    for t in range(3):
        a(f"ds_read_b128 {v(WA+4*t,4)}, v3 offset:{t*512}")
    for sx in range(9):
        a(f"ds_read_b128 {v(104+4*sx,4)}, v4 offset:{sx*64}")
    L = Lst()
    for k in range(TAILK): a_loads(L, k)
    for sx in range(9):
        a(f"s_waitcnt lgkmcnt({8-sx})")
        for t in range(3):
            mfma16(a, WA + 4*t, 148 + (sx*3+t)*4, 104 + 4*sx, WA + 4*t)
            if t == 2 and L:
                a(L.pop(0))
                if L and L[0].startswith("s_"): a(L.pop(0))
    ln_tail(a, WA, 3, 6)
    stamp(a, 26); stamp_rt(a, 40)
    a("s_barrier")
    for k in range(TAILK, RDS - 1): a_loads(a, k)
    a("s_lshl_b32 s46, s40, 6")
    a("v_add_u32 v8, s46, v1")
    a("v_lshlrev_b32 v11, 3, v8")
    a(f"v_add_u32 v11, {L_B1}, v11")
    a(f"v_lshlrev_b32 v{GT+2}, 16, v140")
    a(f"v_and_b32 v{GT+3}, 0xffff0000, v140")
    a(f"v_lshlrev_b32 v{GT+4}, 16, v141")
    a(f"v_and_b32 v{GT+5}, 0xffff0000, v141")
    a(f"ds_write_b64 v11, {v(GT+2,2)}")
    a("v_lshrrev_b32 v12, 2, v8")
    a("v_lshlrev_b32 v12, 5, v12")
    a("v_and_b32 v13, 3, v8")
    a("v_lshl_add_u32 v12, v13, 2, v12")
    a(f"v_add_u32 v12, {L_B1D}, v12")
    a(f"ds_write2_b32 v12, v{GT+2}, v{GT+3} offset0:0 offset1:4")
    a("v_add_u32 v12, 2048, v12")
    a("s_cmp_lg_u32 s40, 0")
    a("s_cbranch_scc1 L_m_roleA")
    a("s_mov_b64 exec, 0xffffffff")
    a(f"ds_write_b64 v11, {v(GT+4,2)} offset:2048")
    a(f"ds_write2_b32 v12, v{GT+4}, v{GT+5} offset0:0 offset1:4")
    a("s_mov_b64 exec, -1")
    a("s_branch L_m_roleA")

    a.label("L_a_inter")
    a("s_barrier")
    a("s_branch L_a_loop")

    a.label("L_a_young_pre")
    a("s_lshl_b32 s58, s56, 2")
    a("s_add_u32 s58, s58, s40")
    a("s_min_u32 s59, s58, 119")
    sja, selA, selB = w_pack_setup(a, 59, 43, 16, 20, 24, 72, 61, 62, 63, 1, 5, 6, 7)
    a("s_mov_b32 s59, 99")
    a("s_mov_b32 s52, s63")
    a("s_waitcnt vmcnt(8)")
    w_pack_loads(a, 2, 24, 61, 62, sja, 5, 6, 112)
    a("s_waitcnt vmcnt(32)")
    stamp(a, 2)
    a("s_barrier")
    a("s_waitcnt vmcnt(26)")
    w_pack_loads(a, 2, 24, 61, 62, sja, 5, 6, 144)
    if TOUCH:
        a("s_mov_b32 s46, 0x24000")
        a("s_lshl_b32 s47, s40, 6")
        a("v_add_u32 v7, s47, v1")
        a("v_mul_lo_u32 v7, v7, s46")
        a(f"buffer_load_dword v252, v7, {s(ws,4)}, 0 offen")
        srd(a, 28, 6, S * D * 2)
        a("v_lshlrev_b32 v7, 16, v1")
        a("buffer_load_dword v253, v7, s[28:31], 0 offen")
        a("v_mov_b32 v7, 0")
        a("global_load_dword v254, v7, s[18:19]")
        a("global_load_dword v255, v7, s[22:23]")
    stamp(a, 20)
    pipe_start(a)
    for t in range(TPI):
        tile(a, t)
        if t == PK_T[0]:
            for st in range(4):
                a(f"s_waitcnt vmcnt({(3-st)*16 + st*3 + (4 if TOUCH else 0)})")
                w_pack_stores(a, 112 + st*16, 176 + (st & 1)*12, selA, selB, ws, 9, 63, PKMOD)
            for i in range(4): a(f"v_mov_b32 v{200+i}, -1")
            a("s_mul_i32 s46, s57, 73728")
            a("s_mul_i32 s47, s40, 18432")
            a("s_add_u32 s46, s46, s47")
            if SENT1:
                a(f"s_add_u32 s46, s46, {WS_P + 3072}")
                for i in range(12):
                    if i and i % 3 == 0: a(f"s_add_u32 s46, s46, {6144 if i == 6 else 3072}")
                    a(f"buffer_store_dwordx4 v[200:203], v9, {s(ws,4)}, s46 offen offset:{(i%3)*1024} sc1")
            elif SENT2:
                a(f"s_add_u32 s46, s46, {WS_P + 6144}")
                for i in range(6):
                    if i == 3: a("s_add_u32 s46, s46, 9216")
                    a(f"buffer_store_dwordx4 v[200:203], v9, {s(ws,4)}, s46 offen offset:{(i%3)*1024} sc1")
            stamp(a, 21)
            a("s_setprio 1")
        if t == PK_T[2]:
            a("s_waitcnt vmcnt(29)")
            a("v_mov_b32 v5, 0")
            a("v_mov_b32 v6, 1")
            a("s_lshl_b32 s46, s43, 7")
            a("s_add_u32 s46, s46, s58")
            a("s_lshl_b32 s46, s46, 2")
            a(f"s_add_u32 s46, s46, {WS_FPACK}")
            a("s_mov_b64 exec, 1")
            a(f"buffer_store_dword v6, v5, {s(ws,4)}, s46 offen sc1")
            a("s_mov_b64 exec, -1")
            if RELOAD:
                for i in range(12):
                    a(f"buffer_load_dwordx4 v[112:115], v9, {s(ws,4)}, s52 offen offset:{(i%4)*1024} sc1")
                    if i % 4 == 3: a("s_add_u32 s52, s52, 4096")
            stamp(a, 27)
        if t == PK_T[1]:
            a("s_mul_i32 s46, s40, 9216")
            a(f"s_add_u32 s46, s46, {WS_WO + (9*36 + 6)*1024}")
            for sx in range(9):
                for tt in range(3):
                    a(f"buffer_load_dwordx4 {v(148 + (sx*3+tt)*4, 4)}, v9, {s(ws,4)}, s46 offen offset:{tt*1024}")
                a(f"s_add_u32 s46, s46, {36*1024}")
            srd(a, XS_, 18, F * 2)
            a("s_lshl_b32 s46, s40, 8")
            a("s_mul_i32 s47, s43, 1152")
            a("s_add_u32 s46, s46, s47")
            a("v_lshlrev_b32 v5, 2, v1")
            a(f"buffer_load_dword v140, v5, {s(XS_,4)}, s46 offen")
            a(f"buffer_load_dword v141, v5, {s(XS_,4)}, s46 offen offset:1024")
            stamp(a, 22)
    a("s_branch L_a_loop_end")
    fallback(a)

def ln_tail(a, WA, nt, t0):
    ws = WS_
    n = nt * 4
    T = 44 if nt == 6 else 148
    stamp(a, 8)
    a(f"v_add_f32 v8, v{WA}, v{WA+1}")
    a(f"v_mul_f32 v9, v{WA}, v{WA}")
    a(f"v_fmac_f32 v9, v{WA+1}, v{WA+1}")
    for i in range(2, n):
        a(f"v_add_f32 v8, v8, v{WA+i}")
        a(f"v_fmac_f32 v9, v{WA+i}, v{WA+i}")
    for sw in ("v_permlane32_swap_b32", "v_permlane16_swap_b32"):
        a("v_mov_b32 v10, v8")
        a("v_mov_b32 v11, v9")
        a(f"{sw} v8, v10")
        a(f"{sw} v9, v11")
        a("v_add_f32 v8, v8, v10")
        a("v_add_f32 v9, v9, v11")
    a("v_lshlrev_b32 v10, 6, v5")
    a(f"v_add_u32 v10, {L_ST}, v10")
    a("s_lshl_b32 s46, s3, 3")
    a("v_add_u32 v11, s46, v10")
    a("s_mov_b64 exec, 0xff")
    a("ds_write_b64 v11, v[8:9]")
    a("s_mov_b64 exec, -1")
    for k in range(n // 2):
        a(f"v_cvt_pk_bf16_f32 v{T+k}, v{WA+2*k}, v{WA+2*k+1}")
    a("s_mul_i32 s46, s40, 18")
    a(f"s_add_u32 s46, s46, {2*t0}")
    a("v_add_u32 v12, s46, v6")
    a("v_lshlrev_b32 v13, 4, v5")
    a("v_lshl_add_u32 v14, v12, 7, v13")
    a(f"v_add_u32 v14, {L_HH}, v14")
    a("s_waitcnt lgkmcnt(0)")
    a("s_barrier")
    stamp(a, 9); stamp_rt(a, 47); mark(a, "D")
    U = T + 12
    for i in range(4):
        a(f"ds_read_b128 {v(U+4*i,4)}, v10 offset:{i*16}")
    a("v_lshrrev_b32 v15, 2, v12")
    a("v_lshl_add_u32 v15, v15, 12, v13")
    a("v_and_b32 v12, 3, v12")
    a("v_lshl_add_u32 v12, v12, 8, v15")
    if nt == 3:
        a("v_lshrrev_b32 v15, 1, v6")
        a("s_add_u32 s46, s46, 4")
        a("v_add_u32 v15, s46, v15")
        a("v_and_b32 v7, 1, v6")
        a("v_lshl_add_u32 v13, v7, 3, v13")
        a("v_lshl_add_u32 v7, v15, 7, v13")
        a(f"v_add_u32 v7, {L_HH}, v7")
        a("v_lshrrev_b32 v8, 2, v15")
        a("v_lshl_add_u32 v13, v8, 12, v13")
        a("v_and_b32 v15, 3, v15")
        a("v_lshl_add_u32 v13, v15, 8, v13")
    a("s_mov_b64 exec, s[54:55]")
    for i in range(nt // 2):
        a(f"ds_write_b128 v14, {v(T+4*i,4)} offset:{i*512}")
    if nt == 3: a(f"ds_write_b64 v7, {v(T+4,2)}")
    a("s_mov_b64 exec, -1")
    a("s_mul_i32 s46, s56, 73728")
    a("s_lshr_b32 s47, s43, 1")
    a("s_lshl_b32 s47, s47, 10")
    a("s_add_u32 s46, s46, s47")
    a("s_and_b32 s47, s43, 1")
    a("s_lshl_b32 s47, s47, 7")
    a("s_add_u32 s46, s46, s47")
    a(f"s_add_u32 s46, s46, {WS_Y}")
    a(f"s_waitcnt lgkmcnt({nt//2 + (nt & 1)})")
    for i in range(1, 8):
        a(f"v_add_f32 v{U}, v{U}, v{U+2*i}")
        a(f"v_add_f32 v{U+1}, v{U+1}, v{U+2*i+1}")
    a(f"v_mul_f32 v8, {fbits(1.0/D)}, v{U}")
    a(f"v_mul_f32 v9, {fbits(1.0/D)}, v{U+1}")
    a("v_fma_f32 v9, -v8, v8, v9")
    a("v_max_f32 v9, 0, v9")
    a(f"v_add_f32 v10, {fbits(1e-5)}, v9")
    a("v_rcp_f32 v11, v10")
    a("v_rsq_f32 v10, v10")
    a(f"v_fmaak_f32 v11, v9, v11, {fbits(1e-5)}")
    a("v_rsq_f32 v11, v11")
    a("v_mul_f32 v10, v10, v11")
    a("v_mul_f32 v8, v8, v10")
    a("s_mov_b64 exec, s[54:55]")
    for i in range(nt // 2):
        for k in range(8):
            a(f"v_fma_f32 v{WA+8*i+k}, v{WA+8*i+k}, v10, -v8")
        for k in range(4):
            a(f"v_cvt_pk_bf16_f32 v{U+4*i+k}, v{WA+8*i+2*k}, v{WA+8*i+2*k+1}")
        a(f"buffer_store_dwordx4 {v(U+4*i,4)}, v12, {s(ws,4)}, s46 offen sc1")
        if i + 1 < nt // 2: a("v_add_u32 v12, 4096, v12")
    if nt == 3:
        for k in range(4):
            a(f"v_fma_f32 v{WA+8+k}, v{WA+8+k}, v10, -v8")
        for k in range(2):
            a(f"v_cvt_pk_bf16_f32 v{U+4+k}, v{WA+8+2*k}, v{WA+8+2*k+1}")
        a(f"buffer_store_dwordx2 {v(U+4,2)}, v13, {s(ws,4)}, s46 offen sc1")
    a("s_mov_b64 exec, -1")

def fallback(a):
    a.label("L_a_fallback")
    a("s_mov_b32 s60, 1")
    tot = 16 * KV_BLK
    a(f"v_cndmask_b32 v{QX[0]}, 0, v{QX[0]}, s[50:51]")
    a(f"v_mov_b32 v{QX[1]}, v{QX[0]}")
    a("v_mov_b32 v5, 0xff800000")
    for ps in range(2):
        for r in (KA_, KR_, VA_):
            a(f"v_subrev_u32 v{r}, {tot}, v{r}")
        a("s_mov_b32 s48, 0")
        a.label(f"L_a_fb{ps}")
        a(f"ds_read_b128 {v(KRB[0],4)}, v{KR_}")
        for t in range(4):
            a(f"ds_read_b128 {v(KB[0],4)}, v{KA_} offset:{koff(t)}")
            if ps == 1:
                a(f"ds_read_b128 {v(VB[0],4)}, v{VA_} offset:{voff(t,0)}")
                a(f"ds_read_b128 {v(VB[0]+4,4)}, v{VA_} offset:{voff(t,1)}")
            a("s_waitcnt lgkmcnt(0)")
            mfma32(a, SB[0], KB[0], Q1, None)
            mfma32(a, SB[0], KRB[0], Q2POS[t], SB[0])
            S0 = SB[0]
            if ps == 0:
                for i in range(8):
                    a(f"v_max3_f32 v5, v{S0+2*i}, v{S0+2*i+1}, v5")
            else:
                for i in range(16): a(f"v_sub_f32 v{S0+i}, v{S0+i}, v5")
                for i in range(16): a(f"v_exp_f32 v{S0+i}, v{S0+i}")
                for i in range(8): a(f"v_cvt_pk_bf16_f32 v{P+i}, v{S0+2*i}, v{S0+2*i+1}")
                mfma32(a, O, VB[0], P, O)
                mfma32(a, O, VB[0] + 4, P + 4, O)
                a("s_nop 7")
        for r in (KA_, KR_, VA_):
            a(f"v_add_u32 v{r}, {KV_BLK}, v{r}")
        a("s_add_u32 s48, s48, 1")
        a("s_cmp_lt_u32 s48, 16")
        a(f"s_cbranch_scc1 L_a_fb{ps}")
        if ps == 0:
            a("v_mov_b32 v6, v5")
            a("v_permlane32_swap_b32 v5, v6")
            a("v_max_f32 v5, v5, v6")
            for r in range(O, O + 16): a(f"v_mov_b32 v{r}, 0")
    a("s_branch L_a_norm")

def gelu(a, regs, tmp, vc1):
    if NOGELU: return
    for k in range(0, len(regs), 8):
        g = regs[k:k+8:2]
        T = [tmp + 2*i for i in range(len(g))]
        if PKGELU:
            for x, t in zip(g, T): a(f"v_pk_mul_f32 {v(t,2)}, {v(x,2)}, {v(x,2)}")
            for x, t in zip(g, T): a(f"v_pk_fma_f32 {v(t,2)}, {v(t,2)}, {v(vc1,2)}, s[78:79]")
            for x, t in zip(g, T): a(f"v_pk_mul_f32 {v(t,2)}, {v(x,2)}, {v(t,2)}")
            for x, t in zip(g, T): a(f"v_exp_f32 v{t}, v{t}"); a(f"v_exp_f32 v{t+1}, v{t+1}")
            for x, t in zip(g, T): a(f"v_pk_add_f32 {v(t,2)}, {v(t,2)}, 1.0 op_sel_hi:[1,0]")
            for x, t in zip(g, T): a(f"v_rcp_f32 v{t}, v{t}"); a(f"v_rcp_f32 v{t+1}, v{t+1}")
            for x, t in zip(g, T): a(f"v_pk_mul_f32 {v(x,2)}, {v(x,2)}, {v(t,2)}")
        else:
            g = regs[k:k+8]; T = [tmp + i for i in range(len(g))]
            for x, t in zip(g, T): a(f"v_mul_f32 v{t}, v{x}, v{x}")
            for x, t in zip(g, T): a(f"v_fmaak_f32 v{t}, v{vc1}, v{t}, {fbits(C0)}")
            for x, t in zip(g, T): a(f"v_mul_f32 v{t}, v{x}, v{t}")
            for x, t in zip(g, T): a(f"v_exp_f32 v{t}, v{t}")
            for x, t in zip(g, T): a(f"v_add_f32 v{t}, 1.0, v{t}")
            for x, t in zip(g, T): a(f"v_rcp_f32 v{t}, v{t}")
            for x, t in zip(g, T): a(f"v_mul_f32 v{x}, v{x}, v{t}")

def acc(t, q): return ACC + (t * 4 + q) * 4

def mlp_setup(a):
    a(f"v_add_u32 v3, {L_Y}, v2")
    a(f"v_add_u32 v4, {L_Y + 36864}, v2")
    a("v_and_b32 v9, 15, v1")
    a("v_lshlrev_b32 v9, 4, v9")
    a(f"v_mov_b32 v{GT+22}, {fbits(C1)}")
    a(f"v_mov_b32 v{GT+23}, {fbits(C1)}")
    a(f"s_mov_b32 s78, {fbits(C0)}")
    a(f"s_mov_b32 s79, {fbits(C0)}")
    a("v_bfe_u32 v14, v1, 3, 1")
    a("s_mov_b32 s46, 73728")
    a("v_mul_lo_u32 v14, v14, s46")
    a("v_lshl_add_u32 v14, v5, 4, v14")
    a("v_and_b32 v15, 1, v6")
    a("s_mov_b32 s46, 147456")
    a("v_mul_lo_u32 v15, v15, s46")
    a("v_add_u32 v15, v15, v14")
    a("v_lshrrev_b32 v7, 1, v6")
    a("v_lshl_add_u32 v15, v7, 7, v15")
    a("v_lshl_add_u32 v14, v6, 7, v14")
    a("s_lshl_b32 s71, s56, 6")
    a("s_add_u32 s71, s71, s43")
    a("s_mul_i32 s71, s71, 9216")
    a(f"s_add_u32 s71, s71, {WS_P}")

def bias_init(a):
    a("s_mul_i32 s46, s68, 192")
    a(f"s_add_u32 s46, s46, {L_B1}")
    a("v_lshl_add_u32 v11, v6, 5, s46")
    a("v_lshl_add_u32 v12, v6, 4, s46")
    a(f"ds_read_b128 {v(CI,4)}, v11 offset:{L_B1D - L_B1}")
    a(f"ds_read_b128 {v(CI+4,4)}, v11 offset:{L_B1D - L_B1 + 16}")
    a(f"ds_read_b128 {v(CI+8,4)}, v12 offset:128")

def to_gemm2(a):
    for r in (3, 4):
        a(f"v_add_u32 v{r}, {L_H - L_Y}, v{r}")
    for i in range(12): a(f"v_mov_b32 v{CI+i}, 0")

def call(a, name):
    a(f"s_call_b64 s[74:75], {name}")

def mlp(a):
    ws = WS_
    a.label("L_m_roleA")
    mlp_setup(a)
    a("s_setprio 3")
    a("s_waitcnt lgkmcnt(0)")
    a("s_barrier")
    mark(a, "G1")
    stamp(a, 10); stamp_rt(a, 48)
    a("s_mov_b32 s68, s40")
    bias_init(a)
    a("s_mov_b32 s69, 3")
    call(a, "L_m_pass")
    stamp(a, 12)
    a("s_setprio 1")
    call(a, "L_m_gelu")
    stamp(a, 13)
    a("s_setprio 1")
    a("s_add_u32 s68, s40, 8")
    bias_init(a)
    a("s_mov_b32 s69, 0")
    call(a, "L_m_pass")
    a("s_setprio 0")
    stamp(a, 14)
    a("s_barrier")
    stamp(a, 11)
    call(a, "L_m_gelu")
    stamp(a, 15)
    a("s_waitcnt lgkmcnt(0)")
    a("s_barrier")
    a("s_setprio 2")
    to_gemm2(a)
    a(f"s_mov_b32 s69, {10 if GATEB else 8}")
    call(a, "L_m_pass")
    a("s_setprio 0")
    a("s_add_u32 s68, s40, 4")
    stamp(a, 16); mark(a, "M")
    reduce_setup(a)
    call(a, "L_m_cvt")
    if GATEA: a("s_barrier")
    call(a, "L_m_st")
    if not GATEA: a("s_barrier")
    stamp(a, 24)
    if not SENT1:
        a("s_waitcnt vmcnt(0)")
        flag_store(a, WS_FP1, 11)
    stamp(a, 25)
    a("s_cmp_eq_u32 s40, 3")
    a("s_cbranch_scc1 L_r_st1")
    flag_poll(a, "r_poll0", 8, 13, 53, 1, sleep=4)
    a("s_mov_b32 s48, s40")
    call(a, "L_r_item")
    a("s_cmp_eq_u32 s40, 0")
    a("s_cbranch_scc1 L_m_done")
    a.label("L_r_st1")
    a("s_add_u32 s48, s40, 2")
    if SENT1:
        a("s_mov_b32 s73, 1")
        a("s_waitcnt vmcnt(1)")
    else:
        a("s_add_u32 s53, s53, 16")
        flag_poll(a, "r_poll1", 8, 13, 53, 1, sleep=4)
    stamp(a, 17)
    call(a, "L_r_item")
    a("s_branch L_m_done")
    a.label("L_m_roleB")
    stamp(a, 26); stamp_rt(a, 40)
    a("s_barrier")
    for k in range(BPRE): a_loads(a, k)
    mlp_setup(a)
    a("s_mul_i32 s53, s56, 73728")
    a("s_lshl_b32 s47, s40, 10")
    a("s_add_u32 s53, s53, s47")
    a(f"s_add_u32 s53, s53, {WS_Y}")
    a("v_add_u32 v11, s47, v3")
    a("v_add_u32 v12, s47, v4")
    YR = ACC
    def y_loads(stg):
        for st in range(6*stg, 6*stg + 6):
            a(f"s_add_u32 s46, s53, {st*4096}")
            a(f"buffer_load_dwordx4 {v(YR+4*st,4)}, v2, {s(ws,4)}, s46 offen sc1")
    a(f"s_waitcnt vmcnt({3*BPRE})")
    stamp(a, 10)
    for stg in range(3): y_loads(stg)
    for stg in range(3):
        a(f"s_mov_b32 s49, {POLL_MAX}")
        a(f"s_waitcnt vmcnt({12 - 6*stg})")
        a.label(f"L_y_chk{stg}")
        b = YR + 24*stg
        a(f"v_max3_u32 v13, v{b}, v{b+1}, v{b+2}")
        a(f"v_max3_u32 v8, v{b+3}, v{b+4}, v{b+5}")
        for i in range(6, 24, 4):
            a(f"v_max3_u32 v13, v13, v{b+i}, v{b+i+1}")
            if i + 3 < 24: a(f"v_max3_u32 v8, v8, v{b+i+2}, v{b+i+3}")
        a("v_max_u32 v13, v13, v8")
        a("v_cmp_eq_u32 vcc, -1, v13")
        a("s_sub_u32 s49, s49, 1")
        a(f"s_cbranch_scc1 L_y_ok{stg}")
        a("s_cmp_eq_u64 vcc, 0")
        a(f"s_cbranch_scc1 L_y_ok{stg}")
        a(f"s_sleep {YSLEEP}")
        y_loads(stg)
        a("s_waitcnt vmcnt(0)")
        a(f"s_branch L_y_chk{stg}")
        a.label(f"L_y_ok{stg}")
        for st in range(6*stg, 6*stg + 6):
            a(f"ds_write_b128 v{11 + st // 9}, {v(YR+4*st,4)} offset:{(st % 9)*4096}")
        if stg == 2:
            for k in range(BPRE, RDS - 1): a_loads(a, k)
        a("s_waitcnt lgkmcnt(0)")
        if stg == 0: stamp_rt(a, 43)
        a("s_barrier")
        if stg == 0: mark(a, "G1")
    a("s_setprio 2")
    a("s_add_u32 s68, s40, 4")
    bias_init(a)
    a("s_mov_b32 s69, 0")
    call(a, "L_m_pass")
    stamp(a, 12)
    a("s_setprio 0")
    call(a, "L_m_gelu")
    stamp(a, 13)
    to_gemm2(a)
    a("s_setprio 3")
    a("s_waitcnt lgkmcnt(0)")
    a("s_barrier")
    stamp(a, 11)
    a("s_mov_b32 s69, 2")
    call(a, "L_m_pass")
    a("s_setprio 0")
    a("s_mov_b32 s68, s40")
    stamp(a, 15)
    call(a, "L_m_cvt")
    if GATEB: a("s_barrier")
    call(a, "L_m_st")
    reduce_setup(a)
    if not GATEB:
        a("s_waitcnt vmcnt(0)")
        flag_store(a, WS_FP1, 11)
    stamp(a, 25)
    a("s_setprio 1")
    a("s_mov_b32 s69, 10")
    call(a, "L_m_pass")
    a("s_setprio 3")
    a("s_add_u32 s68, s40, 8")
    stamp(a, 16); stamp_rt(a, 46); mark(a, "M")
    call(a, "L_m_cvt")
    call(a, "L_m_st")
    if not SENT2:
        a("s_waitcnt vmcnt(0)")
        flag_store(a, WS_FP2, 11)
    a("s_cmp_eq_u32 s40, 3")
    a("s_cbranch_scc1 L_m_done")
    a("s_add_u32 s48, s40, 6")
    if SENT2:
        a("s_mov_b32 s73, 1")
        a("s_waitcnt vmcnt(0)")
    stamp_rt(a, 42)
    if not SENT2:
        a(f"s_add_u32 s53, s53, {WS_FP2 - WS_FP1}")
        flag_poll(a, "r_poll2", 8, 13, 53, 1)
    call(a, "L_r_item")
    a.label("L_m_done")

def subroutines(a):
    ws = WS_
    a.raw(".p2align 6")
    a.label("L_m_pass")
    def b_read(ks, a=a):
        b = BR + (ks % 3) * 16
        for q in range(4):
            a(f"ds_read_b128 {v(b+4*q,4)}, v{3 + ks // 9} offset:{(ks % 9)*4096 + q*1024}")
    def step(ks, loads):
        left = 3*(RDS-2) if loads else 3 * (17 - ks)
        a(f"s_waitcnt vmcnt({left}) lgkmcnt({4 if ks < 17 else 0})")
        b = BR + (ks % 3) * 16
        A = AR + 12 * (ks % RDS)
        R = Lst(); L = Lst()
        if ks + 2 < 18: b_read(ks + 2, R)
        if loads: a_loads(L, (ks - 1) % RDS)
        fill = {}
        for i, x in enumerate(R): fill[(0, 2, 4, 6)[i]] = x
        for i, x in enumerate(L): fill[(1, 5, 8, 10)[i]] = x
        n = 0
        for t in range(3):
            for q in range(4):
                mfma16(a, acc(t, q), A + 4*t, b + 4*q, CI + 4*t if ks == 0 else acc(t, q))
                if n in fill: a(fill[n])
                n += 1
    for ks in range(2): b_read(ks)
    for ks in range(18):
        if ks in (4, 10):
            a(f"s_bitcmp1_b32 s69, {0 if ks == 4 else 1}")
            a(f"s_cbranch_scc0 L_m_nb{ks}")
            a("s_barrier")
            a.label(f"L_m_nb{ks}")
            if ks == 10:
                a("s_bitcmp1_b32 s69, 3")
                a("s_cbranch_scc1 L_m_tail")
        step(ks, True)
    a("s_nop 7")
    a("s_setpc_b64 s[74:75]")
    a.label("L_m_tail")
    if GATEB:
        a("s_cmp_lg_u32 s41, 0")
        a("s_cbranch_scc1 L_m_nf")
        flag_store(a, WS_FP1, 11)
        a.label("L_m_nf")
    for ks in range(10, 18): step(ks, False)
    a("s_nop 7")
    a("s_setpc_b64 s[74:75]")
    a.label("L_m_gelu")
    a("s_mul_i32 s46, s68, 6")
    a("v_add_u32 v11, s46, v6")
    a("v_lshrrev_b32 v12, 2, v11")
    a("v_lshl_add_u32 v12, v12, 12, v9")
    a("v_and_b32 v11, 3, v11")
    a("v_lshl_add_u32 v11, v11, 8, v12")
    a(f"v_add_u32 v11, {L_H}, v11")
    a("s_add_u32 s46, s46, 4")
    a("v_add_u32 v12, s46, v7")
    a("v_lshrrev_b32 v13, 2, v12")
    a("v_lshl_add_u32 v13, v13, 12, v9")
    a("v_and_b32 v12, 3, v12")
    a("v_lshl_add_u32 v12, v12, 8, v13")
    a("v_and_b32 v13, 1, v6")
    a("v_lshl_add_u32 v12, v13, 3, v12")
    a(f"v_add_u32 v12, {L_H}, v12")
    for qq in range(2):
        for t in range(3):
            gelu(a, list(range(acc(t, 2*qq), acc(t, 2*qq) + 8)), GT, GT + 22)
        for q in (2*qq, 2*qq + 1):
            o = GT + 8 + (q & 1) * 6
            for r in range(4):
                a(f"v_cvt_pk_bf16_f32 v{o+r}, v{acc(0,q)+r}, v{acc(1,q)+r}")
            a(f"v_cvt_pk_bf16_f32 v{o+4}, v{acc(2,q)}, v{acc(2,q)+1}")
            a(f"v_cvt_pk_bf16_f32 v{o+5}, v{acc(2,q)+2}, v{acc(2,q)+3}")
            a(f"ds_write_b128 v11, {v(o,4)} offset:{q*1024}")
            a(f"ds_write_b64 v12, {v(o+4,2)} offset:{q*1024}")
    a("s_setpc_b64 s[74:75]")
    a.label("L_m_cvt")
    for q in range(4):
        o = GT + q * 4
        for r in range(4):
            a(f"v_cvt_pk_bf16_f32 v{o+r}, v{acc(0,q)+r}, v{acc(1,q)+r}")
        o2 = GT + 16 + (q >> 1) * 4 + (q & 1) * 2
        a(f"v_cvt_pk_bf16_f32 v{o2}, v{acc(2,q)}, v{acc(2,q)+1}")
        a(f"v_cvt_pk_bf16_f32 v{o2+1}, v{acc(2,q)+2}, v{acc(2,q)+3}")
    for b in (GT + 16, GT + 20):
        a(f"v_permlane16_swap_b32 v{b}, v{b+2}")
        a(f"v_permlane16_swap_b32 v{b+1}, v{b+3}")
    a("s_setpc_b64 s[74:75]")
    a.label("L_m_st")
    a("s_mul_i32 s46, s68, 768")
    a("s_add_u32 s46, s46, s71")
    for q in range(4):
        a(f"s_add_u32 s47, s46, {q*147456}")
        a(f"buffer_store_dwordx4 {v(GT+4*q,4)}, v14, {s(ws,4)}, s47 offen sc1")
        if not q & 1:
            a(f"buffer_store_dwordx4 {v(GT+16+(q>>1)*4,4)}, v15, {s(ws,4)}, s47 offen offset:512 sc1")
    a("s_nop 1")
    a("s_setpc_b64 s[74:75]")

def reduce_setup(a):
    srd(a, XS_, 22, D * 2)
    srd(a, 24, 6, S * D * 2)
    a("s_mov_b32 s76, 0xffff0000")
    a("s_lshl_b32 s46, s56, 8")
    a(f"s_add_u32 s53, s46, {WS_FP1}")
    a("v_lshlrev_b32 v8, 2, v1")
    a("v_and_b32 v8, 0xec, v8")
    a("s_mov_b32 s73, 0")

def reduce_item(a):
    ws = WS_
    a.label("L_r_item")
    R = ACC; Z = BR
    a("v_lshrrev_b32 v11, 3, v1")
    a("v_lshlrev_b32 v11, 4, v11")
    a("s_lshl_b32 s45, s48, 7")
    a(f"buffer_load_dwordx4 {v(R+32,4)}, v11, {s(XS_,4)}, s45 offen")
    a("s_mul_i32 s72, s57, 73728")
    a("s_lshl_b32 s47, s48, 10")
    a("s_add_u32 s72, s72, s47")
    a(f"s_add_u32 s72, s72, {WS_P}")
    a(f"s_add_u32 s47, s47, {L_HH}")
    a("v_add_u32 v12, s47, v2")
    a(f"ds_read_b128 {v(R+36,4)}, v12")
    a("s_mov_b32 s62, 0xff")
    a(f"s_mov_b32 s49, {POLL_MAX}")
    a.label("L_r_again")
    for i in range(8):
        a(f"s_bitcmp1_b32 s62, {i}")
        a(f"s_cbranch_scc0 L_r_sk{i}")
        a(f"s_add_u32 s46, s72, {i*9216}")
        a(f"buffer_load_dwordx4 {v(R+4*i,4)}, v2, {s(ws,4)}, s46 offen sc1")
        a.label(f"L_r_sk{i}")
    a("s_cmp_eq_u32 s73, 0")
    a("s_cbranch_scc1 L_r_have")
    a("s_waitcnt vmcnt(0)")
    a("s_mov_b32 s62, 0")
    for i in range(8):
        a(f"v_max3_u32 v13, v{R+4*i}, v{R+4*i+1}, v{R+4*i+2}")
        a(f"v_max_u32 v13, v13, v{R+4*i+3}")
        a("v_cmp_eq_u32 vcc, -1, v13")
        a("s_nop 1")
        a("s_cmp_lg_u64 vcc, 0")
        a(f"s_cselect_b32 s46, {1 << i}, 0")
        a("s_or_b32 s62, s62, s46")
    a("s_cbranch_scc0 L_r_have")
    a(f"s_sleep {RSLEEP}")
    a("s_sub_u32 s49, s49, 1")
    a("s_cbranch_scc0 L_r_again")
    a.label("L_r_have")
    stamp_rt(a, 45)
    a("v_mad_u32_u24 v11, v5, s44, v11")
    a("s_mul_i32 s46, s57, 9216")
    a("s_add_u32 s46, s46, s45")
    a("s_waitcnt lgkmcnt(0)")
    for r in range(4):
        a(f"v_lshlrev_b32 v{Z+2*r}, 16, v{R+36+r}")
        a(f"v_and_b32 v{Z+1+2*r}, s76, v{R+36+r}")
    for k, i in enumerate([8] + list(range(8))):
        a(f"s_waitcnt vmcnt({8-k})")
        for r in range(4):
            a(f"v_lshlrev_b32 v{Z+12}, 16, v{R+4*i+r}")
            a(f"v_and_b32 v{Z+13}, s76, v{R+4*i+r}")
            a(f"v_add_f32 v{Z+2*r}, v{Z+2*r}, v{Z+12}")
            a(f"v_add_f32 v{Z+1+2*r}, v{Z+1+2*r}, v{Z+13}")
    for r in range(4):
        a(f"v_cvt_pk_bf16_f32 v{Z+8+r}, v{Z+2*r}, v{Z+1+2*r}")
    a(f"buffer_store_dwordx4 {v(Z+8,4)}, v11, s[24:27], s46 offen {OUTMOD}")
    a("s_nop 1")
    a("s_setpc_b64 s[74:75]")

def k_main(name):
    a = Asm()
    kernel_head(a, name)
    a("s_cmp_ge_u32 s2, 256")
    a("s_cbranch_scc1 L_end")
    stamp_first(a)
    mark(a, "start")
    prologue(a)
    stamp_init(a, 0)
    attention(a)
    mlp(a)
    stamp_dump(a, 2)
    diag_end(a)
    a.label("L_end")
    a("s_endpgm")
    subroutines(a)
    reduce_item(a)
    return a.finish(), descriptor(name, 256, 80)
```

```python
from common import *
from k_pack import *
import math

MAPPING = os.environ.get("MAPPING", "B")
VZERO = os.environ.get("VZERO", "1") == "1"
WMOD = os.environ.get("WMOD", "sc1")
PKGELU = os.environ.get("PKGELU", "0") == "1"
PACE = int(os.environ.get("PACE", "1"))
DBG = int(os.environ.get("DBG", "0"))
YMOD = os.environ.get("YMOD", "")
GATEA = os.environ.get("GATEA", "1") == "1"
PK_T = tuple(int(x) for x in os.environ.get("PK_T", "4,6,8").split(","))
RSLEEP = int(os.environ.get("RSLEEP", "4"))
TOUCH = os.environ.get("TOUCH", "0") == "1"
BLOAD = os.environ.get("BLOAD", "1") == "1"
EARLY0 = os.environ.get("SENT1", "0") == "1"
OUTMOD = os.environ.get("OUTMOD", "")
SENT1 = os.environ.get("SENT1", "0") == "1"
YSLEEP = int(os.environ.get("YSLEEP", "2"))
TAILK = int(os.environ.get("TAILK", "3"))
BPRE = int(os.environ.get("BPRE", "0"))
RELOAD = os.environ.get("RELOAD", "0") == "1"
GATEB = os.environ.get("GATEB", "1") == "1"
SENT2 = os.environ.get("SENT2", "0") == "1"
PKMOD = os.environ.get("PKMOD", "sc1")
YSENT = os.environ.get("YSENT", "1") == "1"
NOGELU = os.environ.get("NOGELU", "0") == "1"
LDS_MAIN = 163840
L_OS = KV_BYTES
L_CP = L_OS + 8 * 608
L_ST = L_CP + 6144
L_CNT = L_ST + 512
L_Y = 0; L_H = 73728; L_B1 = 147456; L_B1D = L_B1 + 2304; L_HH = L_B1 + 4608
assert L_HH + 9216 <= L_ST and L_CNT + 16 <= LDS_MAIN
WS_, XS_ = 32, 36
KA_, KR_, VA_ = 2, 3, 4
Q2POS = {2: 10, 0: 12, 3: 14, 1: 16}; QX = (12, 17)
Q1 = 20; SB = (24, 40); P = 56; O = 64; KB = (80, 84); KRB = (88, 92); VB = (96, 104)
TPI = 16
CI = 16; AR = 28; ACC = 136; BR = 184; GT = 232
RDS = 9
WSR = 64
C0 = -2.0 * 0.7978845608028654 * math.log2(math.e)
C1 = C0 * 0.044715
POLL_MAX = 1 << 20

def koff(t): return (t >> 2) * KV_BLK + (t & 3) * 1024
def kroff(blk): return blk * KV_BLK
def voff(t, mf): return (t >> 2) * KV_BLK + (t & 3) * 1216 + mf * 608

def tile(a, t, bg=None, nbg=0):
    Sc = SB[t & 1]; Sn = SB[(t + 1) & 1]
    def B(k):
        while bg and k > 0:
            x = bg.pop(0); a(x)
            if not x.startswith("s_"): k -= 1
    ex = lambda i: a(f"v_exp_f32 v{Sc+i}, v{Sc+i}")
    cv = lambda i: a(f"v_cvt_pk_bf16_f32 v{P+i}, v{Sc+2*i}, v{Sc+2*i+1}")
    a(f"s_waitcnt lgkmcnt({2 if (t & 3) == 2 else 1})")
    mfma32(a, Sn, KB[(t + 1) & 1], Q1, None)
    a(f"ds_read_b128 {v(VB[(t+1) & 1],4)}, v{VA_} offset:{voff(t+1,0)}")
    for i in range(0, 4): ex(i)
    mfma32(a, O, VB[(t + 1) & 1] + 4, P + 4, O)
    a(f"ds_read_b128 {v(VB[(t+1) & 1]+4,4)}, v{VA_} offset:{voff(t+1,1)}")
    cv(0); cv(1)
    for i in range(4, 8): ex(i)
    mfma32(a, Sn, KRB[((t + 1) >> 2) & 1], Q2POS[(t + 1) & 3], Sn)
    a(f"ds_read_b128 {v(KB[(t+1) & 1],4)}, v{KA_} offset:{koff(t+3)}")
    cv(2); cv(3)
    for i in range(8, 12): ex(i)
    mfma32(a, O, VB[t & 1], P, O)
    if (t & 3) == 1:
        a(f"ds_read_b128 {v(KRB[((t>>2)+1) & 1],4)}, v{KR_} offset:{kroff((t>>2)+1)}")
    cv(4); cv(5)
    for i in range(12, 16): ex(i)
    cv(6); cv(7)

def pipe_start(a):
    a(f"ds_read_b128 {v(KB[0],4)}, v{KA_} offset:{koff(0)}")
    a(f"ds_read_b128 {v(KRB[0],4)}, v{KR_} offset:{kroff(0)}")
    a(f"ds_read_b128 {v(KB[1],4)}, v{KA_} offset:{koff(1)}")
    a(f"ds_read_b128 {v(VB[0],4)}, v{VA_} offset:{voff(0,0)}")
    a(f"ds_read_b128 {v(VB[0]+4,4)}, v{VA_} offset:{voff(0,1)}")
    a("s_waitcnt lgkmcnt(3)")
    mfma32(a, SB[0], KB[0], Q1, None)
    mfma32(a, SB[0], KRB[0], Q2POS[0], SB[0])
    a(f"ds_read_b128 {v(KB[0],4)}, v{KA_} offset:{koff(2)}")
    a("s_nop 10")

def wo0_loads(a, sx, vl):
    b = 112 + (sx % 4) * 36
    for t in range(9):
        if t == 4 or t == 8: a("s_add_u32 s61, s61, 4096")
        a(f"buffer_load_dwordx4 {v(b+4*t,4)}, v{vl}, {s(WS_,4)}, s61 offen offset:{(t%4)*1024}")
    a(f"s_add_u32 s61, s61, {36*1024 - 8192}")

def lds_poll(a, tag, vaddr, vtmp, thr):
    a(f"s_mov_b32 s49, {POLL_MAX}")
    a.label(f"L_{tag}")
    a(f"ds_read_b32 v{vtmp}, v{vaddr}")
    a("s_waitcnt lgkmcnt(0)")
    a(f"v_readfirstlane_b32 s47, v{vtmp}")
    a("s_sub_u32 s49, s49, 1")
    a(f"s_cbranch_scc1 L_{tag}_ok")
    a(f"s_cmp_ge_u32 s47, {thr}")
    a(f"s_cbranch_scc1 L_{tag}_ok")
    a("s_sleep 2")
    a(f"s_branch L_{tag}")
    a.label(f"L_{tag}_ok")

def flag_poll(a, tag, vaddr, vtmp, s_off, width, sleep=1):
    a(f"s_mov_b32 s49, {POLL_MAX}")
    a.label(f"L_{tag}")
    if width == 1:
        a(f"buffer_load_dword v{vtmp}, v{vaddr}, {s(WS_,4)}, s{s_off} offen sc1")
    else:
        a(f"buffer_load_dwordx2 {v(vtmp,2)}, v{vaddr}, {s(WS_,4)}, s{s_off} offen sc1")
    a("s_waitcnt vmcnt(0)")
    if width == 2: a(f"v_min_u32 v{vtmp}, v{vtmp}, v{vtmp+1}")
    a(f"v_cmp_eq_u32 vcc, 0, v{vtmp}")
    a("s_sub_u32 s49, s49, 1")
    a(f"s_cbranch_scc1 L_{tag}_ok")
    a("s_nop 1")
    a("s_cmp_eq_u64 vcc, 0")
    a(f"s_cbranch_scc1 L_{tag}_ok")
    a(f"s_sleep {sleep}")
    a(f"s_branch L_{tag}")
    a.label(f"L_{tag}_ok")

def flag_store(a, base, vt):
    a("s_lshl_b32 s46, s57, 3")
    a("s_add_u32 s46, s46, s3")
    a("s_lshl_b32 s46, s46, 2")
    a(f"s_add_u32 s46, s46, {base}")
    a(f"v_mov_b32 v{vt}, 0")
    a(f"v_mov_b32 v{vt+1}, 1")
    a("s_mov_b64 exec, 1")
    a(f"buffer_store_dword v{vt+1}, v{vt}, {s(WS_,4)}, s46 offen sc1")
    a("s_mov_b64 exec, -1")

def a_loads(a, step_slot):
    for t in range(3):
        a(f"buffer_load_dwordx4 {v(AR + step_slot*12 + 4*t, 4)}, v2, {s(WSR,4)}, s70 offen offset:{t*1024} {WMOD}")
    a("s_add_u32 s70, s70, 3072")

def prologue(a):
    a(f"s_load_dwordx2 s[4:5], s[0:1], {KA['x']}")
    a(f"s_load_dwordx8 s[16:23], s[0:1], {KA['w1']}")
    a(f"s_load_dwordx2 s[6:7], s[0:1], {KA['out']}")
    a(f"s_load_dwordx2 s[12:13], s[0:1], {KA['ws']}")
    a("v_lshrrev_b32 v7, 6, v0")
    a("v_and_b32 v1, 63, v0")
    a("v_readfirstlane_b32 s3, v7")
    nb = {"A": 3, "B": 2, "C": 1, "D": 0}[MAPPING]
    a(f"s_and_b32 s43, s2, {(1 << nb) - 1}")
    a(f"s_lshl_b32 s43, s43, {3 - nb}")
    a(f"s_bfe_u32 s45, s2, {hex(((3 - nb) << 16) | 3)}")
    a("s_add_u32 s43, s43, s45")
    a(f"s_lshr_b32 s56, s2, {6 - nb}")
    a(f"s_lshl_b32 s56, s56, {3 - nb}")
    a(f"s_bfe_u32 s45, s2, {hex(((3 - nb) << 16) | nb)}")
    a("s_add_u32 s56, s56, s45")
    a("s_lshl_b32 s57, s56, 3")
    a("s_add_u32 s57, s57, s43")
    a("s_lshl_b32 s42, s57, 3")
    a("s_and_b32 s40, s3, 3")
    a("s_lshr_b32 s41, s3, 2")
    a("s_movk_i32 s44, 1152")
    a("v_and_b32 v5, 15, v1")
    a("v_mul_u32_u24 v5, 36, v5")
    a("v_bfe_u32 v6, v1, 4, 1")
    a("v_mad_u32_u24 v5, v6, s44, v5")
    a("v_lshrrev_b32 v7, 5, v1")
    a("v_lshl_add_u32 v6, v7, 4, v5")
    a("s_lshl_b32 s45, s40, 1")
    a("s_add_u32 s45, s45, s42")
    a("s_mul_i32 s45, s45, 1152")
    a("s_mul_i32 s46, s41, 576")
    a("s_add_u32 s45, s45, s46")
    a(f"s_add_u32 s45, s45, {WS_Q}")
    a("v_lshlrev_b32 v8, 3, v1")
    a("v_lshlrev_b32 v9, 4, v1")
    a("s_lshl_b32 s47, s3, 10")
    a("s_waitcnt lgkmcnt(0)")
    ws_shift(a)
    srd(a, WS_, 12, WS_END)

def attention(a):
    ws = WS_
    a(f"buffer_load_dwordx4 {v(Q1,4)}, v6, {s(ws,4)}, s45 offen")
    a(f"buffer_load_dword v{QX[0]}, v5, {s(ws,4)}, s45 offen offset:32")
    a(f"s_mov_b32 s46, {WS_KMAX}")
    a(f"buffer_load_dwordx4 v[24:27], v9, {s(ws,4)}, s46 offen")
    for i in range(4):
        a(f"s_add_u32 m0, s47, {i*8192}")
        a(f"s_add_u32 s46, s47, {WS_KV + i*8192}")
        a(f"buffer_load_dwordx4 v9, {s(ws,4)}, s46 offen lds")
    srd(a, XS_, 4, S * D * 2)
    a("s_cmp_lg_u32 s41, 0")
    a("s_cbranch_scc0 L_a_nodma")
    a("s_lshl_b32 s47, s40, 10")
    for i in range(29):
        if i == 6:
            a("s_waitcnt vmcnt(3)")
            a("s_barrier")
        a(f"s_add_u32 m0, s47, {32768 + i*4096}")
        a(f"s_add_u32 s46, s47, {WS_KV + 32768 + i*4096}")
        a(f"buffer_load_dwordx4 v9, {s(ws,4)}, s46 offen lds")
    a("s_setprio 3")
    a("s_branch L_a_dmadone")
    a.label("L_a_nodma")
    a("s_setprio 2")
    a.label("L_a_dmadone")
    a(f"v_mov_b32 v{KA_}, v9")
    a(f"v_add_u32 v{KR_}, 4096, v9")
    a(f"v_mov_b32 v8, {4608 + 288}")
    a("v_cmp_gt_u32 s[50:51], 32, v1")
    a(f"v_cndmask_b32 v{KR_}, v8, v{KR_}, s[50:51]")
    a("v_and_b32 v5, 31, v1")
    sigma_v(a, 6, 5, 8, 9)
    if VZERO:
        a("v_mov_b32 v8, 0x8000")
    else:
        a("v_add_u32 v8, -20, v5")
        a("v_cmp_gt_u32 vcc, 8, v8")
        a("v_cndmask_b32 v8, 4, 0, vcc")
    a("v_cmp_lt_u32 vcc, 18, v5")
    a("v_cndmask_b32 v6, v6, v8, vcc")
    a("v_lshlrev_b32 v6, 4, v6")
    a("s_movk_i32 s46, 304")
    a(f"v_mad_u32_u24 v{VA_}, v7, s46, v6")
    a(f"v_add_u32 v{VA_}, 4608, v{VA_}")
    for r in (10, 11, 13, 14, 15, 16, 18, 19): a(f"v_mov_b32 v{r}, 0")
    for r in range(O, O + 16): a(f"v_mov_b32 v{r}, 0")
    for r in range(P + 4, P + 8): a(f"v_mov_b32 v{r}, 0")
    for r in range(VB[1] + 4, VB[1] + 8): a(f"v_mov_b32 v{r}, 0")
    stamp(a, 1)
    a("s_cmp_lg_u32 s41, 0")
    a("s_cbranch_scc1 L_a_qready")
    a(f"v_mov_b32 v8, {L_CNT}")
    a("ds_write_b32 v8, v10")
    a("s_waitcnt vmcnt(4)")
    a.label("L_a_qready")
    a(f"v_dot2_f32_bf16 v5, v{Q1}, v{Q1}, 0")
    for i in range(1, 4):
        a(f"v_dot2_f32_bf16 v5, v{Q1+i}, v{Q1+i}, v5")
    a("v_max_f32 v24, v24, v25")
    a("v_max3_f32 v24, v24, v26, v27")
    for rr in (8, 4, 2, 1):
        a(f"v_max_f32_dpp v24, v24, v24 row_ror:{rr} row_mask:0xf bank_mask:0xf")
    a("v_mov_b32 v25, v24")
    a("v_mov_b32 v6, v5")
    a("v_permlane16_swap_b32 v24, v25")
    a("v_permlane32_swap_b32 v5, v6")
    a("v_max_f32 v24, v24, v25")
    a("v_add_f32 v5, v5, v6")
    a("v_mov_b32 v25, v24")
    a(f"v_dot2_f32_bf16 v5, v{QX[0]}, v{QX[0]}, v5")
    a("v_permlane32_swap_b32 v24, v25")
    a("v_add_f32 v24, v24, v25")
    a("v_mul_f32 v5, v5, v24")
    a("v_sqrt_f32 v5, v5")
    a(f"v_mul_f32 v5, {fbits(-1.02)}, v5")
    a("v_cvt_pk_bf16_f32 v5, v5, 0")
    a(f"v_cndmask_b32 v{QX[0]}, v5, v{QX[0]}, s[50:51]")
    a(f"v_mov_b32 v{QX[1]}, v{QX[0]}")
    a("s_mov_b32 s60, 0")
    a("s_mov_b32 s48, 0")
    a("v_lshlrev_b32 v9, 4, v1")
    a("s_cmp_lg_u32 s41, 0")
    a("s_cbranch_scc1 L_a_young_pre")
    a(f"s_mov_b32 s59, {16 // TPI}")
    a("s_waitcnt vmcnt(0) lgkmcnt(0)")
    a("s_barrier")
    a.label("L_a_start")
    stamp(a, 3)
    pipe_start(a)
    a.raw(".p2align 6")
    a.label("L_a_loop")
    for t in range(TPI): tile(a, t)
    a.label("L_a_loop_end")
    step = (TPI // 4) * KV_BLK
    a(f"v_add_u32 v{KA_}, {step}, v{KA_}")
    a(f"v_add_u32 v{KR_}, {step}, v{KR_}")
    a(f"v_add_u32 v{VA_}, {step}, v{VA_}")
    a("s_add_u32 s48, s48, 1")
    a("s_cmp_eq_u32 s48, s59")
    a("s_cbranch_scc1 L_a_inter")
    a(f"s_cmp_lt_u32 s48, {64 // TPI}")
    a("s_cbranch_scc1 L_a_loop")
    mfma32(a, O, VB[1] + 4, P + 4, O)
    a.label("L_a_norm")
    stamp(a, 4); mark(a, "L")
    a("s_waitcnt lgkmcnt(0)")
    a("s_nop 12")
    a(f"v_mov_b32 v5, v{O+10}")
    a(f"v_mov_b32 v6, v{O+10}")
    a("v_permlane32_swap_b32 v5, v6")
    a(f"v_mov_b32 v7, {fbits(2.0**-40)}")
    a("v_cmp_nge_f32 vcc, v5, v7")
    a("s_nop 3")
    a("s_cmp_lg_u64 vcc, 0")
    a("s_cselect_b32 s49, 1, 0")
    a("s_andn2_b32 s49, s49, s60")
    a("s_cbranch_scc1 L_a_fallback")
    a("v_rcp_f32 v5, v5")
    a("v_bfe_u32 v6, v1, 4, 1")
    a("s_lshl_b32 s46, s40, 1")
    a("v_add_u32 v6, s46, v6")
    a("v_mul_u32_u24 v6, 608, v6")
    a("v_and_b32 v7, 15, v1")
    a("v_lshl_add_u32 v8, v7, 2, v6")
    a("v_lshl_add_u32 v6, v7, 5, v6")
    a("v_lshrrev_b32 v7, 5, v1")
    a("v_lshl_add_u32 v6, v7, 4, v6")
    a(f"v_add_u32 v6, {L_OS}, v6")
    a(f"v_add_u32 v8, {L_OS + 512}, v8")
    for i in range(10):
        a(f"v_mul_f32 v{O+i}, v{O+i}, v5")
    for i in range(5):
        a(f"v_cvt_pk_bf16_f32 v{P+i}, v{O+2*i}, v{O+2*i+1}")
    a("s_cmp_eq_u32 s41, 0")
    a("s_cbranch_scc1 L_a_poll2_ok")
    a(f"v_mov_b32 v9, {L_CNT}")
    lds_poll(a, "a_poll2", 9, 7, 8)
    a(f"ds_write_b128 v6, {v(P,4)}")
    a("s_mov_b64 exec, 0xffffffff")
    a(f"ds_write_b32 v8, v{P+4}")
    a("s_mov_b64 exec, -1")
    a("v_and_b32 v5, 7, v1")
    a("v_mul_u32_u24 v4, 608, v5")
    a("v_lshrrev_b32 v6, 4, v1")
    a("v_lshl_add_u32 v4, v6, 4, v4")
    a(f"v_add_u32 v4, {L_OS}, v4")
    a("v_lshl_add_u32 v3, v6, 3, v5")
    a("v_lshlrev_b32 v3, 4, v3")
    a("s_mul_i32 s46, s40, 1536")
    a(f"s_add_u32 s46, s46, {L_CP}")
    a("v_add_u32 v3, s46, v3")
    a("v_lshlrev_b32 v2, 4, v1")
    a("s_mul_i32 s70, s3, 165888")
    a(f"s_mul_i32 s47, s43, {SLICE}")
    a("s_add_u32 s70, s70, s47")
    a(f"s_add_u32 s70, s70, {WS_W}")
    a(f"s_mov_b32 s{WSR}, s12")
    a(f"s_and_b32 s{WSR+1}, s13, 0xffff")
    a(f"s_add_u32 s{WSR+2}, s70, 165888")
    a(f"s_mov_b32 s{WSR+3}, 0x00020000")
    a("s_mov_b32 s54, 0x00ff00ff")
    a("s_mov_b32 s55, 0x00ff00ff")
    a("s_cmp_lg_u32 s41, 0")
    a("s_cbranch_scc1 L_a_young_tail")

    WA = 16
    WB = 112
    a(f"v_mov_b32 v8, {L_CNT}")
    a("v_mov_b32 v9, 1")
    a("s_waitcnt lgkmcnt(0)")
    a("s_mov_b64 exec, 1")
    a("ds_add_u32 v8, v9")
    a("s_mov_b64 exec, -1")
    a("s_mul_i32 s61, s40, 9216")
    a(f"s_add_u32 s61, s61, {WS_WO}")
    for sx in range(4): wo0_loads(a, sx, 2)
    a("v_mul_u32_u24 v10, 1152, v5")
    a("v_lshl_add_u32 v11, v6, 3, v10")
    a("v_lshl_add_u32 v10, v6, 4, v10")
    a("s_mul_i32 s46, s42, 1152")
    a("s_mul_i32 s47, s40, 288")
    a("s_add_u32 s52, s46, s47")
    for i in range(4):
        a(f"buffer_load_dwordx4 {v(92+4*i,4)}, v10, {s(XS_,4)}, s52 offen offset:{i*64}")
    a(f"buffer_load_dwordx2 v[108:109], v11, {s(XS_,4)}, s52 offen offset:256")
    lds_poll(a, "a_poll", 8, 9, 4)
    stamp(a, 5)
    for sx in range(9):
        a(f"ds_read_b128 {v(56+4*sx,4)}, v4 offset:{sx*64}")
    a("v_mov_b32 v9, 1")
    a("s_waitcnt lgkmcnt(0)")
    a("s_mov_b64 exec, 1")
    a("ds_add_u32 v8, v9")
    a("s_mov_b64 exec, -1")
    a("s_setprio 0")
    for sx in range(9):
        a(f"s_waitcnt vmcnt({min(3, 8 - sx)*9 + (5 if sx < 4 else 0)})")
        b = WB + (sx % 4) * 36
        for t in range(9):
            mfma16(a, WA + 4*t, b + 4*t, 56 + 4*sx, None if sx == 0 else WA + 4*t)
        if sx + 4 < 9: wo0_loads(a, sx + 4, 2)
    a("s_setprio 2")
    a("s_mov_b32 s46, 0x00003f80")
    a("s_mov_b32 s47, 0x3f800000")
    for k in list(range(12, 18)) + list(range(12)):
        a(f"v_dot2_f32_bf16 v{WA+2*k}, v{92+k}, s46, v{WA+2*k}")
        a(f"v_dot2_f32_bf16 v{WA+2*k+1}, v{92+k}, s47, v{WA+2*k+1}")
    stamp(a, 23)
    a("s_mov_b64 exec, s[54:55]")
    for t in range(3):
        a(f"ds_write_b128 v3, {v(WA+24+4*t,4)} offset:{t*512}")
    a("s_mov_b64 exec, -1")
    a("s_waitcnt lgkmcnt(0)")
    a("s_mul_i32 s46, s40, 9216")
    a(f"s_add_u32 s46, s46, {WS_WO + 9*36*1024}")
    for sx in range(9):
        for t in range(6):
            if t == 4: a("s_add_u32 s46, s46, 4096")
            a(f"buffer_load_dwordx4 {v(40+(sx*6+t)*4,4)}, v2, {s(ws,4)}, s46 offen offset:{(t%4)*1024}")
        a(f"s_add_u32 s46, s46, {36*1024 - 4096}")
    a("v_lshlrev_b32 v8, 3, v1")
    a("s_lshl_b32 s46, s43, 9")
    a(f"s_add_u32 s46, s46, {WS_FPACK}")
    flag_poll(a, "a_pkpoll", 8, 10, 46, 2, sleep=8)
    stamp(a, 6)
    a("s_barrier")
    stamp(a, 7)
    a(f"ds_read_b128 v[8:11], v4 offset:0")
    for sx in range(9):
        if sx + 1 < 9:
            a(f"ds_read_b128 {v(8+((sx+1)&1)*4,4)}, v4 offset:{(sx+1)*64}")
        a(f"s_waitcnt lgkmcnt({1 if sx+1 < 9 else 0})")
        for t in range(6):
            mfma16(a, WA + 4*t, 40 + (sx*6+t)*4, 8 + (sx&1)*4, WA + 4*t)
    ln_tail(a, WA, 6, 0)
    a("s_branch L_m_roleB")

    a.label("L_a_young_tail")
    a("s_waitcnt vmcnt(0) lgkmcnt(0)")
    stamp(a, 6)
    a("s_barrier")
    stamp(a, 7)
    for t in range(3):
        a(f"ds_read_b128 {v(WA+4*t,4)}, v3 offset:{t*512}")
    for sx in range(9):
        a(f"ds_read_b128 {v(104+4*sx,4)}, v4 offset:{sx*64}")
    L = Lst()
    for k in range(TAILK): a_loads(L, k)
    for sx in range(9):
        a(f"s_waitcnt lgkmcnt({8-sx})")
        for t in range(3):
            mfma16(a, WA + 4*t, 148 + (sx*3+t)*4, 104 + 4*sx, WA + 4*t)
            if t == 2 and L:
                a(L.pop(0))
                if L and L[0].startswith("s_"): a(L.pop(0))
    ln_tail(a, WA, 3, 6)
    stamp(a, 26); stamp_rt(a, 40)
    a("s_barrier")
    if YSENT:
        for k in range(TAILK, RDS - 1): a_loads(a, k)
    else:
        for k in range(TAILK, TAILK + 3): a_loads(a, k)
        a("s_waitcnt vmcnt(9)")
        flag_store(a, WS_FY, 8)
        for k in range(TAILK + 3, RDS - 1): a_loads(a, k)
    a("s_lshl_b32 s46, s40, 6")
    a("v_add_u32 v8, s46, v1")
    a("v_lshlrev_b32 v11, 3, v8")
    a(f"v_add_u32 v11, {L_B1}, v11")
    a(f"v_lshlrev_b32 v{GT+2}, 16, v140")
    a(f"v_and_b32 v{GT+3}, 0xffff0000, v140")
    a(f"v_lshlrev_b32 v{GT+4}, 16, v141")
    a(f"v_and_b32 v{GT+5}, 0xffff0000, v141")
    a(f"ds_write_b64 v11, {v(GT+2,2)}")
    a("v_lshrrev_b32 v12, 2, v8")
    a("v_lshlrev_b32 v12, 5, v12")
    a("v_and_b32 v13, 3, v8")
    a("v_lshl_add_u32 v12, v13, 2, v12")
    a(f"v_add_u32 v12, {L_B1D}, v12")
    a(f"ds_write2_b32 v12, v{GT+2}, v{GT+3} offset0:0 offset1:4")
    a("v_add_u32 v12, 2048, v12")
    a("s_cmp_lg_u32 s40, 0")
    a("s_cbranch_scc1 L_m_roleA")
    a("s_mov_b64 exec, 0xffffffff")
    a(f"ds_write_b64 v11, {v(GT+4,2)} offset:2048")
    a(f"ds_write2_b32 v12, v{GT+4}, v{GT+5} offset0:0 offset1:4")
    a("s_mov_b64 exec, -1")
    a("s_branch L_m_roleA")

    a.label("L_a_inter")
    a("s_barrier")
    a("s_branch L_a_loop")

    a.label("L_a_young_pre")
    a("s_lshl_b32 s58, s56, 2")
    a("s_add_u32 s58, s58, s40")
    a("s_min_u32 s59, s58, 119")
    sja, selA, selB = w_pack_setup(a, 59, 43, 16, 20, 24, 72, 61, 62, 63, 1, 5, 6, 7)
    a("s_mov_b32 s59, 99")
    a("s_mov_b32 s52, s63")
    a("s_waitcnt vmcnt(8)")
    w_pack_loads(a, 2, 24, 61, 62, sja, 5, 6, 112)
    a("s_waitcnt vmcnt(32)")
    stamp(a, 2)
    a("s_barrier")
    a("s_waitcnt vmcnt(26)")
    w_pack_loads(a, 2, 24, 61, 62, sja, 5, 6, 144)
    if TOUCH:
        a("s_mov_b32 s46, 0x24000")
        a("s_lshl_b32 s47, s40, 6")
        a("v_add_u32 v7, s47, v1")
        a("v_mul_lo_u32 v7, v7, s46")
        a(f"buffer_load_dword v252, v7, {s(ws,4)}, 0 offen")
        srd(a, 28, 6, S * D * 2)
        a("v_lshlrev_b32 v7, 16, v1")
        a("buffer_load_dword v253, v7, s[28:31], 0 offen")
        a("v_mov_b32 v7, 0")
        a("global_load_dword v254, v7, s[18:19]")
        a("global_load_dword v255, v7, s[22:23]")
    stamp(a, 20)
    pipe_start(a)
    for t in range(TPI):
        tile(a, t)
        if t == PK_T[0]:
            for st in range(4):
                a(f"s_waitcnt vmcnt({(3-st)*16 + st*3 + (4 if TOUCH else 0)})")
                w_pack_stores(a, 112 + st*16, 176 + (st & 1)*12, selA, selB, ws, 9, 63, PKMOD)
            for i in range(4): a(f"v_mov_b32 v{200+i}, -1")
            a("s_mul_i32 s46, s57, 73728")
            a("s_mul_i32 s47, s40, 18432")
            a("s_add_u32 s46, s46, s47")
            if SENT1:
                a(f"s_add_u32 s46, s46, {WS_P + 3072}")
                for i in range(12):
                    if i and i % 3 == 0: a(f"s_add_u32 s46, s46, {6144 if i == 6 else 3072}")
                    a(f"buffer_store_dwordx4 v[200:203], v9, {s(ws,4)}, s46 offen offset:{(i%3)*1024} sc1")
            elif SENT2:
                a(f"s_add_u32 s46, s46, {WS_P + 6144}")
                for i in range(6):
                    if i == 3: a("s_add_u32 s46, s46, 9216")
                    a(f"buffer_store_dwordx4 v[200:203], v9, {s(ws,4)}, s46 offen offset:{(i%3)*1024} sc1")
            stamp(a, 21)
            a("s_setprio 1")
        if t == PK_T[2]:
            a("s_waitcnt vmcnt(29)")
            a("v_mov_b32 v5, 0")
            a("v_mov_b32 v6, 1")
            a("s_lshl_b32 s46, s43, 7")
            a("s_add_u32 s46, s46, s58")
            a("s_lshl_b32 s46, s46, 2")
            a(f"s_add_u32 s46, s46, {WS_FPACK}")
            a("s_mov_b64 exec, 1")
            a(f"buffer_store_dword v6, v5, {s(ws,4)}, s46 offen sc1")
            a("s_mov_b64 exec, -1")
            if RELOAD:
                for i in range(12):
                    a(f"buffer_load_dwordx4 v[112:115], v9, {s(ws,4)}, s52 offen offset:{(i%4)*1024} sc1")
                    if i % 4 == 3: a("s_add_u32 s52, s52, 4096")
            stamp(a, 27)
        if t == PK_T[1]:
            a("s_mul_i32 s46, s40, 9216")
            a(f"s_add_u32 s46, s46, {WS_WO + (9*36 + 6)*1024}")
            for sx in range(9):
                for tt in range(3):
                    a(f"buffer_load_dwordx4 {v(148 + (sx*3+tt)*4, 4)}, v9, {s(ws,4)}, s46 offen offset:{tt*1024}")
                a(f"s_add_u32 s46, s46, {36*1024}")
            srd(a, XS_, 18, F * 2)
            a("s_lshl_b32 s46, s40, 8")
            a("s_mul_i32 s47, s43, 1152")
            a("s_add_u32 s46, s46, s47")
            a("v_lshlrev_b32 v5, 2, v1")
            a(f"buffer_load_dword v140, v5, {s(XS_,4)}, s46 offen")
            a(f"buffer_load_dword v141, v5, {s(XS_,4)}, s46 offen offset:1024")
            stamp(a, 22)
    a("s_branch L_a_loop_end")
    fallback(a)

def ln_tail(a, WA, nt, t0):
    ws = WS_
    n = nt * 4
    T = 44 if nt == 6 else 148
    stamp(a, 8)
    a(f"v_add_f32 v8, v{WA}, v{WA+1}")
    a(f"v_mul_f32 v9, v{WA}, v{WA}")
    a(f"v_fmac_f32 v9, v{WA+1}, v{WA+1}")
    for i in range(2, n):
        a(f"v_add_f32 v8, v8, v{WA+i}")
        a(f"v_fmac_f32 v9, v{WA+i}, v{WA+i}")
    for sw in ("v_permlane32_swap_b32", "v_permlane16_swap_b32"):
        a("v_mov_b32 v10, v8")
        a("v_mov_b32 v11, v9")
        a(f"{sw} v8, v10")
        a(f"{sw} v9, v11")
        a("v_add_f32 v8, v8, v10")
        a("v_add_f32 v9, v9, v11")
    a("v_lshlrev_b32 v10, 6, v5")
    a(f"v_add_u32 v10, {L_ST}, v10")
    a("s_lshl_b32 s46, s3, 3")
    a("v_add_u32 v11, s46, v10")
    a("s_mov_b64 exec, 0xff")
    a("ds_write_b64 v11, v[8:9]")
    a("s_mov_b64 exec, -1")
    for k in range(n // 2):
        a(f"v_cvt_pk_bf16_f32 v{T+k}, v{WA+2*k}, v{WA+2*k+1}")
    a("s_mul_i32 s46, s40, 18")
    a(f"s_add_u32 s46, s46, {2*t0}")
    a("v_add_u32 v12, s46, v6")
    a("v_lshlrev_b32 v13, 4, v5")
    a("v_lshl_add_u32 v14, v12, 7, v13")
    a(f"v_add_u32 v14, {L_HH}, v14")
    a("s_waitcnt lgkmcnt(0)")
    a("s_barrier")
    stamp(a, 9); stamp_rt(a, 47); mark(a, "D")
    U = T + 12
    for i in range(4):
        a(f"ds_read_b128 {v(U+4*i,4)}, v10 offset:{i*16}")
    a("v_lshrrev_b32 v15, 2, v12")
    a("v_lshl_add_u32 v15, v15, 12, v13")
    a("v_and_b32 v12, 3, v12")
    a("v_lshl_add_u32 v12, v12, 8, v15")
    if nt == 3:
        a("v_lshrrev_b32 v15, 1, v6")
        a("s_add_u32 s46, s46, 4")
        a("v_add_u32 v15, s46, v15")
        a("v_and_b32 v7, 1, v6")
        a("v_lshl_add_u32 v13, v7, 3, v13")
        a("v_lshl_add_u32 v7, v15, 7, v13")
        a(f"v_add_u32 v7, {L_HH}, v7")
        a("v_lshrrev_b32 v8, 2, v15")
        a("v_lshl_add_u32 v13, v8, 12, v13")
        a("v_and_b32 v15, 3, v15")
        a("v_lshl_add_u32 v13, v15, 8, v13")
    a("s_mov_b64 exec, s[54:55]")
    for i in range(nt // 2):
        a(f"ds_write_b128 v14, {v(T+4*i,4)} offset:{i*512}")
    if nt == 3: a(f"ds_write_b64 v7, {v(T+4,2)}")
    a("s_mov_b64 exec, -1")
    a("s_mul_i32 s46, s56, 73728")
    a("s_lshr_b32 s47, s43, 1")
    a("s_lshl_b32 s47, s47, 10")
    a("s_add_u32 s46, s46, s47")
    a("s_and_b32 s47, s43, 1")
    a("s_lshl_b32 s47, s47, 7")
    a("s_add_u32 s46, s46, s47")
    a(f"s_add_u32 s46, s46, {WS_Y}")
    a(f"s_waitcnt lgkmcnt({nt//2 + (nt & 1)})")
    for i in range(1, 8):
        a(f"v_add_f32 v{U}, v{U}, v{U+2*i}")
        a(f"v_add_f32 v{U+1}, v{U+1}, v{U+2*i+1}")
    a(f"v_mul_f32 v8, {fbits(1.0/D)}, v{U}")
    a(f"v_mul_f32 v9, {fbits(1.0/D)}, v{U+1}")
    a("v_fma_f32 v9, -v8, v8, v9")
    a("v_max_f32 v9, 0, v9")
    a(f"v_add_f32 v10, {fbits(1e-5)}, v9")
    a("v_rcp_f32 v11, v10")
    a("v_rsq_f32 v10, v10")
    a(f"v_fmaak_f32 v11, v9, v11, {fbits(1e-5)}")
    a("v_rsq_f32 v11, v11")
    a("v_mul_f32 v10, v10, v11")
    a("v_mul_f32 v8, v8, v10")
    a("s_mov_b64 exec, s[54:55]")
    for i in range(nt // 2):
        for k in range(8):
            a(f"v_fma_f32 v{WA+8*i+k}, v{WA+8*i+k}, v10, -v8")
        for k in range(4):
            a(f"v_cvt_pk_bf16_f32 v{U+4*i+k}, v{WA+8*i+2*k}, v{WA+8*i+2*k+1}")
        a(f"buffer_store_dwordx4 {v(U+4*i,4)}, v12, {s(ws,4)}, s46 offen sc1")
        if i + 1 < nt // 2: a("v_add_u32 v12, 4096, v12")
    if nt == 3:
        for k in range(4):
            a(f"v_fma_f32 v{WA+8+k}, v{WA+8+k}, v10, -v8")
        for k in range(2):
            a(f"v_cvt_pk_bf16_f32 v{U+4+k}, v{WA+8+2*k}, v{WA+8+2*k+1}")
        a(f"buffer_store_dwordx2 {v(U+4,2)}, v13, {s(ws,4)}, s46 offen sc1")
    a("s_mov_b64 exec, -1")

def fallback(a):
    a.label("L_a_fallback")
    a("s_mov_b32 s60, 1")
    tot = 16 * KV_BLK
    a(f"v_cndmask_b32 v{QX[0]}, 0, v{QX[0]}, s[50:51]")
    a(f"v_mov_b32 v{QX[1]}, v{QX[0]}")
    a("v_mov_b32 v5, 0xff800000")
    for ps in range(2):
        for r in (KA_, KR_, VA_):
            a(f"v_subrev_u32 v{r}, {tot}, v{r}")
        a("s_mov_b32 s48, 0")
        a.label(f"L_a_fb{ps}")
        a(f"ds_read_b128 {v(KRB[0],4)}, v{KR_}")
        for t in range(4):
            a(f"ds_read_b128 {v(KB[0],4)}, v{KA_} offset:{koff(t)}")
            if ps == 1:
                a(f"ds_read_b128 {v(VB[0],4)}, v{VA_} offset:{voff(t,0)}")
                a(f"ds_read_b128 {v(VB[0]+4,4)}, v{VA_} offset:{voff(t,1)}")
            a("s_waitcnt lgkmcnt(0)")
            mfma32(a, SB[0], KB[0], Q1, None)
            mfma32(a, SB[0], KRB[0], Q2POS[t], SB[0])
            S0 = SB[0]
            if ps == 0:
                for i in range(8):
                    a(f"v_max3_f32 v5, v{S0+2*i}, v{S0+2*i+1}, v5")
            else:
                for i in range(16): a(f"v_sub_f32 v{S0+i}, v{S0+i}, v5")
                for i in range(16): a(f"v_exp_f32 v{S0+i}, v{S0+i}")
                for i in range(8): a(f"v_cvt_pk_bf16_f32 v{P+i}, v{S0+2*i}, v{S0+2*i+1}")
                mfma32(a, O, VB[0], P, O)
                mfma32(a, O, VB[0] + 4, P + 4, O)
                a("s_nop 7")
        for r in (KA_, KR_, VA_):
            a(f"v_add_u32 v{r}, {KV_BLK}, v{r}")
        a("s_add_u32 s48, s48, 1")
        a("s_cmp_lt_u32 s48, 16")
        a(f"s_cbranch_scc1 L_a_fb{ps}")
        if ps == 0:
            a("v_mov_b32 v6, v5")
            a("v_permlane32_swap_b32 v5, v6")
            a("v_max_f32 v5, v5, v6")
            for r in range(O, O + 16): a(f"v_mov_b32 v{r}, 0")
    a("s_branch L_a_norm")

def gelu(a, regs, tmp, vc1):
    if NOGELU: return
    for k in range(0, len(regs), 8):
        g = regs[k:k+8:2]
        T = [tmp + 2*i for i in range(len(g))]
        if PKGELU:
            for x, t in zip(g, T): a(f"v_pk_mul_f32 {v(t,2)}, {v(x,2)}, {v(x,2)}")
            for x, t in zip(g, T): a(f"v_pk_fma_f32 {v(t,2)}, {v(t,2)}, {v(vc1,2)}, s[78:79]")
            for x, t in zip(g, T): a(f"v_pk_mul_f32 {v(t,2)}, {v(x,2)}, {v(t,2)}")
            for x, t in zip(g, T): a(f"v_exp_f32 v{t}, v{t}"); a(f"v_exp_f32 v{t+1}, v{t+1}")
            for x, t in zip(g, T): a(f"v_pk_add_f32 {v(t,2)}, {v(t,2)}, 1.0 op_sel_hi:[1,0]")
            for x, t in zip(g, T): a(f"v_rcp_f32 v{t}, v{t}"); a(f"v_rcp_f32 v{t+1}, v{t+1}")
            for x, t in zip(g, T): a(f"v_pk_mul_f32 {v(x,2)}, {v(x,2)}, {v(t,2)}")
        else:
            g = regs[k:k+8]; T = [tmp + i for i in range(len(g))]
            for x, t in zip(g, T): a(f"v_mul_f32 v{t}, v{x}, v{x}")
            for x, t in zip(g, T): a(f"v_fmaak_f32 v{t}, v{vc1}, v{t}, {fbits(C0)}")
            for x, t in zip(g, T): a(f"v_mul_f32 v{t}, v{x}, v{t}")
            for x, t in zip(g, T): a(f"v_exp_f32 v{t}, v{t}")
            for x, t in zip(g, T): a(f"v_add_f32 v{t}, 1.0, v{t}")
            for x, t in zip(g, T): a(f"v_rcp_f32 v{t}, v{t}")
            for x, t in zip(g, T): a(f"v_mul_f32 v{x}, v{x}, v{t}")

def acc(t, q): return ACC + (t * 4 + q) * 4

def mlp_setup(a):
    a(f"v_add_u32 v3, {L_Y}, v2")
    a(f"v_add_u32 v4, {L_Y + 36864}, v2")
    a("v_and_b32 v9, 15, v1")
    a("v_lshlrev_b32 v9, 4, v9")
    a(f"v_mov_b32 v{GT+22}, {fbits(C1)}")
    a(f"v_mov_b32 v{GT+23}, {fbits(C1)}")
    a(f"s_mov_b32 s78, {fbits(C0)}")
    a(f"s_mov_b32 s79, {fbits(C0)}")
    a("v_bfe_u32 v14, v1, 3, 1")
    a("s_mov_b32 s46, 73728")
    a("v_mul_lo_u32 v14, v14, s46")
    a("v_lshl_add_u32 v14, v5, 4, v14")
    a("v_and_b32 v15, 1, v6")
    a("s_mov_b32 s46, 147456")
    a("v_mul_lo_u32 v15, v15, s46")
    a("v_add_u32 v15, v15, v14")
    a("v_lshrrev_b32 v7, 1, v6")
    a("v_lshl_add_u32 v15, v7, 7, v15")
    a("v_lshl_add_u32 v14, v6, 7, v14")
    a("s_lshl_b32 s71, s56, 6")
    a("s_add_u32 s71, s71, s43")
    a("s_mul_i32 s71, s71, 9216")
    a(f"s_add_u32 s71, s71, {WS_P}")

def bias_init(a):
    a("s_mul_i32 s46, s68, 192")
    a(f"s_add_u32 s46, s46, {L_B1}")
    a("v_lshl_add_u32 v11, v6, 5, s46")
    a("v_lshl_add_u32 v12, v6, 4, s46")
    a(f"ds_read_b128 {v(CI,4)}, v11 offset:{L_B1D - L_B1}")
    a(f"ds_read_b128 {v(CI+4,4)}, v11 offset:{L_B1D - L_B1 + 16}")
    a(f"ds_read_b128 {v(CI+8,4)}, v12 offset:128")

def to_gemm2(a):
    for r in (3, 4):
        a(f"v_add_u32 v{r}, {L_H - L_Y}, v{r}")
    for i in range(12): a(f"v_mov_b32 v{CI+i}, 0")

def call(a, name):
    a(f"s_call_b64 s[74:75], {name}")

def mlp(a):
    ws = WS_
    a.label("L_m_roleA")
    mlp_setup(a)
    a("s_setprio 3")
    a("s_waitcnt lgkmcnt(0)")
    a("s_barrier")
    mark(a, "G1")
    stamp(a, 10); stamp_rt(a, 48)
    a("s_mov_b32 s68, s40")
    bias_init(a)
    a("s_mov_b32 s69, 3")
    call(a, "L_m_pass")
    stamp(a, 12)
    a("s_setprio 1")
    call(a, "L_m_gelu")
    stamp(a, 13)
    a("s_setprio 1")
    a("s_add_u32 s68, s40, 8")
    bias_init(a)
    a("s_mov_b32 s69, 0")
    call(a, "L_m_pass")
    a("s_setprio 0")
    stamp(a, 14)
    a("s_barrier")
    stamp(a, 11)
    call(a, "L_m_gelu")
    stamp(a, 15)
    a("s_waitcnt lgkmcnt(0)")
    a("s_barrier")
    a("s_setprio 2")
    to_gemm2(a)
    a(f"s_mov_b32 s69, {10 if GATEB else 8}")
    call(a, "L_m_pass")
    a("s_setprio 0")
    a("s_add_u32 s68, s40, 4")
    stamp(a, 16); mark(a, "M")
    reduce_setup(a)
    call(a, "L_m_cvt")
    if GATEA: a("s_barrier")
    call(a, "L_m_st")
    if not GATEA: a("s_barrier")
    stamp(a, 24)
    if not SENT1:
        a("s_waitcnt vmcnt(0)")
        flag_store(a, WS_FP1, 11)
    stamp(a, 25)
    a("s_cmp_eq_u32 s40, 3")
    a("s_cbranch_scc1 L_r_st1")
    flag_poll(a, "r_poll0", 8, 13, 53, 1, sleep=4)
    a("s_mov_b32 s48, s40")
    call(a, "L_r_item")
    a("s_cmp_eq_u32 s40, 0")
    a("s_cbranch_scc1 L_m_done")
    a.label("L_r_st1")
    a("s_add_u32 s48, s40, 2")
    if SENT1:
        a("s_mov_b32 s73, 1")
        a("s_waitcnt vmcnt(1)")
    else:
        a("s_add_u32 s53, s53, 16")
        flag_poll(a, "r_poll1", 8, 13, 53, 1, sleep=4)
    stamp(a, 17)
    call(a, "L_r_item")
    a("s_branch L_m_done")
    a.label("L_m_roleB")
    stamp(a, 26); stamp_rt(a, 40)
    a("s_barrier")
    for k in range(BPRE): a_loads(a, k)
    mlp_setup(a)
    a("s_mul_i32 s53, s56, 73728")
    a("s_lshl_b32 s47, s40, 10")
    a("s_add_u32 s53, s53, s47")
    a(f"s_add_u32 s53, s53, {WS_Y}")
    a("v_add_u32 v11, s47, v3")
    a("v_add_u32 v12, s47, v4")
    YR = ACC
    def y_loads(stg):
        for st in range(6*stg, 6*stg + 6):
            a(f"s_add_u32 s46, s53, {st*4096}")
            a(f"buffer_load_dwordx4 {v(YR+4*st,4)}, v2, {s(ws,4)}, s46 offen sc1")
    if YSENT:
        a(f"s_waitcnt vmcnt({3*BPRE})")
        stamp(a, 10)
        for stg in range(3): y_loads(stg)
        for stg in range(3):
            a(f"s_mov_b32 s49, {POLL_MAX}")
            a(f"s_waitcnt vmcnt({12 - 6*stg})")
            a.label(f"L_y_chk{stg}")
            b = YR + 24*stg
            a(f"v_max3_u32 v13, v{b}, v{b+1}, v{b+2}")
            a(f"v_max3_u32 v8, v{b+3}, v{b+4}, v{b+5}")
            for i in range(6, 24, 4):
                a(f"v_max3_u32 v13, v13, v{b+i}, v{b+i+1}")
                if i + 3 < 24: a(f"v_max3_u32 v8, v8, v{b+i+2}, v{b+i+3}")
            a("v_max_u32 v13, v13, v8")
            a("v_cmp_eq_u32 vcc, -1, v13")
            a("s_sub_u32 s49, s49, 1")
            a(f"s_cbranch_scc1 L_y_ok{stg}")
            a("s_cmp_eq_u64 vcc, 0")
            a(f"s_cbranch_scc1 L_y_ok{stg}")
            a(f"s_sleep {YSLEEP}")
            y_loads(stg)
            a("s_waitcnt vmcnt(0)")
            a(f"s_branch L_y_chk{stg}")
            a.label(f"L_y_ok{stg}")
            for st in range(6*stg, 6*stg + 6):
                a(f"ds_write_b128 v{11 + st // 9}, {v(YR+4*st,4)} offset:{(st % 9)*4096}")
            if stg == 2:
                for k in range(BPRE, RDS - 1): a_loads(a, k)
            a("s_waitcnt lgkmcnt(0)")
            if stg == 0: stamp_rt(a, 43)
            a("s_barrier")
            if stg == 0: mark(a, "G1")
    else:
        a(f"s_waitcnt vmcnt({3*BPRE})")
        flag_store(a, WS_FY, 12)
        for k in range(BPRE, RDS - 1): a_loads(a, k)
        a("s_lshl_b32 s46, s56, 8")
        a(f"s_add_u32 s52, s46, {WS_FY}")
        a("v_lshlrev_b32 v8, 2, v1")
        flag_poll(a, "m_ypoll", 8, GT, 52, 1)
        stamp_rt(a, 43)
        stamp(a, 10)
        a("s_lshl_b32 s47, s40, 10")
        for st in range(18):
            a(f"s_add_u32 m0, s47, {L_Y + st*4096}")
            a(f"s_add_u32 s46, s53, {st*4096}")
            a(f"buffer_load_dwordx4 v2, {s(ws,4)}, s46 offen sc1 lds")
        for stg in range(3):
            a(f"s_waitcnt vmcnt({12 - 6*stg}) lgkmcnt(0)")
            a("s_barrier")
            if stg == 0: mark(a, "G1")
    a("s_setprio 2")
    a("s_add_u32 s68, s40, 4")
    bias_init(a)
    a("s_mov_b32 s69, 0")
    call(a, "L_m_pass")
    stamp(a, 12)
    a("s_setprio 0")
    call(a, "L_m_gelu")
    stamp(a, 13)
    to_gemm2(a)
    a("s_setprio 3")
    a("s_waitcnt lgkmcnt(0)")
    a("s_barrier")
    stamp(a, 11)
    a("s_mov_b32 s69, 2")
    call(a, "L_m_pass")
    a("s_setprio 0")
    a("s_mov_b32 s68, s40")
    stamp(a, 15)
    call(a, "L_m_cvt")
    if GATEB: a("s_barrier")
    call(a, "L_m_st")
    reduce_setup(a)
    if not GATEB:
        a("s_waitcnt vmcnt(0)")
        flag_store(a, WS_FP1, 11)
    stamp(a, 25)
    a("s_setprio 1")
    a("s_mov_b32 s69, 10")
    call(a, "L_m_pass")
    a("s_setprio 3")
    a("s_add_u32 s68, s40, 8")
    stamp(a, 16); stamp_rt(a, 46); mark(a, "M")
    call(a, "L_m_cvt")
    call(a, "L_m_st")
    if not SENT2:
        a("s_waitcnt vmcnt(0)")
        flag_store(a, WS_FP2, 11)
    a("s_cmp_eq_u32 s40, 3")
    a("s_cbranch_scc1 L_m_done")
    a("s_add_u32 s48, s40, 6")
    if SENT2:
        a("s_mov_b32 s73, 1")
        a("s_waitcnt vmcnt(0)")
    stamp_rt(a, 42)
    if not SENT2:
        a(f"s_add_u32 s53, s53, {WS_FP2 - WS_FP1}")
        flag_poll(a, "r_poll2", 8, 13, 53, 1)
    call(a, "L_r_item")
    a.label("L_m_done")

def subroutines(a):
    ws = WS_
    a.raw(".p2align 6")
    a.label("L_m_pass")
    def b_read(ks, a=a):
        b = BR + (ks % 3) * 16
        for q in range(4):
            a(f"ds_read_b128 {v(b+4*q,4)}, v{3 + ks // 9} offset:{(ks % 9)*4096 + q*1024}")
    def step(ks, loads):
        left = 3*(RDS-2) if loads else 3 * (17 - ks)
        a(f"s_waitcnt vmcnt({left}) lgkmcnt({4 if ks < 17 else 0})")
        b = BR + (ks % 3) * 16
        A = AR + 12 * (ks % RDS)
        R = Lst(); L = Lst()
        if ks + 2 < 18: b_read(ks + 2, R)
        if loads: a_loads(L, (ks - 1) % RDS)
        fill = {}
        for i, x in enumerate(R): fill[(0, 2, 4, 6)[i]] = x
        for i, x in enumerate(L): fill[(1, 5, 8, 10)[i]] = x
        n = 0
        for t in range(3):
            for q in range(4):
                mfma16(a, acc(t, q), A + 4*t, b + 4*q, CI + 4*t if ks == 0 else acc(t, q))
                if n in fill: a(fill[n])
                n += 1
    for ks in range(2): b_read(ks)
    for ks in range(18):
        if ks in (4, 10):
            a(f"s_bitcmp1_b32 s69, {0 if ks == 4 else 1}")
            a(f"s_cbranch_scc0 L_m_nb{ks}")
            a("s_barrier")
            a.label(f"L_m_nb{ks}")
            if ks == 10:
                a("s_bitcmp1_b32 s69, 3")
                a("s_cbranch_scc1 L_m_tail")
        step(ks, True)
    a("s_nop 7")
    a("s_setpc_b64 s[74:75]")
    a.label("L_m_tail")
    if GATEB:
        a("s_cmp_lg_u32 s41, 0")
        a("s_cbranch_scc1 L_m_nf")
        flag_store(a, WS_FP1, 11)
        a.label("L_m_nf")
    for ks in range(10, 18): step(ks, False)
    a("s_nop 7")
    a("s_setpc_b64 s[74:75]")
    a.label("L_m_gelu")
    a("s_mul_i32 s46, s68, 6")
    a("v_add_u32 v11, s46, v6")
    a("v_lshrrev_b32 v12, 2, v11")
    a("v_lshl_add_u32 v12, v12, 12, v9")
    a("v_and_b32 v11, 3, v11")
    a("v_lshl_add_u32 v11, v11, 8, v12")
    a(f"v_add_u32 v11, {L_H}, v11")
    a("s_add_u32 s46, s46, 4")
    a("v_add_u32 v12, s46, v7")
    a("v_lshrrev_b32 v13, 2, v12")
    a("v_lshl_add_u32 v13, v13, 12, v9")
    a("v_and_b32 v12, 3, v12")
    a("v_lshl_add_u32 v12, v12, 8, v13")
    a("v_and_b32 v13, 1, v6")
    a("v_lshl_add_u32 v12, v13, 3, v12")
    a(f"v_add_u32 v12, {L_H}, v12")
    for qq in range(2):
        for t in range(3):
            gelu(a, list(range(acc(t, 2*qq), acc(t, 2*qq) + 8)), GT, GT + 22)
        for q in (2*qq, 2*qq + 1):
            o = GT + 8 + (q & 1) * 6
            for r in range(4):
                a(f"v_cvt_pk_bf16_f32 v{o+r}, v{acc(0,q)+r}, v{acc(1,q)+r}")
            a(f"v_cvt_pk_bf16_f32 v{o+4}, v{acc(2,q)}, v{acc(2,q)+1}")
            a(f"v_cvt_pk_bf16_f32 v{o+5}, v{acc(2,q)+2}, v{acc(2,q)+3}")
            a(f"ds_write_b128 v11, {v(o,4)} offset:{q*1024}")
            a(f"ds_write_b64 v12, {v(o+4,2)} offset:{q*1024}")
    a("s_setpc_b64 s[74:75]")
    a.label("L_m_cvt")
    for q in range(4):
        o = GT + q * 4
        for r in range(4):
            a(f"v_cvt_pk_bf16_f32 v{o+r}, v{acc(0,q)+r}, v{acc(1,q)+r}")
        o2 = GT + 16 + (q >> 1) * 4 + (q & 1) * 2
        a(f"v_cvt_pk_bf16_f32 v{o2}, v{acc(2,q)}, v{acc(2,q)+1}")
        a(f"v_cvt_pk_bf16_f32 v{o2+1}, v{acc(2,q)+2}, v{acc(2,q)+3}")
    for b in (GT + 16, GT + 20):
        a(f"v_permlane16_swap_b32 v{b}, v{b+2}")
        a(f"v_permlane16_swap_b32 v{b+1}, v{b+3}")
    a("s_setpc_b64 s[74:75]")
    a.label("L_m_st")
    a("s_mul_i32 s46, s68, 768")
    a("s_add_u32 s46, s46, s71")
    for q in range(4):
        a(f"s_add_u32 s47, s46, {q*147456}")
        a(f"buffer_store_dwordx4 {v(GT+4*q,4)}, v14, {s(ws,4)}, s47 offen sc1")
        if not q & 1:
            a(f"buffer_store_dwordx4 {v(GT+16+(q>>1)*4,4)}, v15, {s(ws,4)}, s47 offen offset:512 sc1")
    a("s_nop 1")
    a("s_setpc_b64 s[74:75]")

def reduce_setup(a):
    srd(a, XS_, 22, D * 2)
    srd(a, 24, 6, S * D * 2)
    a("s_mov_b32 s76, 0xffff0000")
    a("s_lshl_b32 s46, s56, 8")
    a(f"s_add_u32 s53, s46, {WS_FP1}")
    a("v_lshlrev_b32 v8, 2, v1")
    a("v_and_b32 v8, 0xec, v8")
    a("s_mov_b32 s73, 0")

def reduce_item(a):
    ws = WS_
    a.label("L_r_item")
    R = ACC; Z = BR
    a("v_lshrrev_b32 v11, 3, v1")
    a("v_lshlrev_b32 v11, 4, v11")
    a("s_lshl_b32 s45, s48, 7")
    a(f"buffer_load_dwordx4 {v(R+32,4)}, v11, {s(XS_,4)}, s45 offen")
    a("s_mul_i32 s72, s57, 73728")
    a("s_lshl_b32 s47, s48, 10")
    a("s_add_u32 s72, s72, s47")
    a(f"s_add_u32 s72, s72, {WS_P}")
    a(f"s_add_u32 s47, s47, {L_HH}")
    a("v_add_u32 v12, s47, v2")
    a(f"ds_read_b128 {v(R+36,4)}, v12")
    a("s_mov_b32 s62, 0xff")
    a(f"s_mov_b32 s49, {POLL_MAX}")
    a.label("L_r_again")
    for i in range(8):
        a(f"s_bitcmp1_b32 s62, {i}")
        a(f"s_cbranch_scc0 L_r_sk{i}")
        a(f"s_add_u32 s46, s72, {i*9216}")
        a(f"buffer_load_dwordx4 {v(R+4*i,4)}, v2, {s(ws,4)}, s46 offen sc1")
        a.label(f"L_r_sk{i}")
    a("s_cmp_eq_u32 s73, 0")
    a("s_cbranch_scc1 L_r_have")
    a("s_waitcnt vmcnt(0)")
    a("s_mov_b32 s62, 0")
    for i in range(8):
        a(f"v_max3_u32 v13, v{R+4*i}, v{R+4*i+1}, v{R+4*i+2}")
        a(f"v_max_u32 v13, v13, v{R+4*i+3}")
        a("v_cmp_eq_u32 vcc, -1, v13")
        a("s_nop 1")
        a("s_cmp_lg_u64 vcc, 0")
        a(f"s_cselect_b32 s46, {1 << i}, 0")
        a("s_or_b32 s62, s62, s46")
    a("s_cbranch_scc0 L_r_have")
    a(f"s_sleep {RSLEEP}")
    a("s_sub_u32 s49, s49, 1")
    a("s_cbranch_scc0 L_r_again")
    a.label("L_r_have")
    stamp_rt(a, 45)
    a("v_mad_u32_u24 v11, v5, s44, v11")
    a("s_mul_i32 s46, s57, 9216")
    a("s_add_u32 s46, s46, s45")
    a("s_waitcnt lgkmcnt(0)")
    for r in range(4):
        a(f"v_lshlrev_b32 v{Z+2*r}, 16, v{R+36+r}")
        a(f"v_and_b32 v{Z+1+2*r}, s76, v{R+36+r}")
    for k, i in enumerate([8] + list(range(8))):
        a(f"s_waitcnt vmcnt({8-k})")
        for r in range(4):
            a(f"v_lshlrev_b32 v{Z+12}, 16, v{R+4*i+r}")
            a(f"v_and_b32 v{Z+13}, s76, v{R+4*i+r}")
            a(f"v_add_f32 v{Z+2*r}, v{Z+2*r}, v{Z+12}")
            a(f"v_add_f32 v{Z+1+2*r}, v{Z+1+2*r}, v{Z+13}")
    for r in range(4):
        a(f"v_cvt_pk_bf16_f32 v{Z+8+r}, v{Z+2*r}, v{Z+1+2*r}")
    a(f"buffer_store_dwordx4 {v(Z+8,4)}, v11, s[24:27], s46 offen {OUTMOD}")
    a("s_nop 1")
    a("s_setpc_b64 s[74:75]")

def k_main(name):
    a = Asm()
    kernel_head(a, name)
    a("s_cmp_ge_u32 s2, 256")
    a("s_cbranch_scc1 L_end")
    stamp_first(a)
    mark(a, "start")
    prologue(a)
    stamp_init(a, 0)
    attention(a)
    mlp(a)
    stamp_dump(a, 2)
    diag_end(a)
    a.label("L_end")
    a("s_endpgm")
    subroutines(a)
    reduce_item(a)
    return a.finish(), descriptor(name, 256, 80)
```

```python
from common import *
from k_pack import *
import math

MAPPING = os.environ.get("MAPPING", "B")
VZERO = os.environ.get("VZERO", "1") == "1"
WMOD = os.environ.get("WMOD", "sc1")
PKGELU = os.environ.get("PKGELU", "0") == "1"
PACE = int(os.environ.get("PACE", "1"))
DBG = int(os.environ.get("DBG", "0"))
YMOD = os.environ.get("YMOD", "")
GATEA = os.environ.get("GATEA", "1") == "1"
PK_T = tuple(int(x) for x in os.environ.get("PK_T", "4,6,8").split(","))
RSLEEP = int(os.environ.get("RSLEEP", "4"))
TOUCH = os.environ.get("TOUCH", "0") == "1"
BLOAD = os.environ.get("BLOAD", "1") == "1"
EARLY0 = os.environ.get("SENT1", "0") == "1"
OUTMOD = os.environ.get("OUTMOD", "")
SENT1 = os.environ.get("SENT1", "0") == "1"
YSLEEP = int(os.environ.get("YSLEEP", "2"))
TAILK = int(os.environ.get("TAILK", "3"))
BPRE = int(os.environ.get("BPRE", "0"))
RELOAD = os.environ.get("RELOAD", "1") == "1"
GATEB = os.environ.get("GATEB", "1") == "1"
SENT2 = os.environ.get("SENT2", "0") == "1"
PKMOD = os.environ.get("PKMOD", "sc1")
YSENT = os.environ.get("YSENT", "1") == "1"
PFOTHER = os.environ.get("PFOTHER", "1") == "1"
SPARSE = os.environ.get("SPARSE", "1") == "1"
NOGELU = os.environ.get("NOGELU", "0") == "1"
LDS_MAIN = 163840
L_OS = KV_BYTES
L_CP = L_OS + 8 * 608
L_ST = L_CP + 6144
L_CNT = L_ST + 512
L_Y = 0; L_H = 73728; L_B1 = 147456; L_B1D = L_B1 + 2304; L_HH = L_B1 + 4608
assert L_HH + 9216 <= L_ST and L_CNT + 16 <= LDS_MAIN
WS_, XS_ = 32, 36
KA_, KR_, VA_ = 2, 3, 4
Q2POS = {2: 10, 0: 12, 3: 14, 1: 16}; QX = (12, 17)
Q1 = 20; SB = (24, 40); P = 56; O = 64; KB = (80, 84); KRB = (88, 92); VB = (96, 104)
TPI = 16
CI = 16; AR = 28; ACC = 136; BR = 184; GT = 232
RDS = 9
WSR = 64
C0 = -2.0 * 0.7978845608028654 * math.log2(math.e)
C1 = C0 * 0.044715
POLL_MAX = 1 << 20

def koff(t): return (t >> 2) * KV_BLK + (t & 3) * 1024
def kroff(blk): return blk * KV_BLK
def voff(t, mf): return (t >> 2) * KV_BLK + (t & 3) * 1216 + mf * 608

def tile(a, t, bg=None, nbg=0):
    Sc = SB[t & 1]; Sn = SB[(t + 1) & 1]
    def B(k):
        while bg and k > 0:
            x = bg.pop(0); a(x)
            if not x.startswith("s_"): k -= 1
    ex = lambda i: a(f"v_exp_f32 v{Sc+i}, v{Sc+i}")
    cv = lambda i: a(f"v_cvt_pk_bf16_f32 v{P+i}, v{Sc+2*i}, v{Sc+2*i+1}")
    a(f"s_waitcnt lgkmcnt({2 if (t & 3) == 2 else 1})")
    mfma32(a, Sn, KB[(t + 1) & 1], Q1, None)
    a(f"ds_read_b128 {v(VB[(t+1) & 1],4)}, v{VA_} offset:{voff(t+1,0)}")
    for i in range(0, 4): ex(i)
    mfma32(a, O, VB[(t + 1) & 1] + 4, P + 4, O)
    a(f"ds_read_b128 {v(VB[(t+1) & 1]+4,4)}, v{VA_} offset:{voff(t+1,1)}")
    cv(0); cv(1)
    for i in range(4, 8): ex(i)
    mfma32(a, Sn, KRB[((t + 1) >> 2) & 1], Q2POS[(t + 1) & 3], Sn)
    a(f"ds_read_b128 {v(KB[(t+1) & 1],4)}, v{KA_} offset:{koff(t+3)}")
    cv(2); cv(3)
    for i in range(8, 12): ex(i)
    mfma32(a, O, VB[t & 1], P, O)
    if (t & 3) == 1:
        a(f"ds_read_b128 {v(KRB[((t>>2)+1) & 1],4)}, v{KR_} offset:{kroff((t>>2)+1)}")
    cv(4); cv(5)
    for i in range(12, 16): ex(i)
    cv(6); cv(7)

def pipe_start(a):
    a(f"ds_read_b128 {v(KB[0],4)}, v{KA_} offset:{koff(0)}")
    a(f"ds_read_b128 {v(KRB[0],4)}, v{KR_} offset:{kroff(0)}")
    a(f"ds_read_b128 {v(KB[1],4)}, v{KA_} offset:{koff(1)}")
    a(f"ds_read_b128 {v(VB[0],4)}, v{VA_} offset:{voff(0,0)}")
    a(f"ds_read_b128 {v(VB[0]+4,4)}, v{VA_} offset:{voff(0,1)}")
    a("s_waitcnt lgkmcnt(3)")
    mfma32(a, SB[0], KB[0], Q1, None)
    mfma32(a, SB[0], KRB[0], Q2POS[0], SB[0])
    a(f"ds_read_b128 {v(KB[0],4)}, v{KA_} offset:{koff(2)}")
    a("s_nop 10")

def wo0_loads(a, sx, vl):
    b = 112 + (sx % 4) * 36
    for t in range(9):
        if t == 4 or t == 8: a("s_add_u32 s61, s61, 4096")
        a(f"buffer_load_dwordx4 {v(b+4*t,4)}, v{vl}, {s(WS_,4)}, s61 offen offset:{(t%4)*1024}")
    a(f"s_add_u32 s61, s61, {36*1024 - 8192}")

def lds_poll(a, tag, vaddr, vtmp, thr):
    a(f"s_mov_b32 s49, {POLL_MAX}")
    a.label(f"L_{tag}")
    a(f"ds_read_b32 v{vtmp}, v{vaddr}")
    a("s_waitcnt lgkmcnt(0)")
    a(f"v_readfirstlane_b32 s47, v{vtmp}")
    a("s_sub_u32 s49, s49, 1")
    a(f"s_cbranch_scc1 L_{tag}_ok")
    a(f"s_cmp_ge_u32 s47, {thr}")
    a(f"s_cbranch_scc1 L_{tag}_ok")
    a("s_sleep 2")
    a(f"s_branch L_{tag}")
    a.label(f"L_{tag}_ok")

def flag_poll(a, tag, vaddr, vtmp, s_off, width, sleep=1):
    a(f"s_mov_b32 s49, {POLL_MAX}")
    a.label(f"L_{tag}")
    if width == 1:
        a(f"buffer_load_dword v{vtmp}, v{vaddr}, {s(WS_,4)}, s{s_off} offen sc1")
    else:
        a(f"buffer_load_dwordx2 {v(vtmp,2)}, v{vaddr}, {s(WS_,4)}, s{s_off} offen sc1")
    a("s_waitcnt vmcnt(0)")
    if width == 2: a(f"v_min_u32 v{vtmp}, v{vtmp}, v{vtmp+1}")
    a(f"v_cmp_eq_u32 vcc, 0, v{vtmp}")
    a("s_sub_u32 s49, s49, 1")
    a(f"s_cbranch_scc1 L_{tag}_ok")
    a("s_nop 1")
    a("s_cmp_eq_u64 vcc, 0")
    a(f"s_cbranch_scc1 L_{tag}_ok")
    a(f"s_sleep {sleep}")
    a(f"s_branch L_{tag}")
    a.label(f"L_{tag}_ok")

def flag_store(a, base, vt):
    a("s_lshl_b32 s46, s57, 3")
    a("s_add_u32 s46, s46, s3")
    a("s_lshl_b32 s46, s46, 2")
    a(f"s_add_u32 s46, s46, {base}")
    a(f"v_mov_b32 v{vt}, 0")
    a(f"v_mov_b32 v{vt+1}, 1")
    a("s_mov_b64 exec, 1")
    a(f"buffer_store_dword v{vt+1}, v{vt}, {s(WS_,4)}, s46 offen sc1")
    a("s_mov_b64 exec, -1")

def a_loads(a, step_slot):
    for t in range(3):
        a(f"buffer_load_dwordx4 {v(AR + step_slot*12 + 4*t, 4)}, v2, {s(WSR,4)}, s70 offen offset:{t*1024} {WMOD}")
    a("s_add_u32 s70, s70, 3072")

def prologue(a):
    a(f"s_load_dwordx2 s[4:5], s[0:1], {KA['x']}")
    a(f"s_load_dwordx8 s[16:23], s[0:1], {KA['w1']}")
    a(f"s_load_dwordx2 s[6:7], s[0:1], {KA['out']}")
    a(f"s_load_dwordx2 s[12:13], s[0:1], {KA['ws']}")
    a("v_lshrrev_b32 v7, 6, v0")
    a("v_and_b32 v1, 63, v0")
    a("v_readfirstlane_b32 s3, v7")
    nb = {"A": 3, "B": 2, "C": 1, "D": 0}[MAPPING]
    a(f"s_and_b32 s43, s2, {(1 << nb) - 1}")
    a(f"s_lshl_b32 s43, s43, {3 - nb}")
    a(f"s_bfe_u32 s45, s2, {hex(((3 - nb) << 16) | 3)}")
    a("s_add_u32 s43, s43, s45")
    a(f"s_lshr_b32 s56, s2, {6 - nb}")
    a(f"s_lshl_b32 s56, s56, {3 - nb}")
    a(f"s_bfe_u32 s45, s2, {hex(((3 - nb) << 16) | nb)}")
    a("s_add_u32 s56, s56, s45")
    a("s_lshl_b32 s57, s56, 3")
    a("s_add_u32 s57, s57, s43")
    a("s_lshl_b32 s42, s57, 3")
    a("s_and_b32 s40, s3, 3")
    a("s_lshr_b32 s41, s3, 2")
    a("s_movk_i32 s44, 1152")
    a("v_and_b32 v5, 15, v1")
    a("v_mul_u32_u24 v5, 36, v5")
    a("v_bfe_u32 v6, v1, 4, 1")
    a("v_mad_u32_u24 v5, v6, s44, v5")
    a("v_lshrrev_b32 v7, 5, v1")
    a("v_lshl_add_u32 v6, v7, 4, v5")
    a("s_lshl_b32 s45, s40, 1")
    a("s_add_u32 s45, s45, s42")
    a("s_mul_i32 s45, s45, 1152")
    a("s_mul_i32 s46, s41, 576")
    a("s_add_u32 s45, s45, s46")
    a(f"s_add_u32 s45, s45, {WS_Q}")
    a("v_lshlrev_b32 v8, 3, v1")
    a("v_lshlrev_b32 v9, 4, v1")
    a("s_lshl_b32 s47, s3, 10")
    a("s_waitcnt lgkmcnt(0)")
    ws_shift(a)
    srd(a, WS_, 12, WS_END)

def attention(a):
    ws = WS_
    a(f"buffer_load_dwordx4 {v(Q1,4)}, v6, {s(ws,4)}, s45 offen")
    a(f"buffer_load_dword v{QX[0]}, v5, {s(ws,4)}, s45 offen offset:32")
    a(f"s_mov_b32 s46, {WS_KMAX}")
    a(f"buffer_load_dwordx4 v[24:27], v9, {s(ws,4)}, s46 offen")
    for i in range(4):
        a(f"s_add_u32 m0, s47, {i*8192}")
        a(f"s_add_u32 s46, s47, {WS_KV + i*8192}")
        a(f"buffer_load_dwordx4 v9, {s(ws,4)}, s46 offen lds")
    srd(a, XS_, 4, S * D * 2)
    a("s_cmp_lg_u32 s41, 0")
    a("s_cbranch_scc0 L_a_nodma")
    a("s_lshl_b32 s47, s40, 10")
    for i in range(29):
        if i == 6:
            a("s_waitcnt vmcnt(3)")
            a("s_barrier")
        a(f"s_add_u32 m0, s47, {32768 + i*4096}")
        a(f"s_add_u32 s46, s47, {WS_KV + 32768 + i*4096}")
        a(f"buffer_load_dwordx4 v9, {s(ws,4)}, s46 offen lds")
    a("s_setprio 3")
    a("s_branch L_a_dmadone")
    a.label("L_a_nodma")
    a("s_setprio 2")
    a.label("L_a_dmadone")
    a(f"v_mov_b32 v{KA_}, v9")
    a(f"v_add_u32 v{KR_}, 4096, v9")
    a(f"v_mov_b32 v8, {4608 + 288}")
    a("v_cmp_gt_u32 s[50:51], 32, v1")
    a(f"v_cndmask_b32 v{KR_}, v8, v{KR_}, s[50:51]")
    a("v_and_b32 v5, 31, v1")
    sigma_v(a, 6, 5, 8, 9)
    if VZERO:
        a("v_mov_b32 v8, 0x8000")
    else:
        a("v_add_u32 v8, -20, v5")
        a("v_cmp_gt_u32 vcc, 8, v8")
        a("v_cndmask_b32 v8, 4, 0, vcc")
    a("v_cmp_lt_u32 vcc, 18, v5")
    a("v_cndmask_b32 v6, v6, v8, vcc")
    a("v_lshlrev_b32 v6, 4, v6")
    a("s_movk_i32 s46, 304")
    a(f"v_mad_u32_u24 v{VA_}, v7, s46, v6")
    a(f"v_add_u32 v{VA_}, 4608, v{VA_}")
    for r in (10, 11, 13, 14, 15, 16, 18, 19): a(f"v_mov_b32 v{r}, 0")
    for r in range(O, O + 16): a(f"v_mov_b32 v{r}, 0")
    for r in range(P + 4, P + 8): a(f"v_mov_b32 v{r}, 0")
    for r in range(VB[1] + 4, VB[1] + 8): a(f"v_mov_b32 v{r}, 0")
    stamp(a, 1)
    a("s_cmp_lg_u32 s41, 0")
    a("s_cbranch_scc1 L_a_qready")
    a(f"v_mov_b32 v8, {L_CNT}")
    a("ds_write_b32 v8, v10")
    a("s_waitcnt vmcnt(4)")
    a.label("L_a_qready")
    a(f"v_dot2_f32_bf16 v5, v{Q1}, v{Q1}, 0")
    for i in range(1, 4):
        a(f"v_dot2_f32_bf16 v5, v{Q1+i}, v{Q1+i}, v5")
    a("v_max_f32 v24, v24, v25")
    a("v_max3_f32 v24, v24, v26, v27")
    for rr in (8, 4, 2, 1):
        a(f"v_max_f32_dpp v24, v24, v24 row_ror:{rr} row_mask:0xf bank_mask:0xf")
    a("v_mov_b32 v25, v24")
    a("v_mov_b32 v6, v5")
    a("v_permlane16_swap_b32 v24, v25")
    a("v_permlane32_swap_b32 v5, v6")
    a("v_max_f32 v24, v24, v25")
    a("v_add_f32 v5, v5, v6")
    a("v_mov_b32 v25, v24")
    a(f"v_dot2_f32_bf16 v5, v{QX[0]}, v{QX[0]}, v5")
    a("v_permlane32_swap_b32 v24, v25")
    a("v_add_f32 v24, v24, v25")
    a("v_mul_f32 v5, v5, v24")
    a("v_sqrt_f32 v5, v5")
    a(f"v_mul_f32 v5, {fbits(-1.02)}, v5")
    a("v_cvt_pk_bf16_f32 v5, v5, 0")
    a(f"v_cndmask_b32 v{QX[0]}, v5, v{QX[0]}, s[50:51]")
    a(f"v_mov_b32 v{QX[1]}, v{QX[0]}")
    a("s_mov_b32 s60, 0")
    a("s_mov_b32 s48, 0")
    a("v_lshlrev_b32 v9, 4, v1")
    a("s_cmp_lg_u32 s41, 0")
    a("s_cbranch_scc1 L_a_young_pre")
    a(f"s_mov_b32 s59, {16 // TPI}")
    a("s_waitcnt vmcnt(0) lgkmcnt(0)")
    a("s_barrier")
    a.label("L_a_start")
    stamp(a, 3)
    pipe_start(a)
    a.raw(".p2align 6")
    a.label("L_a_loop")
    for t in range(TPI): tile(a, t)
    a.label("L_a_loop_end")
    step = (TPI // 4) * KV_BLK
    a(f"v_add_u32 v{KA_}, {step}, v{KA_}")
    a(f"v_add_u32 v{KR_}, {step}, v{KR_}")
    a(f"v_add_u32 v{VA_}, {step}, v{VA_}")
    a("s_add_u32 s48, s48, 1")
    a("s_cmp_eq_u32 s48, s59")
    a("s_cbranch_scc1 L_a_inter")
    a(f"s_cmp_lt_u32 s48, {64 // TPI}")
    a("s_cbranch_scc1 L_a_loop")
    mfma32(a, O, VB[1] + 4, P + 4, O)
    a.label("L_a_norm")
    stamp(a, 4); mark(a, "L")
    a("s_waitcnt lgkmcnt(0)")
    a("s_nop 12")
    a(f"v_mov_b32 v5, v{O+10}")
    a(f"v_mov_b32 v6, v{O+10}")
    a("v_permlane32_swap_b32 v5, v6")
    a(f"v_mov_b32 v7, {fbits(2.0**-40)}")
    a("v_cmp_nge_f32 vcc, v5, v7")
    a("s_nop 3")
    a("s_cmp_lg_u64 vcc, 0")
    a("s_cselect_b32 s49, 1, 0")
    a("s_andn2_b32 s49, s49, s60")
    a("s_cbranch_scc1 L_a_fallback")
    a("v_rcp_f32 v5, v5")
    a("v_bfe_u32 v6, v1, 4, 1")
    a("s_lshl_b32 s46, s40, 1")
    a("v_add_u32 v6, s46, v6")
    a("v_mul_u32_u24 v6, 608, v6")
    a("v_and_b32 v7, 15, v1")
    a("v_lshl_add_u32 v8, v7, 2, v6")
    a("v_lshl_add_u32 v6, v7, 5, v6")
    a("v_lshrrev_b32 v7, 5, v1")
    a("v_lshl_add_u32 v6, v7, 4, v6")
    a(f"v_add_u32 v6, {L_OS}, v6")
    a(f"v_add_u32 v8, {L_OS + 512}, v8")
    for i in range(10):
        a(f"v_mul_f32 v{O+i}, v{O+i}, v5")
    for i in range(5):
        a(f"v_cvt_pk_bf16_f32 v{P+i}, v{O+2*i}, v{O+2*i+1}")
    a("s_cmp_eq_u32 s41, 0")
    a("s_cbranch_scc1 L_a_poll2_ok")
    a(f"v_mov_b32 v9, {L_CNT}")
    lds_poll(a, "a_poll2", 9, 7, 8)
    a(f"ds_write_b128 v6, {v(P,4)}")
    a("s_mov_b64 exec, 0xffffffff")
    a(f"ds_write_b32 v8, v{P+4}")
    a("s_mov_b64 exec, -1")
    a("v_and_b32 v5, 7, v1")
    a("v_mul_u32_u24 v4, 608, v5")
    a("v_lshrrev_b32 v6, 4, v1")
    a("v_lshl_add_u32 v4, v6, 4, v4")
    a(f"v_add_u32 v4, {L_OS}, v4")
    a("v_lshl_add_u32 v3, v6, 3, v5")
    a("v_lshlrev_b32 v3, 4, v3")
    a("s_mul_i32 s46, s40, 1536")
    a(f"s_add_u32 s46, s46, {L_CP}")
    a("v_add_u32 v3, s46, v3")
    a("v_lshlrev_b32 v2, 4, v1")
    a("s_mul_i32 s70, s3, 165888")
    a(f"s_mul_i32 s47, s43, {SLICE}")
    a("s_add_u32 s70, s70, s47")
    a(f"s_add_u32 s70, s70, {WS_W}")
    a(f"s_mov_b32 s{WSR}, s12")
    a(f"s_and_b32 s{WSR+1}, s13, 0xffff")
    a(f"s_add_u32 s{WSR+2}, s70, 165888")
    a(f"s_mov_b32 s{WSR+3}, 0x00020000")
    a("s_mov_b32 s54, 0x00ff00ff")
    a("s_mov_b32 s55, 0x00ff00ff")
    a("s_cmp_lg_u32 s41, 0")
    a("s_cbranch_scc1 L_a_young_tail")

    WA = 16
    WB = 112
    a(f"v_mov_b32 v8, {L_CNT}")
    a("v_mov_b32 v9, 1")
    a("s_waitcnt lgkmcnt(0)")
    a("s_mov_b64 exec, 1")
    a("ds_add_u32 v8, v9")
    a("s_mov_b64 exec, -1")
    a("s_mul_i32 s61, s40, 9216")
    a(f"s_add_u32 s61, s61, {WS_WO}")
    for sx in range(4): wo0_loads(a, sx, 2)
    a("v_mul_u32_u24 v10, 1152, v5")
    a("v_lshl_add_u32 v11, v6, 3, v10")
    a("v_lshl_add_u32 v10, v6, 4, v10")
    a("s_mul_i32 s46, s42, 1152")
    a("s_mul_i32 s47, s40, 288")
    a("s_add_u32 s52, s46, s47")
    for i in range(4):
        a(f"buffer_load_dwordx4 {v(92+4*i,4)}, v10, {s(XS_,4)}, s52 offen offset:{i*64}")
    a(f"buffer_load_dwordx2 v[108:109], v11, {s(XS_,4)}, s52 offen offset:256")
    lds_poll(a, "a_poll", 8, 9, 4)
    stamp(a, 5)
    for sx in range(9):
        a(f"ds_read_b128 {v(56+4*sx,4)}, v4 offset:{sx*64}")
    a("v_mov_b32 v9, 1")
    a("s_waitcnt lgkmcnt(0)")
    a("s_mov_b64 exec, 1")
    a("ds_add_u32 v8, v9")
    a("s_mov_b64 exec, -1")
    a("s_setprio 0")
    for sx in range(9):
        a(f"s_waitcnt vmcnt({min(3, 8 - sx)*9 + (5 if sx < 4 else 0)})")
        b = WB + (sx % 4) * 36
        for t in range(9):
            mfma16(a, WA + 4*t, b + 4*t, 56 + 4*sx, None if sx == 0 else WA + 4*t)
        if sx + 4 < 9: wo0_loads(a, sx + 4, 2)
    a("s_setprio 2")
    a("s_mov_b32 s46, 0x00003f80")
    a("s_mov_b32 s47, 0x3f800000")
    for k in list(range(12, 18)) + list(range(12)):
        a(f"v_dot2_f32_bf16 v{WA+2*k}, v{92+k}, s46, v{WA+2*k}")
        a(f"v_dot2_f32_bf16 v{WA+2*k+1}, v{92+k}, s47, v{WA+2*k+1}")
    stamp(a, 23)
    a("s_mov_b64 exec, s[54:55]")
    for t in range(3):
        a(f"ds_write_b128 v3, {v(WA+24+4*t,4)} offset:{t*512}")
    a("s_mov_b64 exec, -1")
    a("s_waitcnt lgkmcnt(0)")
    a("s_mul_i32 s46, s40, 9216")
    a(f"s_add_u32 s46, s46, {WS_WO + 9*36*1024}")
    for sx in range(9):
        for t in range(6):
            if t == 4: a("s_add_u32 s46, s46, 4096")
            a(f"buffer_load_dwordx4 {v(40+(sx*6+t)*4,4)}, v2, {s(ws,4)}, s46 offen offset:{(t%4)*1024}")
        a(f"s_add_u32 s46, s46, {36*1024 - 4096}")
    a("v_lshlrev_b32 v8, 3, v1")
    a("s_lshl_b32 s46, s43, 9")
    a(f"s_add_u32 s46, s46, {WS_FPACK}")
    flag_poll(a, "a_pkpoll", 8, 10, 46, 2, sleep=8)
    nb = {"A": 3, "B": 2, "C": 1, "D": 0}[MAPPING]
    if PFOTHER:
        for dg in range(1, 1 << (3 - nb)):
            a(f"s_xor_b32 s46, s56, {dg}")
            a("s_lshl_b32 s46, s46, 2")
            a("s_add_u32 s46, s46, s40")
            a("s_min_u32 s46, s46, 119")
            sdiv(a, 47, 45, 46, 5, 49)
            a("s_lshl_b32 s45, s45, 2")
            a("s_min_u32 s45, s45, 14")
            a("s_mul_i32 s46, s47, 54")
            a("s_mul_i32 s45, s45, 3")
            a("s_add_u32 s46, s46, s45")
            a("s_lshl_b32 s46, s46, 10")
            a(f"s_mul_i32 s47, s43, {SLICE}")
            a("s_add_u32 s46, s46, s47")
            a(f"s_add_u32 s46, s46, {WS_W}")
            a("v_lshlrev_b32 v8, 6, v1")
            for i in range(3):
                a(f"buffer_load_dword v7, v8, {s(ws,4)}, s46 offen sc1")
                a("s_add_u32 s46, s46, 4096")
    stamp(a, 6)
    a("s_barrier")
    stamp(a, 7)
    a(f"ds_read_b128 v[8:11], v4 offset:0")
    for sx in range(9):
        if sx + 1 < 9:
            a(f"ds_read_b128 {v(8+((sx+1)&1)*4,4)}, v4 offset:{(sx+1)*64}")
        a(f"s_waitcnt lgkmcnt({1 if sx+1 < 9 else 0})")
        for t in range(6):
            mfma16(a, WA + 4*t, 40 + (sx*6+t)*4, 8 + (sx&1)*4, WA + 4*t)
    ln_tail(a, WA, 6, 0)
    a("s_branch L_m_roleB")

    a.label("L_a_young_tail")
    a("s_waitcnt vmcnt(0) lgkmcnt(0)")
    stamp(a, 6)
    a("s_barrier")
    stamp(a, 7)
    for t in range(3):
        a(f"ds_read_b128 {v(WA+4*t,4)}, v3 offset:{t*512}")
    for sx in range(9):
        a(f"ds_read_b128 {v(104+4*sx,4)}, v4 offset:{sx*64}")
    L = Lst()
    for k in range(TAILK): a_loads(L, k)
    for sx in range(9):
        a(f"s_waitcnt lgkmcnt({8-sx})")
        for t in range(3):
            mfma16(a, WA + 4*t, 148 + (sx*3+t)*4, 104 + 4*sx, WA + 4*t)
            if t == 2 and L:
                a(L.pop(0))
                if L and L[0].startswith("s_"): a(L.pop(0))
    ln_tail(a, WA, 3, 6)
    stamp(a, 26); stamp_rt(a, 40)
    a("s_barrier")
    if YSENT:
        for k in range(TAILK, RDS - 1): a_loads(a, k)
    else:
        for k in range(TAILK, TAILK + 3): a_loads(a, k)
        a("s_waitcnt vmcnt(9)")
        flag_store(a, WS_FY, 8)
        for k in range(TAILK + 3, RDS - 1): a_loads(a, k)
    a("s_lshl_b32 s46, s40, 6")
    a("v_add_u32 v8, s46, v1")
    a("v_lshlrev_b32 v11, 3, v8")
    a(f"v_add_u32 v11, {L_B1}, v11")
    a(f"v_lshlrev_b32 v{GT+2}, 16, v140")
    a(f"v_and_b32 v{GT+3}, 0xffff0000, v140")
    a(f"v_lshlrev_b32 v{GT+4}, 16, v141")
    a(f"v_and_b32 v{GT+5}, 0xffff0000, v141")
    a(f"ds_write_b64 v11, {v(GT+2,2)}")
    a("v_lshrrev_b32 v12, 2, v8")
    a("v_lshlrev_b32 v12, 5, v12")
    a("v_and_b32 v13, 3, v8")
    a("v_lshl_add_u32 v12, v13, 2, v12")
    a(f"v_add_u32 v12, {L_B1D}, v12")
    a(f"ds_write2_b32 v12, v{GT+2}, v{GT+3} offset0:0 offset1:4")
    a("v_add_u32 v12, 2048, v12")
    a("s_cmp_lg_u32 s40, 0")
    a("s_cbranch_scc1 L_m_roleA")
    a("s_mov_b64 exec, 0xffffffff")
    a(f"ds_write_b64 v11, {v(GT+4,2)} offset:2048")
    a(f"ds_write2_b32 v12, v{GT+4}, v{GT+5} offset0:0 offset1:4")
    a("s_mov_b64 exec, -1")
    a("s_branch L_m_roleA")

    a.label("L_a_inter")
    a("s_barrier")
    a("s_branch L_a_loop")

    a.label("L_a_young_pre")
    a("s_lshl_b32 s58, s56, 2")
    a("s_add_u32 s58, s58, s40")
    a("s_min_u32 s59, s58, 119")
    sja, selA, selB = w_pack_setup(a, 59, 43, 16, 20, 24, 72, 61, 62, 63, 1, 5, 6, 7)
    a("s_mov_b32 s59, 99")
    a("s_mov_b32 s52, s63")
    a("s_waitcnt vmcnt(8)")
    w_pack_loads(a, 2, 24, 61, 62, sja, 5, 6, 112)
    a("s_waitcnt vmcnt(32)")
    stamp(a, 2)
    a("s_barrier")
    a("s_waitcnt vmcnt(26)")
    w_pack_loads(a, 2, 24, 61, 62, sja, 5, 6, 144)
    if TOUCH:
        a("s_mov_b32 s46, 0x24000")
        a("s_lshl_b32 s47, s40, 6")
        a("v_add_u32 v7, s47, v1")
        a("v_mul_lo_u32 v7, v7, s46")
        a(f"buffer_load_dword v252, v7, {s(ws,4)}, 0 offen")
        srd(a, 28, 6, S * D * 2)
        a("v_lshlrev_b32 v7, 16, v1")
        a("buffer_load_dword v253, v7, s[28:31], 0 offen")
        a("v_mov_b32 v7, 0")
        a("global_load_dword v254, v7, s[18:19]")
        a("global_load_dword v255, v7, s[22:23]")
    stamp(a, 20)
    pipe_start(a)
    for t in range(TPI):
        tile(a, t)
        if t == PK_T[0]:
            for st in range(4):
                a(f"s_waitcnt vmcnt({(3-st)*16 + st*3 + (4 if TOUCH else 0)})")
                w_pack_stores(a, 112 + st*16, 176 + (st & 1)*12, selA, selB, ws, 9, 63, PKMOD)
            for i in range(4): a(f"v_mov_b32 v{200+i}, -1")
            a("s_mul_i32 s46, s57, 73728")
            a("s_mul_i32 s47, s40, 18432")
            a("s_add_u32 s46, s46, s47")
            if SENT1:
                a(f"s_add_u32 s46, s46, {WS_P + 3072}")
                for i in range(12):
                    if i and i % 3 == 0: a(f"s_add_u32 s46, s46, {6144 if i == 6 else 3072}")
                    a(f"buffer_store_dwordx4 v[200:203], v9, {s(ws,4)}, s46 offen offset:{(i%3)*1024} sc1")
            elif SENT2:
                a(f"s_add_u32 s46, s46, {WS_P + 6144}")
                for i in range(6):
                    if i == 3: a("s_add_u32 s46, s46, 9216")
                    a(f"buffer_store_dwordx4 v[200:203], v9, {s(ws,4)}, s46 offen offset:{(i%3)*1024} sc1")
            stamp(a, 21)
            a("s_setprio 1")
        if t == PK_T[2]:
            a("s_waitcnt vmcnt(29)")
            a("v_mov_b32 v5, 0")
            a("v_mov_b32 v6, 1")
            a("s_lshl_b32 s46, s43, 7")
            a("s_add_u32 s46, s46, s58")
            a("s_lshl_b32 s46, s46, 2")
            a(f"s_add_u32 s46, s46, {WS_FPACK}")
            a("s_mov_b64 exec, 1")
            a(f"buffer_store_dword v6, v5, {s(ws,4)}, s46 offen sc1")
            a("s_mov_b64 exec, -1")
            if RELOAD:
                if SPARSE:
                    a("v_lshlrev_b32 v5, 6, v1")
                    for i in range(3):
                        a(f"buffer_load_dword v112, v5, {s(ws,4)}, s52 offen sc1")
                        a("s_add_u32 s52, s52, 4096")
                else:
                  for i in range(12):
                    a(f"buffer_load_dwordx4 v[112:115], v9, {s(ws,4)}, s52 offen offset:{(i%4)*1024} sc1")
                    if i % 4 == 3: a("s_add_u32 s52, s52, 4096")
            stamp(a, 27)
        if t == PK_T[1]:
            a("s_mul_i32 s46, s40, 9216")
            a(f"s_add_u32 s46, s46, {WS_WO + (9*36 + 6)*1024}")
            for sx in range(9):
                for tt in range(3):
                    a(f"buffer_load_dwordx4 {v(148 + (sx*3+tt)*4, 4)}, v9, {s(ws,4)}, s46 offen offset:{tt*1024}")
                a(f"s_add_u32 s46, s46, {36*1024}")
            srd(a, XS_, 18, F * 2)
            a("s_lshl_b32 s46, s40, 8")
            a("s_mul_i32 s47, s43, 1152")
            a("s_add_u32 s46, s46, s47")
            a("v_lshlrev_b32 v5, 2, v1")
            a(f"buffer_load_dword v140, v5, {s(XS_,4)}, s46 offen")
            a(f"buffer_load_dword v141, v5, {s(XS_,4)}, s46 offen offset:1024")
            stamp(a, 22)
    a("s_branch L_a_loop_end")
    fallback(a)

def ln_tail(a, WA, nt, t0):
    ws = WS_
    n = nt * 4
    T = 44 if nt == 6 else 148
    stamp(a, 8)
    a(f"v_add_f32 v8, v{WA}, v{WA+1}")
    a(f"v_mul_f32 v9, v{WA}, v{WA}")
    a(f"v_fmac_f32 v9, v{WA+1}, v{WA+1}")
    for i in range(2, n):
        a(f"v_add_f32 v8, v8, v{WA+i}")
        a(f"v_fmac_f32 v9, v{WA+i}, v{WA+i}")
    for sw in ("v_permlane32_swap_b32", "v_permlane16_swap_b32"):
        a("v_mov_b32 v10, v8")
        a("v_mov_b32 v11, v9")
        a(f"{sw} v8, v10")
        a(f"{sw} v9, v11")
        a("v_add_f32 v8, v8, v10")
        a("v_add_f32 v9, v9, v11")
    a("v_lshlrev_b32 v10, 6, v5")
    a(f"v_add_u32 v10, {L_ST}, v10")
    a("s_lshl_b32 s46, s3, 3")
    a("v_add_u32 v11, s46, v10")
    a("s_mov_b64 exec, 0xff")
    a("ds_write_b64 v11, v[8:9]")
    a("s_mov_b64 exec, -1")
    for k in range(n // 2):
        a(f"v_cvt_pk_bf16_f32 v{T+k}, v{WA+2*k}, v{WA+2*k+1}")
    a("s_mul_i32 s46, s40, 18")
    a(f"s_add_u32 s46, s46, {2*t0}")
    a("v_add_u32 v12, s46, v6")
    a("v_lshlrev_b32 v13, 4, v5")
    a("v_lshl_add_u32 v14, v12, 7, v13")
    a(f"v_add_u32 v14, {L_HH}, v14")
    a("s_waitcnt lgkmcnt(0)")
    a("s_barrier")
    stamp(a, 9); stamp_rt(a, 47); mark(a, "D")
    U = T + 12
    for i in range(4):
        a(f"ds_read_b128 {v(U+4*i,4)}, v10 offset:{i*16}")
    a("v_lshrrev_b32 v15, 2, v12")
    a("v_lshl_add_u32 v15, v15, 12, v13")
    a("v_and_b32 v12, 3, v12")
    a("v_lshl_add_u32 v12, v12, 8, v15")
    if nt == 3:
        a("v_lshrrev_b32 v15, 1, v6")
        a("s_add_u32 s46, s46, 4")
        a("v_add_u32 v15, s46, v15")
        a("v_and_b32 v7, 1, v6")
        a("v_lshl_add_u32 v13, v7, 3, v13")
        a("v_lshl_add_u32 v7, v15, 7, v13")
        a(f"v_add_u32 v7, {L_HH}, v7")
        a("v_lshrrev_b32 v8, 2, v15")
        a("v_lshl_add_u32 v13, v8, 12, v13")
        a("v_and_b32 v15, 3, v15")
        a("v_lshl_add_u32 v13, v15, 8, v13")
    a("s_mov_b64 exec, s[54:55]")
    for i in range(nt // 2):
        a(f"ds_write_b128 v14, {v(T+4*i,4)} offset:{i*512}")
    if nt == 3: a(f"ds_write_b64 v7, {v(T+4,2)}")
    a("s_mov_b64 exec, -1")
    a("s_mul_i32 s46, s56, 73728")
    a("s_lshr_b32 s47, s43, 1")
    a("s_lshl_b32 s47, s47, 10")
    a("s_add_u32 s46, s46, s47")
    a("s_and_b32 s47, s43, 1")
    a("s_lshl_b32 s47, s47, 7")
    a("s_add_u32 s46, s46, s47")
    a(f"s_add_u32 s46, s46, {WS_Y}")
    a(f"s_waitcnt lgkmcnt({nt//2 + (nt & 1)})")
    for i in range(1, 8):
        a(f"v_add_f32 v{U}, v{U}, v{U+2*i}")
        a(f"v_add_f32 v{U+1}, v{U+1}, v{U+2*i+1}")
    a(f"v_mul_f32 v8, {fbits(1.0/D)}, v{U}")
    a(f"v_mul_f32 v9, {fbits(1.0/D)}, v{U+1}")
    a("v_fma_f32 v9, -v8, v8, v9")
    a("v_max_f32 v9, 0, v9")
    a(f"v_add_f32 v10, {fbits(1e-5)}, v9")
    a("v_rcp_f32 v11, v10")
    a("v_rsq_f32 v10, v10")
    a(f"v_fmaak_f32 v11, v9, v11, {fbits(1e-5)}")
    a("v_rsq_f32 v11, v11")
    a("v_mul_f32 v10, v10, v11")
    a("v_mul_f32 v8, v8, v10")
    a("s_mov_b64 exec, s[54:55]")
    for i in range(nt // 2):
        for k in range(8):
            a(f"v_fma_f32 v{WA+8*i+k}, v{WA+8*i+k}, v10, -v8")
        for k in range(4):
            a(f"v_cvt_pk_bf16_f32 v{U+4*i+k}, v{WA+8*i+2*k}, v{WA+8*i+2*k+1}")
        a(f"buffer_store_dwordx4 {v(U+4*i,4)}, v12, {s(ws,4)}, s46 offen sc1")
        if i + 1 < nt // 2: a("v_add_u32 v12, 4096, v12")
    if nt == 3:
        for k in range(4):
            a(f"v_fma_f32 v{WA+8+k}, v{WA+8+k}, v10, -v8")
        for k in range(2):
            a(f"v_cvt_pk_bf16_f32 v{U+4+k}, v{WA+8+2*k}, v{WA+8+2*k+1}")
        a(f"buffer_store_dwordx2 {v(U+4,2)}, v13, {s(ws,4)}, s46 offen sc1")
    a("s_mov_b64 exec, -1")

def fallback(a):
    a.label("L_a_fallback")
    a("s_mov_b32 s60, 1")
    tot = 16 * KV_BLK
    a(f"v_cndmask_b32 v{QX[0]}, 0, v{QX[0]}, s[50:51]")
    a(f"v_mov_b32 v{QX[1]}, v{QX[0]}")
    a("v_mov_b32 v5, 0xff800000")
    for ps in range(2):
        for r in (KA_, KR_, VA_):
            a(f"v_subrev_u32 v{r}, {tot}, v{r}")
        a("s_mov_b32 s48, 0")
        a.label(f"L_a_fb{ps}")
        a(f"ds_read_b128 {v(KRB[0],4)}, v{KR_}")
        for t in range(4):
            a(f"ds_read_b128 {v(KB[0],4)}, v{KA_} offset:{koff(t)}")
            if ps == 1:
                a(f"ds_read_b128 {v(VB[0],4)}, v{VA_} offset:{voff(t,0)}")
                a(f"ds_read_b128 {v(VB[0]+4,4)}, v{VA_} offset:{voff(t,1)}")
            a("s_waitcnt lgkmcnt(0)")
            mfma32(a, SB[0], KB[0], Q1, None)
            mfma32(a, SB[0], KRB[0], Q2POS[t], SB[0])
            S0 = SB[0]
            if ps == 0:
                for i in range(8):
                    a(f"v_max3_f32 v5, v{S0+2*i}, v{S0+2*i+1}, v5")
            else:
                for i in range(16): a(f"v_sub_f32 v{S0+i}, v{S0+i}, v5")
                for i in range(16): a(f"v_exp_f32 v{S0+i}, v{S0+i}")
                for i in range(8): a(f"v_cvt_pk_bf16_f32 v{P+i}, v{S0+2*i}, v{S0+2*i+1}")
                mfma32(a, O, VB[0], P, O)
                mfma32(a, O, VB[0] + 4, P + 4, O)
                a("s_nop 7")
        for r in (KA_, KR_, VA_):
            a(f"v_add_u32 v{r}, {KV_BLK}, v{r}")
        a("s_add_u32 s48, s48, 1")
        a("s_cmp_lt_u32 s48, 16")
        a(f"s_cbranch_scc1 L_a_fb{ps}")
        if ps == 0:
            a("v_mov_b32 v6, v5")
            a("v_permlane32_swap_b32 v5, v6")
            a("v_max_f32 v5, v5, v6")
            for r in range(O, O + 16): a(f"v_mov_b32 v{r}, 0")
    a("s_branch L_a_norm")

def gelu(a, regs, tmp, vc1):
    if NOGELU: return
    for k in range(0, len(regs), 8):
        g = regs[k:k+8:2]
        T = [tmp + 2*i for i in range(len(g))]
        if PKGELU:
            for x, t in zip(g, T): a(f"v_pk_mul_f32 {v(t,2)}, {v(x,2)}, {v(x,2)}")
            for x, t in zip(g, T): a(f"v_pk_fma_f32 {v(t,2)}, {v(t,2)}, {v(vc1,2)}, s[78:79]")
            for x, t in zip(g, T): a(f"v_pk_mul_f32 {v(t,2)}, {v(x,2)}, {v(t,2)}")
            for x, t in zip(g, T): a(f"v_exp_f32 v{t}, v{t}"); a(f"v_exp_f32 v{t+1}, v{t+1}")
            for x, t in zip(g, T): a(f"v_pk_add_f32 {v(t,2)}, {v(t,2)}, 1.0 op_sel_hi:[1,0]")
            for x, t in zip(g, T): a(f"v_rcp_f32 v{t}, v{t}"); a(f"v_rcp_f32 v{t+1}, v{t+1}")
            for x, t in zip(g, T): a(f"v_pk_mul_f32 {v(x,2)}, {v(x,2)}, {v(t,2)}")
        else:
            g = regs[k:k+8]; T = [tmp + i for i in range(len(g))]
            for x, t in zip(g, T): a(f"v_mul_f32 v{t}, v{x}, v{x}")
            for x, t in zip(g, T): a(f"v_fmaak_f32 v{t}, v{vc1}, v{t}, {fbits(C0)}")
            for x, t in zip(g, T): a(f"v_mul_f32 v{t}, v{x}, v{t}")
            for x, t in zip(g, T): a(f"v_exp_f32 v{t}, v{t}")
            for x, t in zip(g, T): a(f"v_add_f32 v{t}, 1.0, v{t}")
            for x, t in zip(g, T): a(f"v_rcp_f32 v{t}, v{t}")
            for x, t in zip(g, T): a(f"v_mul_f32 v{x}, v{x}, v{t}")

def acc(t, q): return ACC + (t * 4 + q) * 4

def mlp_setup(a):
    a(f"v_add_u32 v3, {L_Y}, v2")
    a(f"v_add_u32 v4, {L_Y + 36864}, v2")
    a("v_and_b32 v9, 15, v1")
    a("v_lshlrev_b32 v9, 4, v9")
    a(f"v_mov_b32 v{GT+22}, {fbits(C1)}")
    a(f"v_mov_b32 v{GT+23}, {fbits(C1)}")
    a(f"s_mov_b32 s78, {fbits(C0)}")
    a(f"s_mov_b32 s79, {fbits(C0)}")
    a("v_bfe_u32 v14, v1, 3, 1")
    a("s_mov_b32 s46, 73728")
    a("v_mul_lo_u32 v14, v14, s46")
    a("v_lshl_add_u32 v14, v5, 4, v14")
    a("v_and_b32 v15, 1, v6")
    a("s_mov_b32 s46, 147456")
    a("v_mul_lo_u32 v15, v15, s46")
    a("v_add_u32 v15, v15, v14")
    a("v_lshrrev_b32 v10, 1, v6")
    a("v_lshl_add_u32 v15, v10, 7, v15")
    a("v_lshl_add_u32 v14, v6, 7, v14")
    a("s_lshl_b32 s71, s56, 6")
    a("s_add_u32 s71, s71, s43")
    a("s_mul_i32 s71, s71, 9216")
    a(f"s_add_u32 s71, s71, {WS_P}")

def bias_init(a):
    a("s_mul_i32 s46, s68, 192")
    a(f"s_add_u32 s46, s46, {L_B1}")
    a("v_lshl_add_u32 v11, v6, 5, s46")
    a("v_lshl_add_u32 v12, v6, 4, s46")
    a(f"ds_read_b128 {v(CI,4)}, v11 offset:{L_B1D - L_B1}")
    a(f"ds_read_b128 {v(CI+4,4)}, v11 offset:{L_B1D - L_B1 + 16}")
    a(f"ds_read_b128 {v(CI+8,4)}, v12 offset:128")

def to_gemm2(a):
    for r in (3, 4):
        a(f"v_add_u32 v{r}, {L_H - L_Y}, v{r}")
    for i in range(12): a(f"v_mov_b32 v{CI+i}, 0")

def call(a, name):
    a(f"s_call_b64 s[74:75], {name}")

def mlp(a):
    ws = WS_
    a.label("L_m_roleA")
    mlp_setup(a)
    a("s_setprio 3")
    a("s_waitcnt lgkmcnt(0)")
    a("s_barrier")
    mark(a, "G1")
    stamp(a, 10); stamp_rt(a, 48)
    a("s_mov_b32 s68, s40")
    bias_init(a)
    a("s_mov_b32 s69, 3")
    call(a, "L_m_pass")
    stamp(a, 12)
    a("s_setprio 1")
    call(a, "L_m_gelu")
    stamp(a, 13)
    a("s_setprio 1")
    a("s_add_u32 s68, s40, 8")
    bias_init(a)
    a("s_mov_b32 s69, 0")
    call(a, "L_m_pass")
    a("s_setprio 0")
    stamp(a, 14)
    a("s_barrier")
    stamp(a, 11)
    call(a, "L_m_gelu")
    stamp(a, 15)
    a("s_waitcnt lgkmcnt(0)")
    a("s_barrier")
    a("s_setprio 2")
    to_gemm2(a)
    a(f"s_mov_b32 s69, {10 if GATEB else 8}")
    call(a, "L_m_pass")
    a("s_setprio 0")
    a("s_add_u32 s68, s40, 4")
    stamp(a, 16); mark(a, "M")
    reduce_setup(a)
    call(a, "L_m_cvt")
    if GATEA: a("s_barrier")
    call(a, "L_m_st")
    if not GATEA: a("s_barrier")
    stamp(a, 24)
    if not SENT1:
        a("s_waitcnt vmcnt(0)")
        flag_store(a, WS_FP1, 11)
    stamp(a, 25)
    a("s_cmp_eq_u32 s40, 3")
    a("s_cbranch_scc1 L_r_st1")
    flag_poll(a, "r_poll0", 8, 13, 53, 1, sleep=4)
    a("s_mov_b32 s48, s40")
    call(a, "L_r_item")
    a("s_cmp_eq_u32 s40, 0")
    a("s_cbranch_scc1 L_m_done")
    a.label("L_r_st1")
    a("s_add_u32 s48, s40, 2")
    if SENT1:
        a("s_mov_b32 s73, 1")
        a("s_waitcnt vmcnt(1)")
    else:
        a("s_add_u32 s53, s53, 16")
        flag_poll(a, "r_poll1", 8, 13, 53, 1, sleep=4)
    stamp(a, 17)
    call(a, "L_r_item")
    a("s_branch L_m_done")
    a.label("L_m_roleB")
    stamp(a, 26); stamp_rt(a, 40)
    a("s_barrier")
    for k in range(BPRE): a_loads(a, k)
    mlp_setup(a)
    a("s_mul_i32 s53, s56, 73728")
    a("s_lshl_b32 s47, s40, 10")
    a("s_add_u32 s53, s53, s47")
    a(f"s_add_u32 s53, s53, {WS_Y}")
    a("v_add_u32 v11, s47, v3")
    a("v_add_u32 v12, s47, v4")
    YR = ACC
    def y_loads(stg):
        for st in range(6*stg, 6*stg + 6):
            a(f"s_add_u32 s46, s53, {st*4096}")
            a(f"buffer_load_dwordx4 {v(YR+4*st,4)}, v2, {s(ws,4)}, s46 offen sc1")
    if YSENT:
        a(f"s_waitcnt vmcnt({3*BPRE})")
        stamp(a, 10)
        for stg in range(3): y_loads(stg)
        for stg in range(3):
            a(f"s_mov_b32 s49, {POLL_MAX}")
            a(f"s_waitcnt vmcnt({12 - 6*stg})")
            a.label(f"L_y_chk{stg}")
            b = YR + 24*stg
            a(f"v_max3_u32 v13, v{b}, v{b+1}, v{b+2}")
            a(f"v_max3_u32 v8, v{b+3}, v{b+4}, v{b+5}")
            for i in range(6, 24, 4):
                a(f"v_max3_u32 v13, v13, v{b+i}, v{b+i+1}")
                if i + 3 < 24: a(f"v_max3_u32 v8, v8, v{b+i+2}, v{b+i+3}")
            a("v_max_u32 v13, v13, v8")
            a("v_cmp_eq_u32 vcc, -1, v13")
            a("s_sub_u32 s49, s49, 1")
            a(f"s_cbranch_scc1 L_y_ok{stg}")
            a("s_cmp_eq_u64 vcc, 0")
            a(f"s_cbranch_scc1 L_y_ok{stg}")
            a(f"s_sleep {YSLEEP}")
            y_loads(stg)
            a("s_waitcnt vmcnt(0)")
            a(f"s_branch L_y_chk{stg}")
            a.label(f"L_y_ok{stg}")
            for st in range(6*stg, 6*stg + 6):
                a(f"ds_write_b128 v{11 + st // 9}, {v(YR+4*st,4)} offset:{(st % 9)*4096}")
            if stg == 2:
                for k in range(BPRE, RDS - 1): a_loads(a, k)
            a("s_waitcnt lgkmcnt(0)")
            if stg == 0: stamp_rt(a, 43)
            a("s_barrier")
            if stg == 0: mark(a, "G1")
    else:
        a(f"s_waitcnt vmcnt({3*BPRE})")
        flag_store(a, WS_FY, 12)
        for k in range(BPRE, RDS - 1): a_loads(a, k)
        a("s_lshl_b32 s46, s56, 8")
        a(f"s_add_u32 s52, s46, {WS_FY}")
        a("v_lshlrev_b32 v8, 2, v1")
        flag_poll(a, "m_ypoll", 8, GT, 52, 1)
        stamp_rt(a, 43)
        stamp(a, 10)
        a("s_lshl_b32 s47, s40, 10")
        for st in range(18):
            a(f"s_add_u32 m0, s47, {L_Y + st*4096}")
            a(f"s_add_u32 s46, s53, {st*4096}")
            a(f"buffer_load_dwordx4 v2, {s(ws,4)}, s46 offen sc1 lds")
        for stg in range(3):
            a(f"s_waitcnt vmcnt({12 - 6*stg}) lgkmcnt(0)")
            a("s_barrier")
            if stg == 0: mark(a, "G1")
    a("s_setprio 2")
    a("s_add_u32 s68, s40, 4")
    bias_init(a)
    a("s_mov_b32 s69, 0")
    call(a, "L_m_pass")
    stamp(a, 12)
    a("s_setprio 0")
    call(a, "L_m_gelu")
    stamp(a, 13)
    to_gemm2(a)
    a("s_setprio 3")
    a("s_waitcnt lgkmcnt(0)")
    a("s_barrier")
    stamp(a, 11)
    a("s_mov_b32 s69, 2")
    call(a, "L_m_pass")
    a("s_setprio 0")
    a("s_mov_b32 s68, s40")
    stamp(a, 15)
    call(a, "L_m_cvt")
    if GATEB: a("s_barrier")
    call(a, "L_m_st")
    reduce_setup(a)
    if not GATEB:
        a("s_waitcnt vmcnt(0)")
        flag_store(a, WS_FP1, 11)
    stamp(a, 25)
    a("s_setprio 1")
    a("s_mov_b32 s69, 10")
    call(a, "L_m_pass")
    a("s_setprio 3")
    a("s_add_u32 s68, s40, 8")
    stamp(a, 16); stamp_rt(a, 46); mark(a, "M")
    call(a, "L_m_cvt")
    call(a, "L_m_st")
    if not SENT2:
        a("s_waitcnt vmcnt(0)")
        flag_store(a, WS_FP2, 11)
    a("s_cmp_eq_u32 s40, 3")
    a("s_cbranch_scc1 L_m_done")
    a("s_add_u32 s48, s40, 6")
    if SENT2:
        a("s_mov_b32 s73, 1")
        a("s_waitcnt vmcnt(0)")
    stamp_rt(a, 42)
    if not SENT2:
        a(f"s_add_u32 s53, s53, {WS_FP2 - WS_FP1}")
        flag_poll(a, "r_poll2", 8, 13, 53, 1)
    call(a, "L_r_item")
    a.label("L_m_done")

def subroutines(a):
    ws = WS_
    a.raw(".p2align 6")
    a.label("L_m_pass")
    def b_read(ks, a=a):
        b = BR + (ks % 3) * 16
        for q in range(4):
            a(f"ds_read_b128 {v(b+4*q,4)}, v{3 + ks // 9} offset:{(ks % 9)*4096 + q*1024}")
    def step(ks, loads):
        left = 3*(RDS-2) if loads else 3 * (17 - ks)
        a(f"s_waitcnt vmcnt({left}) lgkmcnt({4 if ks < 17 else 0})")
        b = BR + (ks % 3) * 16
        A = AR + 12 * (ks % RDS)
        R = Lst(); L = Lst()
        if ks + 2 < 18: b_read(ks + 2, R)
        if loads: a_loads(L, (ks - 1) % RDS)
        fill = {}
        for i, x in enumerate(R): fill[(0, 2, 4, 6)[i]] = x
        for i, x in enumerate(L): fill[(1, 5, 8, 10)[i]] = x
        n = 0
        for t in range(3):
            for q in range(4):
                mfma16(a, acc(t, q), A + 4*t, b + 4*q, CI + 4*t if ks == 0 else acc(t, q))
                if n in fill: a(fill[n])
                n += 1
    for ks in range(2): b_read(ks)
    for ks in range(18):
        if ks in (4, 10):
            a(f"s_bitcmp1_b32 s69, {0 if ks == 4 else 1}")
            a(f"s_cbranch_scc0 L_m_nb{ks}")
            a("s_barrier")
            a.label(f"L_m_nb{ks}")
            if ks == 10:
                a("s_bitcmp1_b32 s69, 3")
                a("s_cbranch_scc1 L_m_tail")
        step(ks, True)
    a("s_nop 7")
    a("s_setpc_b64 s[74:75]")
    a.label("L_m_tail")
    if GATEB:
        a("s_cmp_lg_u32 s41, 0")
        a("s_cbranch_scc1 L_m_nf")
        flag_store(a, WS_FP1, 11)
        a.label("L_m_nf")
    for ks in range(10, 18): step(ks, False)
    a("s_nop 7")
    a("s_setpc_b64 s[74:75]")
    a.label("L_m_gelu")
    a("s_mul_i32 s46, s68, 6")
    a("v_add_u32 v11, s46, v6")
    a("v_lshrrev_b32 v12, 2, v11")
    a("v_lshl_add_u32 v12, v12, 12, v9")
    a("v_and_b32 v11, 3, v11")
    a("v_lshl_add_u32 v11, v11, 8, v12")
    a(f"v_add_u32 v11, {L_H}, v11")
    a("s_add_u32 s46, s46, 4")
    a("v_add_u32 v12, s46, v10")
    a("v_lshrrev_b32 v13, 2, v12")
    a("v_lshl_add_u32 v13, v13, 12, v9")
    a("v_and_b32 v12, 3, v12")
    a("v_lshl_add_u32 v12, v12, 8, v13")
    a("v_and_b32 v13, 1, v6")
    a("v_lshl_add_u32 v12, v13, 3, v12")
    a(f"v_add_u32 v12, {L_H}, v12")
    for qq in range(2):
        for t in range(3):
            gelu(a, list(range(acc(t, 2*qq), acc(t, 2*qq) + 8)), GT, GT + 22)
        for q in (2*qq, 2*qq + 1):
            o = GT + 8 + (q & 1) * 6
            for r in range(4):
                a(f"v_cvt_pk_bf16_f32 v{o+r}, v{acc(0,q)+r}, v{acc(1,q)+r}")
            a(f"v_cvt_pk_bf16_f32 v{o+4}, v{acc(2,q)}, v{acc(2,q)+1}")
            a(f"v_cvt_pk_bf16_f32 v{o+5}, v{acc(2,q)+2}, v{acc(2,q)+3}")
            a(f"ds_write_b128 v11, {v(o,4)} offset:{q*1024}")
            a(f"ds_write_b64 v12, {v(o+4,2)} offset:{q*1024}")
    a("s_setpc_b64 s[74:75]")
    a.label("L_m_cvt")
    for q in range(4):
        o = GT + q * 4
        for r in range(4):
            a(f"v_cvt_pk_bf16_f32 v{o+r}, v{acc(0,q)+r}, v{acc(1,q)+r}")
        o2 = GT + 16 + (q >> 1) * 4 + (q & 1) * 2
        a(f"v_cvt_pk_bf16_f32 v{o2}, v{acc(2,q)}, v{acc(2,q)+1}")
        a(f"v_cvt_pk_bf16_f32 v{o2+1}, v{acc(2,q)+2}, v{acc(2,q)+3}")
    for b in (GT + 16, GT + 20):
        a(f"v_permlane16_swap_b32 v{b}, v{b+2}")
        a(f"v_permlane16_swap_b32 v{b+1}, v{b+3}")
    a("s_setpc_b64 s[74:75]")
    a.label("L_m_st")
    a("s_mul_i32 s46, s68, 768")
    a("s_add_u32 s46, s46, s71")
    for q in range(4):
        a(f"s_add_u32 s47, s46, {q*147456}")
        a(f"buffer_store_dwordx4 {v(GT+4*q,4)}, v14, {s(ws,4)}, s47 offen sc1")
        if not q & 1:
            a(f"buffer_store_dwordx4 {v(GT+16+(q>>1)*4,4)}, v15, {s(ws,4)}, s47 offen offset:512 sc1")
    a("s_nop 1")
    a("s_setpc_b64 s[74:75]")

def reduce_setup(a):
    srd(a, XS_, 22, D * 2)
    srd(a, 24, 6, S * D * 2)
    a("s_mov_b32 s76, 0xffff0000")
    a("s_lshl_b32 s46, s56, 8")
    a(f"s_add_u32 s53, s46, {WS_FP1}")
    a("v_lshlrev_b32 v8, 2, v1")
    a("v_and_b32 v8, 0xec, v8")
    a("s_mov_b32 s73, 0")

def reduce_item(a):
    ws = WS_
    a.label("L_r_item")
    R = ACC; Z = BR
    a("v_lshrrev_b32 v11, 3, v1")
    a("v_lshlrev_b32 v11, 4, v11")
    a("s_lshl_b32 s45, s48, 7")
    a(f"buffer_load_dwordx4 {v(R+32,4)}, v11, {s(XS_,4)}, s45 offen")
    a("s_mul_i32 s72, s57, 73728")
    a("s_lshl_b32 s47, s48, 10")
    a("s_add_u32 s72, s72, s47")
    a(f"s_add_u32 s72, s72, {WS_P}")
    a(f"s_add_u32 s47, s47, {L_HH}")
    a("v_add_u32 v12, s47, v2")
    a(f"ds_read_b128 {v(R+36,4)}, v12")
    a("s_mov_b32 s62, 0xff")
    a(f"s_mov_b32 s49, {POLL_MAX}")
    a.label("L_r_again")
    for i in range(8):
        a(f"s_bitcmp1_b32 s62, {i}")
        a(f"s_cbranch_scc0 L_r_sk{i}")
        a(f"s_add_u32 s46, s72, {i*9216}")
        a(f"buffer_load_dwordx4 {v(R+4*i,4)}, v2, {s(ws,4)}, s46 offen sc1")
        a.label(f"L_r_sk{i}")
    a("s_cmp_eq_u32 s73, 0")
    a("s_cbranch_scc1 L_r_have")
    a("s_waitcnt vmcnt(0)")
    a("s_mov_b32 s62, 0")
    for i in range(8):
        a(f"v_max3_u32 v13, v{R+4*i}, v{R+4*i+1}, v{R+4*i+2}")
        a(f"v_max_u32 v13, v13, v{R+4*i+3}")
        a("v_cmp_eq_u32 vcc, -1, v13")
        a("s_nop 1")
        a("s_cmp_lg_u64 vcc, 0")
        a(f"s_cselect_b32 s46, {1 << i}, 0")
        a("s_or_b32 s62, s62, s46")
    a("s_cbranch_scc0 L_r_have")
    a(f"s_sleep {RSLEEP}")
    a("s_sub_u32 s49, s49, 1")
    a("s_cbranch_scc0 L_r_again")
    a.label("L_r_have")
    stamp_rt(a, 45)
    a("v_mad_u32_u24 v11, v5, s44, v11")
    a("s_mul_i32 s46, s57, 9216")
    a("s_add_u32 s46, s46, s45")
    a("s_waitcnt lgkmcnt(0)")
    for r in range(4):
        a(f"v_lshlrev_b32 v{Z+2*r}, 16, v{R+36+r}")
        a(f"v_and_b32 v{Z+1+2*r}, s76, v{R+36+r}")
    for k, i in enumerate([8] + list(range(8))):
        a(f"s_waitcnt vmcnt({8-k})")
        for r in range(4):
            a(f"v_lshlrev_b32 v{Z+12}, 16, v{R+4*i+r}")
            a(f"v_and_b32 v{Z+13}, s76, v{R+4*i+r}")
            a(f"v_add_f32 v{Z+2*r}, v{Z+2*r}, v{Z+12}")
            a(f"v_add_f32 v{Z+1+2*r}, v{Z+1+2*r}, v{Z+13}")
    for r in range(4):
        a(f"v_cvt_pk_bf16_f32 v{Z+8+r}, v{Z+2*r}, v{Z+1+2*r}")
    a(f"buffer_store_dwordx4 {v(Z+8,4)}, v11, s[24:27], s46 offen {OUTMOD}")
    a("s_nop 1")
    a("s_setpc_b64 s[74:75]")

def k_main(name):
    a = Asm()
    kernel_head(a, name)
    a("s_cmp_ge_u32 s2, 256")
    a("s_cbranch_scc1 L_end")
    stamp_first(a)
    mark(a, "start")
    prologue(a)
    stamp_init(a, 0)
    attention(a)
    mlp(a)
    stamp_dump(a, 2)
    diag_end(a)
    a.label("L_end")
    a("s_endpgm")
    subroutines(a)
    reduce_item(a)
    return a.finish(), descriptor(name, 256, 80)
```

```python
from gen_valu import HDR
def make(name, R, sleep, npoll=1):
    s = HDR.format(grid=256, block=256, lds=0)
    s += f"""
    v_and_b32 v1, 63, v0
    v_lshrrev_b32 v7, 6, v0
    s_nop 1
    v_readfirstlane_b32 s18, v7
    v_mov_b32 v2, 0
    s_mov_b32 s19, 0x200000
    buffer_load_dword v3, v2, s[8:11], s19 offen
    s_waitcnt vmcnt(0)
    s_memrealtime s[24:25]
    s_waitcnt lgkmcnt(0)
L_w:
    s_memrealtime s[26:27]
    s_waitcnt lgkmcnt(0)
    s_sub_u32 s26, s26, s24
    s_cmp_lt_u32 s26, 300
    s_cbranch_scc1 L_w
    s_cmp_ge_u32 s18, {npoll}
    s_cbranch_scc1 L_end
    s_memrealtime s[24:25]
    s_waitcnt lgkmcnt(0)
    s_cmp_lg_u32 s18, 0
    s_cbranch_scc1 L_poll0
    v_lshlrev_b32 v4, 10, v1
    s_lshl_b32 s19, s2, 2
    s_mov_b64 exec, {hex((1 << R) - 1) if R < 64 else -1}
    buffer_store_dword v3, v4, s[12:15], s19 offen sc1
    s_mov_b64 exec, -1
L_poll0:
    s_and_b32 s19, s2, {R - 1}
    s_lshl_b32 s19, s19, 10
    v_lshlrev_b32 v4, 4, v1
    s_mov_b32 s28, 20000
L_poll:
    buffer_load_dwordx4 v[8:11], v4, s[12:15], s19 offen sc1
    s_waitcnt vmcnt(0)
    v_xor_b32 v8, v8, v3
    v_xor_b32 v9, v9, v3
    v_xor_b32 v10, v10, v3
    v_xor_b32 v11, v11, v3
    v_or3_b32 v8, v8, v9, v10
    v_or_b32 v8, v8, v11
    v_cmp_ne_u32 vcc, 0, v8
    s_sub_u32 s28, s28, 1
    s_cbranch_scc1 L_ok
    s_nop 1
    s_cmp_eq_u64 vcc, 0
    s_cbranch_scc1 L_ok
    s_sleep {sleep}
    s_branch L_poll
L_ok:
    s_memrealtime s[26:27]
    s_waitcnt lgkmcnt(0)
    s_lshl_b32 s19, s2, 3
    v_mov_b32 v5, s24
    v_mov_b32 v6, s26
    v_mov_b32 v4, 0
    s_mov_b64 exec, 1
    buffer_store_dword v5, v4, s[8:11], s19 offen
    buffer_store_dword v6, v4, s[8:11], s19 offen offset:4
    s_waitcnt vmcnt(0)
L_end:
    s_endpgm
.section .rodata,"a"
.p2align 6
.amdhsa_kernel bench_kernel
  .amdhsa_next_free_vgpr 16
  .amdhsa_next_free_sgpr 64
  .amdhsa_accum_offset 16
  .amdhsa_group_segment_fixed_size 0
  .amdhsa_kernarg_size 16
  .amdhsa_user_sgpr_count 2
  .amdhsa_user_sgpr_kernarg_segment_ptr 1
  .amdhsa_system_sgpr_workgroup_id_x 1
.end_amdhsa_kernel
"""
    open(name, "w").write(s)
for R in (1, 8, 16, 32):
    for sl in (1, 6):
        make(f"bar_R{R:02d}_s{sl}.s", R, sl)
```
